```python
import torch

def _softmax(x, axis=-1):
    return torch.softmax(x, dim=axis)
def _gelu(x):
    return torch.nn.functional.gelu(x, approximate="tanh")
def _silu(x):
    return torch.nn.functional.silu(x)
def _sigmoid(x):
    return torch.sigmoid(x)
def _layernorm(x, axis=-1, eps=1e-5):
    m = x.mean(dim=axis, keepdim=True)
    v = x.var(dim=axis, keepdim=True, unbiased=False)
    return (x - m) / torch.sqrt(v + eps)
def _scatter_add(tgt, idx, src, axis=0):
    return tgt.clone().index_add_(axis, idx, src)
def _segment_sum(src, seg, n):
    out = torch.zeros((n,) + src.shape[1:], dtype=src.dtype)
    return out.index_add_(0, seg, src)
def _pad(x, pw):
    flat = tuple(v for pair in reversed(pw) for v in pair)
    return torch.nn.functional.pad(x, flat)

kernel_name = 'concat_heads__gqa_block_cached__mha_block_cached__near_ridge'

def setup_inputs():

    _w = (lambda a: (lambda t: t.to(torch.bfloat16) if t.is_floating_point() else t)(torch.as_tensor(a)))
    def _A_setup():
        B, Sq, D = 8, 48, 512
        Hq, Hkv, Sk, Dh = 32, 8, 2048, 128
        assert Hq % Hkv == 0, (Hq, Hkv)
        return {
            "x": _w((lambda *s: torch.randn(*s, dtype=torch.bfloat16) * 0.8)(B, Sq, D)),
            "k_cache": _w((lambda *s: torch.randn(*s, dtype=torch.bfloat16) * 0.8)(B, Hkv, Sk, Dh)),
            "v_cache": _w((lambda *s: torch.randn(*s, dtype=torch.bfloat16) * 0.05)(B, Hkv, Sk, Dh)),
            "wq": _w((lambda *s: torch.randn(*s, dtype=torch.bfloat16) * 0.8)(D, Hq * Dh) * (D ** -0.5)),
            "wo": _w((lambda *s: torch.randn(*s, dtype=torch.bfloat16) * 0.05)(Hq * Dh, D) * ((Hq * Dh) ** -0.5)),
        }
    _A_in = _A_setup()

    def _B_setup():
        B, Sq, D = 8, 48, 512
        H, Sk, Dh = 32, 2048, 128
        return {
            "x": _w((lambda *s: torch.randn(*s, dtype=torch.bfloat16) * 0.8)(B, Sq, D)),
            "k_cache": _w((lambda *s: torch.randn(*s, dtype=torch.bfloat16) * 0.8)(B, H, Sk, Dh)),
            "v_cache": _w((lambda *s: torch.randn(*s, dtype=torch.bfloat16) * 0.05)(B, H, Sk, Dh)),
            "wq": _w((lambda *s: torch.randn(*s, dtype=torch.bfloat16) * 0.8)(D, H * Dh) * (D ** -0.5)),
            "wo": _w((lambda *s: torch.randn(*s, dtype=torch.bfloat16) * 0.05)(H * Dh, D) * ((H * Dh) ** -0.5)),
        }
    _B_in = _B_setup()

    return {
        "A_x": _A_in["x"],
        "A_k_cache": _A_in["k_cache"],
        "A_v_cache": _A_in["v_cache"],
        "A_wq": _A_in["wq"],
        "A_wo": _A_in["wo"],
        "B_x": _B_in["x"],
        "B_k_cache": _B_in["k_cache"],
        "B_v_cache": _B_in["v_cache"],
        "B_wq": _B_in["wq"],
        "B_wo": _B_in["wo"],
    }

def reference(A_x, A_k_cache, A_v_cache, A_wq, A_wo, B_x, B_k_cache, B_v_cache, B_wq, B_wo):
    def _A_ref(x, k_cache, v_cache, wq, wo):
        B, Sq, D = x.shape
        Hq, Dh = 32, 128
        Hkv = k_cache.shape[1]
        rep = Hq // Hkv
        q = (lambda x, *d: x.permute(*d))((x @ wq).reshape(B, Sq, Hq, Dh), 0, 2, 1, 3)
        k = (lambda x, n, axis: torch.repeat_interleave(x, n, dim=axis))(k_cache, rep, axis=1)
        v = (lambda x, n, axis: torch.repeat_interleave(x, n, dim=axis))(v_cache, rep, axis=1)
        scores = torch.einsum("bhqd,bhkd->bhqk", q, k) * (Dh ** -0.5)
        p = _softmax(scores, axis=-1)
        o = torch.einsum("bhqk,bhkd->bhqd", p, v)
        return (lambda x, *d: x.permute(*d))(o, 0, 2, 1, 3).reshape(B, Sq, Hq * Dh) @ wo

    def _B_ref(x, k_cache, v_cache, wq, wo):
        B, Sq, D = x.shape
        H, Dh = 32, 128
        q = (lambda x, *d: x.permute(*d))((x @ wq).reshape(B, Sq, H, Dh), 0, 2, 1, 3)
        scores = torch.einsum("bhqd,bhkd->bhqk", q, k_cache) * (Dh ** -0.5)
        p = _softmax(scores, axis=-1)
        o = torch.einsum("bhqk,bhkd->bhqd", p, v_cache)
        return (lambda x, *d: x.permute(*d))(o, 0, 2, 1, 3).reshape(B, Sq, H * Dh) @ wo

    a = _A_ref(A_x, A_k_cache, A_v_cache, A_wq, A_wo)
    b = _B_ref(B_x, B_k_cache, B_v_cache, B_wq, B_wo)
    return torch.concatenate([a, b], axis=-1)
```

```python
import re

class Asm:
    def __init__(self):
        self.L = []
        self.vm = []
    def e(self, s):
        for ln in s.split('\n'):
            self.L.append(ln)
    def c(self, s):
        self.L.append('; ' + s)
    def label(self, s):
        self.L.append(s + ':')
    def vmop(self, tag, s):
        self.L.append(s); self.vm.append(tag)
        assert len(self.vm) <= 63, 'vmcnt overflow'
    def wait_vm(self, tag):
        if tag not in self.vm:
            self.L.append(f'; wait {tag}: already covered'); return
        idx = max(i for i, t in enumerate(self.vm) if t == tag)
        n = len(self.vm) - 1 - idx
        self.L.append(f's_waitcnt vmcnt({n})')
        self.vm = self.vm[idx+1:]
    def wait_vm_all(self):
        self.L.append('s_waitcnt vmcnt(0)'); self.vm = []
    def nop(self, n):
        while n > 0:
            k = min(n, 16)
            self.L.append(f's_nop {k-1}'); n -= k
    def text(self):
        return '\n'.join(self.L) + '\n'

def _regs(tok):
    tok = tok.strip()
    m = re.fullmatch(r'-?\|?(abs\()?([va])\[(\d+):(\d+)\]\)?\|?', tok)
    if m: return [(m.group(2), i) for i in range(int(m.group(3)), int(m.group(4)) + 1)]
    m = re.fullmatch(r'-?\|?(abs\()?([va])(\d+)\)?\|?', tok)
    if m: return [(m.group(2), int(m.group(3)))]
    m = re.fullmatch(r'-?s\[(\d+):(\d+)\]', tok)
    if m: return [('s', i) for i in range(int(m.group(1)), int(m.group(2)) + 1)]
    m = re.fullmatch(r'-?s(\d+)', tok)
    if m: return [('s', int(m.group(1)))]
    if tok == 'vcc': return [('s', 'vcc')]
    if tok == 'm0': return [('s', 'm0')]
    return []

TRANS = ('v_exp_f32', 'v_log_f32', 'v_rcp_f32', 'v_rsq_f32', 'v_sqrt_f32', 'v_sin_f32', 'v_cos_f32')

def parse(line):
    s = line.split(';')[0].strip()
    if not s or s.endswith(':') or s.startswith('.'): return None
    parts = s.split(None, 1)
    mn = parts[0]
    ops = [o.strip() for o in parts[1].split(',')] if len(parts) > 1 else []
    if ops:
        last = ops[-1].split()
        ops[-1] = last[0] if last else ''
        mods = last[1:]
    else: mods = []
    return mn, ops, mods

def check(lines, verbose=True):
    hist = []
    pos = 0
    probs = []
    for ln_no, line in enumerate(lines):
        p = parse(line)
        if p is None: continue
        mn, ops, mods = p
        if mn == 's_nop':
            pos += int(ops[0], 0) + 1; continue
        dst, src = [], []
        kind = 'other'
        if mn.startswith('v_mfma'):
            kind = 'mfma'; dst = _regs(ops[0]); A = _regs(ops[1]); B = _regs(ops[2]); C = _regs(ops[3]); src = A + B + C
        elif mn.startswith('v_permlane') and 'swap' in mn:
            kind = 'perm'; dst = _regs(ops[0]) + _regs(ops[1]); src = list(dst)
        elif mn.startswith('v_cmp'):
            kind = 'valu'; dst = _regs(ops[0]); src = sum((_regs(o) for o in ops[1:]), [])
        elif mn.startswith('v_readfirstlane') or mn.startswith('v_readlane'):
            kind = 'rfl'; dst = _regs(ops[0]); src = _regs(ops[1])
        elif mn.startswith('v_'):
            kind = 'trans' if mn.replace('_e32', '').replace('_e64', '') in TRANS else 'valu'
            dst = _regs(ops[0]); src = sum((_regs(o) for o in ops[1:]), [])
            if mn.startswith(('v_fmac', 'v_dot2c', 'v_pk_fmac')): src += dst
            if mn.startswith('v_cndmask') and len(ops) == 3: src += [('s', 'vcc')]
        elif mn.startswith('ds_read'):
            kind = 'dsr'; dst = _regs(ops[0]); src = _regs(ops[1])
        elif mn.startswith('ds_write') or mn.startswith('ds_add'):
            kind = 'dsw'; src = sum((_regs(o) for o in ops), [])
        elif mn.startswith('buffer_load') or mn.startswith('global_load'):
            kind = 'vml'
            if 'lds' in mods or 'lds' in line.split(';')[0].split():
                src = sum((_regs(o) for o in ops), []) + [('s', 'm0')]; kind = 'vmlds'
            else:
                dst = _regs(ops[0]); src = sum((_regs(o) for o in ops[1:]), [])
        elif mn.startswith('buffer_store') or mn.startswith('global_store') or mn.startswith('buffer_atomic') or mn.startswith('global_atomic'):
            kind = 'vms'; src = sum((_regs(o) for o in ops), [])
        elif mn.startswith('s_'):
            kind = 'salu'
            if mn in ('s_waitcnt', 's_barrier', 's_endpgm', 's_branch', 's_sleep', 's_setprio') or mn.startswith('s_cbranch') or mn.startswith('s_cmp'):
                src = sum((_regs(o) for o in ops), [])
            else:
                dst = _regs(ops[0]) if ops else []; src = sum((_regs(o) for o in ops[1:]), [])
        sd, ss = set(dst), set(src)
        for (k2, d2, s2, p2, x2) in reversed(hist):
            gap = pos - p2 - 1
            if gap >= 20: break
            need = 0; why = ''
            if k2 in ('valu', 'trans', 'perm') and kind == 'mfma' and (d2 & ss): need, why = 2, 'VALU->MFMA operand'
            if k2 == 'mfma':
                if kind == 'mfma':
                    AB = set(A + B); Cs = set(C)
                    if d2 & AB: need, why = 8, 'MFMA D->MFMA A/B'
                    elif (d2 & Cs) and d2 != Cs: need, why = 6, 'MFMA D->MFMA C partial'
                elif kind in ('valu', 'trans', 'perm', 'rfl', 'dsr', 'dsw', 'vml', 'vms', 'vmlds'):
                    if d2 & (ss | sd): need, why = 8, 'MFMA D->non-MFMA'
                    if kind in ('valu', 'trans', 'perm') and (x2 & sd):
                        if need < 3: need, why = 3, 'MFMA C WAR'
            if k2 == 'trans' and kind in ('valu', 'perm', 'rfl') and (d2 & ss): need, why = max(need, 1), why or 'trans->valu'
            if k2 == 'trans' and kind == 'mfma' and (d2 & ss): need, why = max(need, 2), why or 'trans->mfma'
            if k2 in ('valu', 'trans', 'perm') and kind == 'perm' and (d2 & ss): need, why = max(need, 2), why or 'VALU->permlane'
            if k2 in ('valu', 'trans', 'perm') and kind == 'rfl' and (d2 & ss): need, why = max(need, 1), why or 'VALU->readlane'
            if k2 in ('valu', 'rfl') and any(r[0] == 's' for r in d2):
                sregs = {r for r in d2 if r[0] == 's'}
                if kind in ('vml', 'vms', 'vmlds') and (sregs & ss): need, why = max(need, 5), why or 'VALU sgpr->VMEM'
                if kind in ('valu', 'trans') and (sregs & ss): need, why = max(need, 2), why or 'VALU sgpr->VALU const'
            if k2 == 'salu' and ('s', 'm0') in d2 and kind == 'vmlds': need, why = max(need, 1), why or 'M0->LDS DMA'
            if k2 == 'vms' and kind in ('valu', 'trans', 'perm') and (s2 & sd) and any(r[0] in 'va' for r in (s2 & sd)): need, why = max(need, 2), why or 'store data WAR'
            if need > gap:
                probs.append(f'line {ln_no}: {line.strip()}  needs {need} wait states after producer ({why}), has {gap}')
        hist.append((kind, sd, ss, pos, set(C) if kind == 'mfma' else set()))
        if len(hist) > 64: hist.pop(0)
        pos += 1
    return probs
```

```python
import sys
from asmlib import Asm, check

K1 = 'attn_main_kernel'
K2 = 'outreduce_kernel'

V_LANE = 0
V_T0 = 1
TRA = 16
KA = 24
DE, DO = 28, 29
ML = 30
def M_(qt): return ML + 2*qt
def L_(qt): return ML + 2*qt + 1
TMP = 36
S = 48
P = 72
KF = 84
VF = 116
O = 148
QE, QO, OE, OO = 244, 245, 246, 247
V_L16 = 248
V_XB = 249
V_ST = 250
def Oreg(tau, qt): return O + (tau*3 + qt)*4
def Sreg(kt, qt): return S + (kt*3 + qt)*4
AQ = 0
AX = 48
def aq(qt, s): r = AQ + (qt*4 + s)*4; return f'a[{r}:{r+3}]'
def ax(qt, s): r = AX + (qt*4 + s)*4; return f'a[{r}:{r+3}]'
def vr(b, n): return f'v[{b}:{b+n-1}]' if n > 1 else f'v{b}'

SRD = {1: dict(K=28, V=32, WQ=36, X=40, WO=44, PT=48), 2: dict(K=52, V=56, WQ=60, X=64, WO=68, PT=72)}
S_W = 76; S_LB = 77; S_OFF = 78; S_T = 79
S_CNT = 86; S_THR = 87; S_FLOOR = 88; S_C = 89; S_RET = 90
S_WQO = 92; S_XO = 93; S_T2 = 94

AUX = 131072

class Cfg:
    nt_kv = True
    nt_w = False
    thr = 8.0
    st_flags = ''

def gen(cfg=Cfg()):
    a = Asm()
    a.e(f'; @launch kernel={K1} grid=(256,1,1) block=(256,1,1) lds=163840')
    a.e(f'; @launch kernel={K2} grid=(768,1,1) block=(64,1,1) lds=0')
    a.e('.amdgcn_target "amdgcn-amd-amdhsa--gfx950"')
    a.e('.text')
    a.e(f'.globl {K1}'); a.e('.p2align 8'); a.e(f'.type {K1},@function'); a.label(K1)
    a.e('s_cmp_ge_u32 s2, 256'); a.e('s_cbranch_scc1 L_k1_end')
    a.e('s_load_dwordx16 s[4:19], s[0:1], 0')
    a.e('s_load_dwordx4 s[20:23], s[0:1], 64')
    a.e('s_load_dwordx2 s[24:25], s[0:1], 96')
    a.e(f'v_lshrrev_b32 v1, 6, v0')
    a.e(f'v_and_b32 v{V_LANE}, 63, v0')
    a.e(f'v_readfirstlane_b32 s{S_W}, v1')
    a.e(f'v_and_b32 v2, 15, v{V_LANE}'); a.e(f'v_lshrrev_b32 v3, 4, v{V_LANE}')
    a.e(f'v_lshlrev_b32 v{V_L16}, 4, v{V_LANE}')
    a.e(f's_lshl_b32 s{S_LB}, s{S_W}, 15')
    a.e('v_lshlrev_b32 v4, 1, v3'); a.e('v_xor_b32 v4, v2, v4'); a.e('v_lshlrev_b32 v4, 4, v4')
    a.e(f'v_lshl_add_u32 v{DE}, v3, 8, v4'); a.e(f'v_xor_b32 v{DO}, 0x80, v{DE}')
    a.e(f'v_lshl_add_u32 v{QE}, v3, 13, v4'); a.e(f'v_xor_b32 v{QO}, 0x80, v{QE}')
    a.e(f'v_lshl_add_u32 v{OE}, v3, 10, v4'); a.e(f'v_xor_b32 v{OO}, 0x80, v{OE}')
    a.e('v_and_b32 v5, 7, v2'); a.e('v_lshlrev_b32 v5, 1, v5')
    a.e('v_xor_b32 v6, v3, v5'); a.e('v_lshlrev_b32 v6, 4, v6')
    a.e('v_lshl_add_u32 v6, v2, 8, v6'); a.e(f'v_add_u32 v{KA}, s{S_LB}, v6')
    for s in range(1, 4): a.e(f'v_xor_b32 v{KA+s}, {s<<6}, v{KA}')
    a.e('v_lshrrev_b32 v6, 1, v3'); a.e('v_xor_b32 v6, v6, v5'); a.e('v_lshlrev_b32 v6, 4, v6')
    a.e('v_and_b32 v7, 1, v3'); a.e('v_lshl_add_u32 v6, v7, 3, v6')
    a.e('v_lshl_add_u32 v6, v2, 8, v6'); a.e(f'v_add_u32 v{V_XB}, s{S_LB}, v6')
    a.e('v_lshrrev_b32 v6, 2, v2'); a.e('v_lshl_add_u32 v6, v3, 2, v6')
    a.e('v_and_b32 v7, 7, v6'); a.e('v_lshlrev_b32 v7, 1, v7')
    a.e('v_bfe_u32 v8, v2, 1, 1'); a.e('v_xor_b32 v7, v8, v7'); a.e('v_lshlrev_b32 v7, 4, v7')
    a.e('v_and_b32 v8, 1, v2'); a.e('v_lshl_add_u32 v7, v8, 3, v7')
    a.e('v_lshl_add_u32 v7, v6, 8, v7'); a.e(f'v_add_u32 v7, s{S_LB}, v7')
    a.e(f's_lshl_b32 s{S_T}, s{S_W}, 1')
    for tau in range(8):
        a.e(f's_add_u32 s{S_T+1}, s{S_T}, {tau}'); a.e(f's_and_b32 s{S_T+1}, s{S_T+1}, 7'); a.e(f's_lshl_b32 s{S_T+1}, s{S_T+1}, 5')
        a.e(f'v_xor_b32 v{TRA+tau}, s{S_T+1}, v7')
    a.e(f's_mul_i32 s{S_T}, s{S_W}, 12288'); a.e(f'v_add_u32 v{V_ST}, s{S_T}, v{V_L16}')
    a.e(f's_lshl_b32 s{S_WQO}, s{S_W}, 20')
    a.e(f's_lshl_b32 s{S_XO}, s{S_W}, 8')
    a.e(f's_mov_b32 s{S_C}, 0x3e0293ee')
    import struct, math
    cbits = struct.unpack('<I', struct.pack('<f', math.log2(math.e) / math.sqrt(128.0)))[0]
    a.L[-1] = f's_mov_b32 s{S_C}, {cbits:#x}'
    a.e('s_and_b32 s79, s2, 7'); a.e('s_lshr_b32 s80, s2, 3'); a.e('s_lshr_b32 s81, s80, 2'); a.e('s_and_b32 s82, s80, 3')
    a.e('s_lshl_b32 s83, s79, 2'); a.e('s_add_u32 s83, s83, s82')
    a.e('s_lshl_b32 s84, s81, 3'); a.e('s_add_u32 s84, s84, s79')
    a.e('s_lshl_b32 s85, s81, 5'); a.e('s_add_u32 s85, s85, s83')
    a.e('s_waitcnt lgkmcnt(0)')
    a.e('s_and_b32 s94, s81, 1');
    for u in (1, 2):
        R = SRD[u]
        a.e(f's_cmp_eq_u32 s94, {1 if u == 1 else 0}')
        a.e('s_cselect_b32 s95, s85, s84')
        a.e('s_cselect_b32 s96, 256, 0')
        for name, pa, pb in (('X', 4, 14), ('K', 6, 16), ('V', 8, 18), ('WQ', 10, 20), ('WO', 12, 22)):
            r = R[name]
            a.e(f's_cselect_b32 s{r}, s{pb}, s{pa}'); a.e(f's_cselect_b32 s{r+1}, s{pb+1}, s{pa+1}')
        a.e('s_lshl_b32 s97, s95, 19'); a.e('s_lshr_b32 s98, s95, 13')
        for name in ('K', 'V'):
            r = R[name]
            a.e(f's_add_u32 s{r}, s{r}, s97'); a.e(f's_addc_u32 s{r+1}, s{r+1}, s98')
            a.e(f's_mov_b32 s{r+2}, 0x80000'); a.e(f's_mov_b32 s{r+3}, 0x20000')
        r = R['X']; a.e('s_mul_i32 s97, s81, 49152')
        a.e(f's_add_u32 s{r}, s{r}, s97'); a.e(f's_addc_u32 s{r+1}, s{r+1}, 0'); a.e(f's_mov_b32 s{r+2}, 49152'); a.e(f's_mov_b32 s{r+3}, 0x20000')
        r = R['WQ']; a.e('s_lshl_b32 s97, s83, 8')
        a.e(f's_add_u32 s{r}, s{r}, s97'); a.e(f's_addc_u32 s{r+1}, s{r+1}, 0'); a.e(f's_sub_u32 s{r+2}, 0x400000, s97'); a.e(f's_mov_b32 s{r+3}, 0x20000')
        r = R['WO']; a.e('s_lshl_b32 s97, s83, 17')
        a.e(f's_add_u32 s{r}, s{r}, s97'); a.e(f's_addc_u32 s{r+1}, s{r+1}, 0'); a.e(f's_mov_b32 s{r+2}, 0x20000'); a.e(f's_mov_b32 s{r+3}, 0x20000')
        r = R['PT']; a.e('s_add_u32 s96, s96, s85'); a.e('s_mul_i32 s97, s96, 49152'); a.e('s_mul_hi_u32 s98, s96, 49152')
        a.e(f's_add_u32 s{r}, s24, s97'); a.e(f's_addc_u32 s{r+1}, s25, s98'); a.e(f's_mov_b32 s{r+2}, 49152'); a.e(f's_mov_b32 s{r+3}, 0x20000')

    ntkv = ' nt' if cfg.nt_kv else ''
    ntw = ' nt' if cfg.nt_w else ''

    def dma(tag, srd, slot, vE, vO, RS, sbase, const, npieces=8, flags=''):
        for p in range(npieces):
            if p % 4 == 0:
                a.e(f's_add_u32 m0, s{S_LB}, {slot*8192 + (p//4)*4096}')
            off = const + p*4*RS - (p & 3)*1024
            if RS == 256:
                if p % 4 == 0: a.e(f's_add_u32 s{S_T2}, s{sbase}, {off}')
            else:
                a.e(f's_add_u32 s{S_T2}, s{sbase}, {off}')
            v = vE if p % 2 == 0 else vO
            a.vmop(tag, f'buffer_load_dwordx4 v{v}, s[{srd}:{srd+3}], s{S_T2} offen offset:{(p&3)*1024}{flags} lds')

    def dma_kv(tag, u, which, slot):
        dma(tag, SRD[u][which], slot, DE, DO, 256, S_OFF, 0, flags=ntkv)
    def dma_x(u, part, slot):
        dma(f'X{part}', SRD[u]['X'], slot, OE, OO, 1024, S_XO, part*32*1024, npieces=8 if part == 0 else 4, flags=ntw)
    def dma_wq(u, j, slot):
        dma(f'W{j}', SRD[u]['WQ'], slot, QE, QO, 8192, S_WQO, j*32*8192, flags=ntw)
    def dma_wo(u, s, slot):
        dma(f'WO{s}', SRD[u]['WO'], slot, OE, OO, 1024, S_XO, s*32*1024, flags=ntw)

    def pv(slot, bfrag, first, after_reads):
        for tau in range(8):
            a.e(f'ds_read_b64_tr_b16 {vr(VF+4*tau, 2)}, v{TRA+tau} offset:{slot*8192}')
            a.e(f'ds_read_b64_tr_b16 {vr(VF+4*tau+2, 2)}, v{TRA+tau} offset:{slot*8192+4096}')
        a.e('s_waitcnt lgkmcnt(0)')
        if after_reads: after_reads()
        for tau in range(8):
            for qt in range(3):
                d = vr(Oreg(tau, qt), 4)
                a.e(f'v_mfma_f32_16x16x32_bf16 {d}, {vr(VF+4*tau, 4)}, {bfrag(qt)}, {"0" if first else d}')

    def qk(slot, after_reads):
        for s in range(4):
            for kt in range(2):
                a.e(f'ds_read_b128 {vr(KF+(s*2+kt)*4, 4)}, v{KA+s} offset:{slot*8192+kt*4096}')
        a.e('s_waitcnt lgkmcnt(0)')
        if after_reads: after_reads()
        for s in range(4):
            for kt in range(2):
                for qt in range(3):
                    d = vr(Sreg(kt, qt), 4)
                    a.e(f'v_mfma_f32_16x16x32_bf16 {d}, {vr(KF+(s*2+kt)*4, 4)}, {aq(qt, s)}, {"0" if s == 0 else d}')

    site = [0]
    def softmax():
        a.nop(3)
        for kt in range(2):
            for qt in range(3):
                for r in range(4):
                    x = Sreg(kt, qt) + r
                    a.e(f'v_fma_f32 v{x}, v{x}, s{S_C}, -v{M_(qt)}')
        for qt in range(3):
            r0 = Sreg(0, qt); r1 = Sreg(1, qt)
            a.e(f'v_max3_f32 v{TMP+qt}, v{r0}, v{r0+1}, v{r0+2}')
        for qt in range(3):
            r0 = Sreg(0, qt); r1 = Sreg(1, qt)
            a.e(f'v_max3_f32 v{TMP+qt}, v{TMP+qt}, v{r0+3}, v{r1}')
        for qt in range(3):
            r1 = Sreg(1, qt)
            a.e(f'v_max3_f32 v{TMP+qt}, v{TMP+qt}, v{r1+1}, v{r1+2}')
        for qt in range(3):
            r1 = Sreg(1, qt)
            a.e(f'v_max_f32 v{TMP+qt}, v{TMP+qt}, v{r1+3}')
        a.e(f'v_max3_f32 v{TMP+3}, v{TMP}, v{TMP+1}, v{TMP+2}')
        a.e(f'v_cmp_lt_f32 vcc, s{S_THR}, v{TMP+3}')
        k = site[0]; site[0] += 1
        a.e(f's_cbranch_vccz L_fast{k}')
        a.e(f's_call_b64 s[{S_RET}:{S_RET+1}], L_rescale')
        a.label(f'L_fast{k}')
        for kt in range(2):
            for qt in range(3):
                for r in range(4):
                    x = Sreg(kt, qt) + r
                    a.e(f'v_exp_f32 v{x}, v{x}')
        for kt in range(2):
            for r in range(4):
                for qt in range(3):
                    a.e(f'v_add_f32 v{L_(qt)}, v{L_(qt)}, v{Sreg(kt, qt)+r}')
        for qt in range(3):
            for kt in range(2):
                x = Sreg(kt, qt)
                a.e(f'v_cvt_pk_bf16_f32 v{P+qt*4+kt*2}, v{x}, v{x+1}')
                a.e(f'v_cvt_pk_bf16_f32 v{P+qt*4+kt*2+1}, v{x+2}, v{x+3}')

    def block(u, kslot, vslot, ktag, vtag, nextK, nextV):
        a.wait_vm(ktag)
        qk(kslot, nextK)
        softmax()
        a.wait_vm(vtag)
        pv(vslot, lambda qt: vr(P+qt*4, 4), False, nextV)

    def allreduce(reg, op):
        t = TMP + 10
        a.e(f'v_mov_b32 v{t}, v{reg}'); a.nop(2)
        a.e(f'v_permlane32_swap_b32 v{reg}, v{t}'); a.nop(1)
        a.e(f'{op} v{reg}, v{reg}, v{t}')
        a.e(f'v_mov_b32 v{t}, v{reg}'); a.nop(2)
        a.e(f'v_permlane16_swap_b32 v{reg}, v{t}'); a.nop(1)
        a.e(f'{op} v{reg}, v{reg}, v{t}')

    def exchange(kind, slotA, slotB, after_in):
        a.c(f'--- exchange {kind}')
        t = TMP
        for rho in (1, 2, 3):
            a.e(f's_add_u32 s{S_T}, s{S_W}, {rho}'); a.e(f's_and_b32 s{S_T}, s{S_T}, 3')
            if rho < 3:
                a.e(f's_lshl_b32 s{S_T}, s{S_T}, 15')
            else:
                a.e(f's_lshl_b32 s{S_T}, s{S_T}, 13'); a.e(f's_add_u32 s{S_T}, s{S_T}, {AUX}')
            a.e(f'v_add_u32 v{t+rho}, s{S_T}, v{V_L16}')
        for rho in (1, 2, 3):
            base = {1: slotA*8192, 2: slotB*8192, 3: 0}[rho]
            for i in range(6):
                a.e(f'ds_write_b128 v{t+rho}, {vr(O+24*rho+4*i, 4)} offset:{base+i*1024}')
        a.e(f'v_add_u32 v{t+4}, s{S_LB}, v{V_L16}')
        a.e(f's_lshl_b32 s{S_T}, s{S_W}, 13'); a.e(f's_add_u32 s{S_T}, s{S_T}, {AUX}')
        a.e(f'v_add_u32 v{t+5}, s{S_T}, v{V_L16}')
        a.e('s_waitcnt lgkmcnt(0)'); a.e('s_barrier')
        IN = S
        for rho in (1, 2, 3):
            for i in range(6):
                if rho < 3:
                    base = {1: slotA*8192, 2: slotB*8192}[rho]
                    a.e(f'ds_read_b128 {vr(IN+24*(rho-1)+4*i, 4)}, v{t+4} offset:{base+i*1024}')
                else:
                    a.e(f'ds_read_b128 {vr(IN+24*(rho-1)+4*i, 4)}, v{t+5} offset:{i*1024}')
        if kind == 'Q':
            a.e(f'v_lshrrev_b32 v{t+6}, 5, v{V_LANE}')
            a.e(f'v_lshlrev_b32 v{t+6}, 8, v{t+6}')
            a.e(f'v_and_b32 v{t+7}, 15, v{V_LANE}'); a.e(f'v_lshl_add_u32 v{t+6}, v{t+7}, 4, v{t+6}')
            a.e(f'v_bfe_u32 v{t+7}, v{V_LANE}, 4, 1'); a.e(f'v_lshl_add_u32 v{t+6}, v{t+7}, 3, v{t+6}')
            a.e(f'v_add_u32 v{t+6}, s{S_T}, v{t+6}')
            uoff = 512
        else:
            a.e(f'v_add_u32 v{t+6}, s{S_T}, v{V_L16}')
            uoff = 8
        a.e('s_waitcnt lgkmcnt(0)')
        if after_in: after_in()
        for i in range(24):
            a.e(f'v_add_f32 v{O+i}, v{O+i}, v{IN+i}')
        for i in range(24):
            a.e(f'v_add_f32 v{IN+24+i}, v{IN+24+i}, v{IN+48+i}')
        for i in range(24):
            a.e(f'v_add_f32 v{O+i}, v{O+i}, v{IN+24+i}')
        for tau in range(2):
            for qt in range(3):
                x = Oreg(tau, qt); d = IN + (tau*3+qt)*2
                a.e(f'v_cvt_pk_bf16_f32 v{d}, v{x}, v{x+1}'); a.e(f'v_cvt_pk_bf16_f32 v{d+1}, v{x+2}, v{x+3}')
        for tau in range(2):
            for qt in range(3):
                d = IN + (tau*3+qt)*2
                a.e(f'ds_write_b64 v{t+6}, {vr(d, 2)} offset:{qt*1024 + tau*uoff}')
        a.e(f'v_add_u32 v{t+7}, {AUX}, v{V_L16}')
        a.e('s_waitcnt lgkmcnt(0)'); a.e('s_barrier')
        for qt in range(3):
            for s in range(4):
                dst = aq(qt, s) if kind == 'Q' else ax(qt, s)
                a.e(f'ds_read_b128 {dst}, v{t+7} offset:{s*8192 + qt*1024}')
        a.e('s_waitcnt lgkmcnt(0)')

    def unit(u):
        sg = 0 if u == 1 else 2
        sl = lambda n: (n + sg) & 3
        a.c(f'================ unit {u}')
        a.wait_vm('X1')
        for tq in range(8):
            a.e(f'v_xor_b32 v{TMP+tq}, {tq<<5}, v{V_XB}')
        for qt in range(3):
            for j in range(4):
                for uu in range(2):
                    r = AX + (qt*4 + j)*4 + uu*2
                    off = (sl(0)*8192 + qt*4096) if qt < 2 else sl(1)*8192
                    a.e(f'ds_read_b64 a[{r}:{r+1}], v{TMP+2*j+uu} offset:{off}')
        a.e('s_waitcnt lgkmcnt(0)')
        dma_wq(u, 2, sl(0)); dma_wq(u, 3, sl(1))
        a.e(f's_lshl_b32 s{S_OFF}, s{S_W}, 13')
        wslot = [sl(2), sl(3), sl(0), sl(1)]
        for j in range(4):
            a.wait_vm(f'W{j}')
            after = None
            if j == 0: after = lambda: dma_kv('Ka', u, 'K', sl(2))
            if j == 1:
                def after():
                    dma_kv('Va', u, 'V', sl(3)); a.e(f's_add_u32 s{S_OFF}, s{S_OFF}, 32768')
            pv(wslot[j], lambda qt, j=j: ax(qt, j), j == 0, after)
        a.nop(8)
        a.e('s_barrier')
        def after_in():
            dma_kv('Kb', u, 'K', sl(0)); dma_kv('Vb', u, 'V', sl(1)); a.e(f's_add_u32 s{S_OFF}, s{S_OFF}, 32768')
        exchange('Q', sl(0), sl(1), after_in)
        for i in range(96): a.e(f'v_mov_b32 v{O+i}, 0')
        for qt in range(3):
            a.e(f'v_mov_b32 v{M_(qt)}, 0'); a.e(f'v_mov_b32 v{L_(qt)}, 0')
        a.e(f's_mov_b32 s{S_THR}, 0xff800000'); a.e(f's_mov_b32 s{S_FLOOR}, 0xff800000')
        assert a.vm[-32:] == ['Ka']*8 + ['Va']*8 + ['Kb']*8 + ['Vb']*8, a.vm
        a.e(f's_mov_b32 s{S_CNT}, 7')
        a.label(f'L_loop{u}')
        start = len(a.L)
        def nk(tag, slot): return lambda: dma_kv(tag, u, 'K', slot)
        def nv(tag, slot):
            def f():
                dma_kv(tag, u, 'V', slot); a.e(f's_add_u32 s{S_OFF}, s{S_OFF}, 32768')
            return f
        block(u, sl(2), sl(3), 'Ka', 'Va', nk('Ka', sl(2)), nv('Va', sl(3)))
        block(u, sl(0), sl(1), 'Kb', 'Vb', nk('Kb', sl(0)), nv('Vb', sl(1)))
        a.e(f's_sub_u32 s{S_CNT}, s{S_CNT}, 1'); a.e(f's_cmp_lg_u32 s{S_CNT}, 0'); a.e(f's_cbranch_scc1 L_loop{u}')
        assert a.vm[-32:] == ['Ka']*8 + ['Va']*8 + ['Kb']*8 + ['Vb']*8, a.vm
        loops.append((start, len(a.L)))
        block(u, sl(2), sl(3), 'Ka', 'Va', lambda: dma_wo(u, 0, sl(2)), lambda: dma_wo(u, 1, sl(3)))
        block(u, sl(0), sl(1), 'Kb', 'Vb', None, None)
        a.c('--- stats')
        for qt in range(3): allreduce(L_(qt), 'v_add_f32')
        t = TMP
        a.e(f'v_and_b32 v{t}, 15, v{V_LANE}'); a.e(f'v_lshlrev_b32 v{t}, 3, v{t}')
        a.e(f'v_add_u32 v{t}, {AUX+6144}, v{t}')
        a.e(f's_lshl_b32 s{S_T}, s{S_W}, 13'); a.e(f'v_add_u32 v{t+1}, s{S_T}, v{t}')
        for qt in range(3):
            a.e(f'ds_write_b64 v{t+1}, {vr(M_(qt), 2)} offset:{qt*128}')
        a.e('s_waitcnt lgkmcnt(0)'); a.e('s_barrier')
        ST = S
        for qt in range(3):
            for w2 in range(4):
                a.e(f'ds_read_b64 {vr(ST+(qt*4+w2)*2, 2)}, v{t} offset:{w2*8192+qt*128}')
        a.e('s_waitcnt lgkmcnt(0)')
        for qt in range(3):
            m = lambda w2: ST + (qt*4+w2)*2
            mm = t + 2 + qt
            a.e(f'v_max3_f32 v{mm}, v{m(0)}, v{m(1)}, v{m(2)}'); a.e(f'v_max_f32 v{mm}, v{mm}, v{m(3)}')
            for w2 in range(4):
                a.e(f'v_sub_f32 v{m(w2)}, v{m(w2)}, v{mm}')
            a.e(f'v_sub_f32 v{M_(qt)}, v{M_(qt)}, v{mm}')
            for w2 in range(4):
                a.e(f'v_exp_f32 v{m(w2)}, v{m(w2)}')
            a.e(f'v_exp_f32 v{M_(qt)}, v{M_(qt)}')
            a.e(f'v_mul_f32 v{t+5}, v{m(0)}, v{m(0)+1}')
            for w2 in range(1, 4):
                a.e(f'v_fma_f32 v{t+5}, v{m(w2)}, v{m(w2)+1}, v{t+5}')
            a.e(f'v_rcp_f32 v{t+5}, v{t+5}'); a.nop(1)
            a.e(f'v_mul_f32 v{L_(qt)}, v{M_(qt)}, v{t+5}')
        for tau in range(8):
            for qt in range(3):
                for r in range(4):
                    x = Oreg(tau, qt) + r
                    a.e(f'v_mul_f32 v{x}, v{x}, v{L_(qt)}')
        def after_in2():
            dma_wo(u, 2, sl(0)); dma_wo(u, 3, sl(1))
        exchange('O', sl(0), sl(1), after_in2)
        oslot = [sl(2), sl(3), sl(0), sl(1)]
        for s in range(4):
            a.wait_vm(f'WO{s}')
            after = None
            if u == 1:
                after = [lambda: dma_x(2, 0, oslot[0]), lambda: dma_x(2, 1, oslot[1]), lambda: dma_wq(2, 0, oslot[2]), lambda: dma_wq(2, 1, oslot[3])][s]
            pv(oslot[s], lambda qt, s=s: ax(qt, s), s == 0, after)
        a.nop(8)
        for qt in range(3):
            for pi in range(4):
                d = S + (qt*4+pi)*4
                for h2 in range(2):
                    x = Oreg(2*pi+h2, qt)
                    a.e(f'v_cvt_pk_bf16_f32 v{d+2*h2}, v{x}, v{x+1}'); a.e(f'v_cvt_pk_bf16_f32 v{d+2*h2+1}, v{x+2}, v{x+3}')
        r = SRD[u]['PT']
        for qt in range(3):
            a.e(f's_mov_b32 s{S_T2}, {qt*4096}')
            for pi in range(4):
                d = S + (qt*4+pi)*4
                a.vmop('ST', f'buffer_store_dwordx4 {vr(d, 4)}, v{V_ST}, s[{r}:{r+3}], s{S_T2} offen offset:{pi*1024}{cfg.st_flags}')

    loops = []
    dma_x(1, 0, 0); dma_x(1, 1, 1); dma_wq(1, 0, 2); dma_wq(1, 1, 3)
    unit(1)
    unit(2)
    a.wait_vm_all()
    a.label('L_k1_end')
    a.e('s_endpgm')
    rs0 = len(a.L)
    a.label('L_rescale')
    t = TMP
    for qt in range(3):
        allreduce(TMP+qt, 'v_max_f32')
    for qt in range(3):
        a.e(f'v_max_f32 v{t+qt}, s{S_FLOOR}, v{t+qt}')
    for qt in range(3):
        a.e(f'v_add_f32 v{M_(qt)}, v{M_(qt)}, v{t+qt}')
        a.e(f'v_max_f32 v{t+4+qt}, 0, v{t+qt}')
        a.e(f'v_sub_f32 v{t+4+qt}, 0, v{t+4+qt}')
    for qt in range(3):
        a.e(f'v_exp_f32 v{t+4+qt}, v{t+4+qt}')
    for kt in range(2):
        for qt in range(3):
            for r in range(4):
                x = Sreg(kt, qt) + r
                a.e(f'v_sub_f32 v{x}, v{x}, v{t+qt}')
    for qt in range(3):
        a.e(f'v_mul_f32 v{L_(qt)}, v{L_(qt)}, v{t+4+qt}')
    for tau in range(8):
        for qt in range(3):
            for r in range(4):
                x = Oreg(tau, qt) + r
                a.e(f'v_mul_f32 v{x}, v{x}, v{t+4+qt}')
    import struct as st_
    a.e(f's_mov_b32 s{S_THR}, {st_.unpack("<I", st_.pack("<f", cfg.thr))[0]:#x}'); a.e(f's_mov_b32 s{S_FLOOR}, 0')
    a.e(f's_setpc_b64 s[{S_RET}:{S_RET+1}]')
    rs1 = len(a.L)

    a.e(f'.globl {K2}'); a.e('.p2align 8'); a.e(f'.type {K2},@function'); a.label(K2)
    k2s = len(a.L)
    a.e('s_cmp_ge_u32 s2, 768'); a.e('s_cbranch_scc1 L_k2_end')
    a.e('s_load_dwordx2 s[4:5], s[0:1], 96'); a.e('s_load_dwordx2 s[6:7], s[0:1], 80')
    a.e('s_mul_hi_u32 s8, s2, 0x5555556')
    a.e('s_mul_i32 s9, s8, 48'); a.e('s_sub_u32 s9, s2, s9')
    a.e('s_mul_i32 s10, s9, 0x5556'); a.e('s_lshr_b32 s10, s10, 18')
    a.e('s_mul_i32 s11, s10, 12'); a.e('s_sub_u32 s11, s9, s11')
    a.e('s_lshr_b32 s12, s11, 2'); a.e('s_and_b32 s13, s11, 3')
    a.e('s_waitcnt lgkmcnt(0)')
    a.e('s_mul_i32 s14, s8, 1572864')
    a.e('s_add_u32 s16, s4, s14'); a.e('s_addc_u32 s17, s5, 0'); a.e('s_mov_b32 s18, 1572864'); a.e('s_mov_b32 s19, 0x20000')
    a.e('v_lshlrev_b32 v1, 4, v0'); a.e('s_lshl_b32 s15, s9, 10'); a.e('v_add_u32 v1, s15, v1')
    vm2 = []
    for h in range(32):
        a.e(f's_mov_b32 s20, {h*49152}')
        a.e(f'buffer_load_dwordx4 v[{16+4*h}:{19+4*h}], v1, s[16:19], s20 offen')
    a.e('s_and_b32 s21, s8, 7'); a.e('s_lshr_b32 s22, s8, 3')
    a.e('s_mul_i32 s21, s21, 48'); a.e('s_lshl_b32 s23, s12, 4'); a.e('s_add_u32 s21, s21, s23')
    a.e('v_and_b32 v2, 15, v0'); a.e('v_add_u32 v2, s21, v2'); a.e('v_lshlrev_b32 v2, 11, v2')
    a.e('v_lshrrev_b32 v3, 4, v0'); a.e('v_lshl_add_u32 v2, v3, 3, v2')
    a.e('s_lshl_b32 s24, s22, 10'); a.e('s_lshl_b32 s25, s10, 8'); a.e('s_add_u32 s24, s24, s25')
    a.e('s_add_u32 s25, s10, s13'); a.e('s_lshl_b32 s25, s25, 1')
    a.e('s_and_b32 s26, s25, 7'); a.e('s_lshl_b32 s26, s26, 5'); a.e('s_add_u32 s26, s26, s24')
    a.e('s_add_u32 s27, s25, 1'); a.e('s_and_b32 s27, s27, 7'); a.e('s_lshl_b32 s27, s27, 5'); a.e('s_add_u32 s27, s27, s24')
    a.e('s_mov_b32 s28, s6'); a.e('s_mov_b32 s29, s7'); a.e('s_mov_b32 s30, 786432'); a.e('s_mov_b32 s31, 0x20000')
    for i in range(8): a.e(f'v_mov_b32 v{4+i}, 0')
    for h in range(32):
        a.e(f's_waitcnt vmcnt({31-h})')
        for d in range(4):
            r = 16 + 4*h + d
            a.e(f'v_lshlrev_b32 v12, 16, v{r}'); a.e(f'v_and_b32 v13, 0xffff0000, v{r}')
            a.e(f'v_add_f32 v{4+2*d}, v{4+2*d}, v12'); a.e(f'v_add_f32 v{5+2*d}, v{5+2*d}, v13')
    a.e('v_cvt_pk_bf16_f32 v12, v4, v5'); a.e('v_cvt_pk_bf16_f32 v13, v6, v7')
    a.e('v_cvt_pk_bf16_f32 v14, v8, v9'); a.e('v_cvt_pk_bf16_f32 v15, v10, v11')
    a.e('buffer_store_dwordx2 v[12:13], v2, s[28:31], s26 offen')
    a.e('buffer_store_dwordx2 v[14:15], v2, s[28:31], s27 offen')
    a.e('s_waitcnt vmcnt(0)')
    a.label('L_k2_end'); a.e('s_endpgm')
    k2e = len(a.L)

    a.e('.section .rodata,"a"')
    for name, nv, acc, ns in ((K1, 352, 256, 102), (K2, 144, 144, 40)):
        a.e('.p2align 6'); a.e(f'.amdhsa_kernel {name}')
        a.e(f'  .amdhsa_next_free_vgpr {nv}'); a.e(f'  .amdhsa_next_free_sgpr {ns}'); a.e(f'  .amdhsa_accum_offset {acc}')
        a.e('  .amdhsa_group_segment_fixed_size 0'); a.e('  .amdhsa_kernarg_size 104'); a.e('  .amdhsa_user_sgpr_count 2')
        a.e('  .amdhsa_user_sgpr_kernarg_segment_ptr 1'); a.e('  .amdhsa_system_sgpr_workgroup_id_x 1')
        a.e('  .amdhsa_float_denorm_mode_32 3'); a.e('  .amdhsa_float_denorm_mode_16_64 3')
        a.e('.end_amdhsa_kernel')

    L = list(a.L)
    probs = check(L)
    for (s0, s1) in loops:
        probs += check(L[s0:s1] + L[s0:s1])
    return a.text(), probs

if __name__ == '__main__':
    txt, probs = gen()
    for p in probs: print('HAZARD', p)
    out = sys.argv[1] if len(sys.argv) > 1 else 'v1.s'
    open(out, 'w').write(txt)
    print('written', out, len(txt))
```

```python
import sys
from asmlib import Asm, check

K1 = 'attn_main_kernel'
K2 = 'outreduce_kernel'

V_LANE = 0
V_T0 = 1
TRA = 16
KA = 24
DE, DO = 28, 29
ML = 30
def M_(qt): return ML + 2*qt
def L_(qt): return ML + 2*qt + 1
TMP = 36
S = 48
P = 72
KF = 84
VF = 116
O = 148
QE, QO, OE, OO = 244, 245, 246, 247
V_L16 = 248
V_XB = 249
V_ST = 250
def Oreg(tau, qt): return O + (tau*3 + qt)*4
def Sreg(kt, qt): return S + (kt*3 + qt)*4
AQ = 0
AX = 48
def aq(qt, s): r = AQ + (qt*4 + s)*4; return f'a[{r}:{r+3}]'
def ax(qt, s): r = AX + (qt*4 + s)*4; return f'a[{r}:{r+3}]'
def vr(b, n): return f'v[{b}:{b+n-1}]' if n > 1 else f'v{b}'

SRD = {1: dict(K=28, V=32, WQ=36, X=40, WO=44, PT=48), 2: dict(K=52, V=56, WQ=60, X=64, WO=68, PT=72)}
S_W = 76; S_LB = 77; S_OFF = 78; S_T = 79
S_CNT = 86; S_THR = 87; S_FLOOR = 88; S_C = 89; S_RET = 90
S_WQO = 92; S_XO = 93; S_T2 = 94

AUX = 131072

class Cfg:
    nt_kv = True
    nt_w = False
    thr = 8.0
    st_flags = ''
    stamps = False
    fine = False

def gen(cfg=Cfg()):
    a = Asm()
    a.e(f'; @launch kernel={K1} grid=(256,1,1) block=(256,1,1) lds=163840')
    a.e(f'; @launch kernel={K2} grid=(768,1,1) block=(64,1,1) lds=0')
    a.e('.amdgcn_target "amdgcn-amd-amdhsa--gfx950"')
    a.e('.text')
    a.e(f'.globl {K1}'); a.e('.p2align 8'); a.e(f'.type {K1},@function'); a.label(K1)
    a.e('s_cmp_ge_u32 s2, 256'); a.e('s_cbranch_scc1 L_k1_end')
    a.e('s_load_dwordx16 s[4:19], s[0:1], 0')
    a.e('s_load_dwordx4 s[20:23], s[0:1], 64')
    a.e('s_load_dwordx2 s[24:25], s[0:1], 96')
    a.e(f'v_lshrrev_b32 v1, 6, v0')
    a.e(f'v_and_b32 v{V_LANE}, 63, v0')
    a.e(f'v_readfirstlane_b32 s{S_W}, v1')
    a.e(f'v_and_b32 v2, 15, v{V_LANE}'); a.e(f'v_lshrrev_b32 v3, 4, v{V_LANE}')
    a.e(f'v_lshlrev_b32 v{V_L16}, 4, v{V_LANE}')
    a.e(f's_lshl_b32 s{S_LB}, s{S_W}, 15')
    a.e('v_lshlrev_b32 v4, 1, v3'); a.e('v_xor_b32 v4, v2, v4'); a.e('v_lshlrev_b32 v4, 4, v4')
    a.e(f'v_lshl_add_u32 v{DE}, v3, 8, v4'); a.e(f'v_xor_b32 v{DO}, 0x80, v{DE}')
    a.e(f'v_lshl_add_u32 v{QE}, v3, 13, v4'); a.e(f'v_xor_b32 v{QO}, 0x80, v{QE}')
    a.e(f'v_lshl_add_u32 v{OE}, v3, 10, v4'); a.e(f'v_xor_b32 v{OO}, 0x80, v{OE}')
    a.e('v_and_b32 v5, 7, v2'); a.e('v_lshlrev_b32 v5, 1, v5')
    a.e('v_xor_b32 v6, v3, v5'); a.e('v_lshlrev_b32 v6, 4, v6')
    a.e('v_lshl_add_u32 v6, v2, 8, v6'); a.e(f'v_add_u32 v{KA}, s{S_LB}, v6')
    for s in range(1, 4): a.e(f'v_xor_b32 v{KA+s}, {s<<6}, v{KA}')
    a.e('v_lshrrev_b32 v6, 1, v3'); a.e('v_xor_b32 v6, v6, v5'); a.e('v_lshlrev_b32 v6, 4, v6')
    a.e('v_and_b32 v7, 1, v3'); a.e('v_lshl_add_u32 v6, v7, 3, v6')
    a.e('v_lshl_add_u32 v6, v2, 8, v6'); a.e(f'v_add_u32 v{V_XB}, s{S_LB}, v6')
    a.e('v_lshrrev_b32 v6, 2, v2'); a.e('v_lshl_add_u32 v6, v3, 2, v6')
    a.e('v_and_b32 v7, 7, v6'); a.e('v_lshlrev_b32 v7, 1, v7')
    a.e('v_bfe_u32 v8, v2, 1, 1'); a.e('v_xor_b32 v7, v8, v7'); a.e('v_lshlrev_b32 v7, 4, v7')
    a.e('v_and_b32 v8, 1, v2'); a.e('v_lshl_add_u32 v7, v8, 3, v7')
    a.e('v_lshl_add_u32 v7, v6, 8, v7'); a.e(f'v_add_u32 v7, s{S_LB}, v7')
    a.e(f's_lshl_b32 s{S_T}, s{S_W}, 1')
    for tau in range(8):
        a.e(f's_add_u32 s{S_T+1}, s{S_T}, {tau}'); a.e(f's_and_b32 s{S_T+1}, s{S_T+1}, 7'); a.e(f's_lshl_b32 s{S_T+1}, s{S_T+1}, 5')
        a.e(f'v_xor_b32 v{TRA+tau}, s{S_T+1}, v7')
    a.e(f's_mul_i32 s{S_T}, s{S_W}, 12288'); a.e(f'v_add_u32 v{V_ST}, s{S_T}, v{V_L16}')
    a.e(f's_lshl_b32 s{S_WQO}, s{S_W}, 20')
    a.e(f's_lshl_b32 s{S_XO}, s{S_W}, 8')
    a.e(f's_mov_b32 s{S_C}, 0x3e0293ee')
    import struct, math
    cbits = struct.unpack('<I', struct.pack('<f', math.log2(math.e) / math.sqrt(128.0)))[0]
    a.L[-1] = f's_mov_b32 s{S_C}, {cbits:#x}'
    a.e('s_and_b32 s79, s2, 7'); a.e('s_lshr_b32 s80, s2, 3'); a.e('s_lshr_b32 s81, s80, 2'); a.e('s_and_b32 s82, s80, 3')
    a.e('s_lshl_b32 s83, s79, 2'); a.e('s_add_u32 s83, s83, s82')
    a.e('s_lshl_b32 s84, s81, 3'); a.e('s_add_u32 s84, s84, s79')
    a.e('s_lshl_b32 s85, s81, 5'); a.e('s_add_u32 s85, s85, s83')
    a.e('s_waitcnt lgkmcnt(0)')
    a.e('s_and_b32 s94, s81, 1');
    for u in (1, 2):
        R = SRD[u]
        a.e(f's_cmp_eq_u32 s94, {1 if u == 1 else 0}')
        a.e('s_cselect_b32 s95, s85, s84')
        a.e('s_cselect_b32 s96, 256, 0')
        for name, pa, pb in (('X', 4, 14), ('K', 6, 16), ('V', 8, 18), ('WQ', 10, 20), ('WO', 12, 22)):
            r = R[name]
            a.e(f's_cselect_b32 s{r}, s{pb}, s{pa}'); a.e(f's_cselect_b32 s{r+1}, s{pb+1}, s{pa+1}')
        a.e('s_lshl_b32 s97, s95, 19'); a.e('s_lshr_b32 s98, s95, 13')
        for name in ('K', 'V'):
            r = R[name]
            a.e(f's_add_u32 s{r}, s{r}, s97'); a.e(f's_addc_u32 s{r+1}, s{r+1}, s98')
            a.e(f's_mov_b32 s{r+2}, 0x80000'); a.e(f's_mov_b32 s{r+3}, 0x20000')
        r = R['X']; a.e('s_mul_i32 s97, s81, 49152')
        a.e(f's_add_u32 s{r}, s{r}, s97'); a.e(f's_addc_u32 s{r+1}, s{r+1}, 0'); a.e(f's_mov_b32 s{r+2}, 49152'); a.e(f's_mov_b32 s{r+3}, 0x20000')
        r = R['WQ']; a.e('s_lshl_b32 s97, s83, 8')
        a.e(f's_add_u32 s{r}, s{r}, s97'); a.e(f's_addc_u32 s{r+1}, s{r+1}, 0'); a.e(f's_sub_u32 s{r+2}, 0x400000, s97'); a.e(f's_mov_b32 s{r+3}, 0x20000')
        r = R['WO']; a.e('s_lshl_b32 s97, s83, 17')
        a.e(f's_add_u32 s{r}, s{r}, s97'); a.e(f's_addc_u32 s{r+1}, s{r+1}, 0'); a.e(f's_mov_b32 s{r+2}, 0x20000'); a.e(f's_mov_b32 s{r+3}, 0x20000')
        r = R['PT']; a.e('s_add_u32 s96, s96, s85'); a.e('s_mul_i32 s97, s96, 49152'); a.e('s_mul_hi_u32 s98, s96, 49152')
        a.e(f's_add_u32 s{r}, s24, s97'); a.e(f's_addc_u32 s{r+1}, s25, s98'); a.e(f's_mov_b32 s{r+2}, 49152'); a.e(f's_mov_b32 s{r+3}, 0x20000')

    nst = [0]
    finon = [False]
    def fstamp():
        if not (cfg.fine and finon[0]): return
        a.e('s_memtime s[100:101]'); a.e('s_waitcnt lgkmcnt(0)'); a.e(f's_mov_b32 s{4+nst[0]}, s100'); nst[0] += 1
        assert nst[0] <= 20
    def stamp():
        if not cfg.stamps or cfg.fine: return
        a.e('s_memrealtime s[100:101]'); a.e('s_waitcnt lgkmcnt(0)'); a.e(f's_mov_b32 s{4+nst[0]}, s100'); nst[0] += 1
        assert nst[0] <= 20
    ntkv = ' nt' if cfg.nt_kv else ''
    ntw = ' nt' if cfg.nt_w else ''

    def dma(tag, srd, slot, vE, vO, RS, sbase, const, npieces=8, flags=''):
        for p in range(npieces):
            if p % 4 == 0:
                a.e(f's_add_u32 m0, s{S_LB}, {slot*8192 + (p//4)*4096}')
            off = const + p*4*RS - (p & 3)*1024
            if RS == 256:
                if p % 4 == 0: a.e(f's_add_u32 s{S_T2}, s{sbase}, {off}')
            else:
                a.e(f's_add_u32 s{S_T2}, s{sbase}, {off}')
            v = vE if p % 2 == 0 else vO
            a.vmop(tag, f'buffer_load_dwordx4 v{v}, s[{srd}:{srd+3}], s{S_T2} offen offset:{(p&3)*1024}{flags} lds')

    def dma_kv(tag, u, which, slot):
        dma(tag, SRD[u][which], slot, DE, DO, 256, S_OFF, 0, flags=ntkv)
    def dma_x(u, part, slot):
        dma(f'X{part}', SRD[u]['X'], slot, OE, OO, 1024, S_XO, part*32*1024, npieces=8 if part == 0 else 4, flags=ntw)
    def dma_wq(u, j, slot):
        dma(f'W{j}', SRD[u]['WQ'], slot, QE, QO, 8192, S_WQO, j*32*8192, flags=ntw)
    def dma_wo(u, s, slot):
        dma(f'WO{s}', SRD[u]['WO'], slot, OE, OO, 1024, S_XO, s*32*1024, flags=ntw)

    def pv(slot, bfrag, first, after_reads):
        for tau in range(8):
            a.e(f'ds_read_b64_tr_b16 {vr(VF+4*tau, 2)}, v{TRA+tau} offset:{slot*8192}')
            a.e(f'ds_read_b64_tr_b16 {vr(VF+4*tau+2, 2)}, v{TRA+tau} offset:{slot*8192+4096}')
        a.e('s_waitcnt lgkmcnt(0)')
        fstamp()
        if after_reads: after_reads()
        fstamp()
        for tau in range(8):
            for qt in range(3):
                d = vr(Oreg(tau, qt), 4)
                a.e(f'v_mfma_f32_16x16x32_bf16 {d}, {vr(VF+4*tau, 4)}, {bfrag(qt)}, {"0" if first else d}')
        fstamp()

    def qk(slot, after_reads):
        for s in range(4):
            for kt in range(2):
                a.e(f'ds_read_b128 {vr(KF+(s*2+kt)*4, 4)}, v{KA+s} offset:{slot*8192+kt*4096}')
        a.e('s_waitcnt lgkmcnt(0)')
        fstamp()
        if after_reads: after_reads()
        fstamp()
        for s in range(4):
            for kt in range(2):
                for qt in range(3):
                    d = vr(Sreg(kt, qt), 4)
                    a.e(f'v_mfma_f32_16x16x32_bf16 {d}, {vr(KF+(s*2+kt)*4, 4)}, {aq(qt, s)}, {"0" if s == 0 else d}')
        fstamp()

    site = [0]
    def softmax():
        a.nop(3)
        for kt in range(2):
            for qt in range(3):
                for r in range(4):
                    x = Sreg(kt, qt) + r
                    a.e(f'v_fma_f32 v{x}, v{x}, s{S_C}, -v{M_(qt)}')
        for qt in range(3):
            r0 = Sreg(0, qt); r1 = Sreg(1, qt)
            a.e(f'v_max3_f32 v{TMP+qt}, v{r0}, v{r0+1}, v{r0+2}')
        for qt in range(3):
            r0 = Sreg(0, qt); r1 = Sreg(1, qt)
            a.e(f'v_max3_f32 v{TMP+qt}, v{TMP+qt}, v{r0+3}, v{r1}')
        for qt in range(3):
            r1 = Sreg(1, qt)
            a.e(f'v_max3_f32 v{TMP+qt}, v{TMP+qt}, v{r1+1}, v{r1+2}')
        for qt in range(3):
            r1 = Sreg(1, qt)
            a.e(f'v_max_f32 v{TMP+qt}, v{TMP+qt}, v{r1+3}')
        a.e(f'v_max3_f32 v{TMP+3}, v{TMP}, v{TMP+1}, v{TMP+2}')
        a.e(f'v_cmp_lt_f32 vcc, s{S_THR}, v{TMP+3}')
        k = site[0]; site[0] += 1
        a.e(f's_cbranch_vccz L_fast{k}')
        a.e(f's_call_b64 s[{S_RET}:{S_RET+1}], L_rescale')
        a.label(f'L_fast{k}')
        for kt in range(2):
            for qt in range(3):
                for r in range(4):
                    x = Sreg(kt, qt) + r
                    a.e(f'v_exp_f32 v{x}, v{x}')
        for kt in range(2):
            for r in range(4):
                for qt in range(3):
                    a.e(f'v_add_f32 v{L_(qt)}, v{L_(qt)}, v{Sreg(kt, qt)+r}')
        for qt in range(3):
            for kt in range(2):
                x = Sreg(kt, qt)
                a.e(f'v_cvt_pk_bf16_f32 v{P+qt*4+kt*2}, v{x}, v{x+1}')
                a.e(f'v_cvt_pk_bf16_f32 v{P+qt*4+kt*2+1}, v{x+2}, v{x+3}')

    def block(u, kslot, vslot, ktag, vtag, nextK, nextV):
        fstamp()
        a.wait_vm(ktag)
        fstamp()
        qk(kslot, nextK)
        softmax()
        fstamp()
        a.wait_vm(vtag)
        fstamp()
        pv(vslot, lambda qt: vr(P+qt*4, 4), False, nextV)

    def allreduce(reg, op):
        t = TMP + 10
        a.e(f'v_mov_b32 v{t}, v{reg}'); a.nop(2)
        a.e(f'v_permlane32_swap_b32 v{reg}, v{t}'); a.nop(1)
        a.e(f'{op} v{reg}, v{reg}, v{t}')
        a.e(f'v_mov_b32 v{t}, v{reg}'); a.nop(2)
        a.e(f'v_permlane16_swap_b32 v{reg}, v{t}'); a.nop(1)
        a.e(f'{op} v{reg}, v{reg}, v{t}')

    def exchange(kind, slotA, slotB, after_in):
        a.c(f'--- exchange {kind}')
        t = TMP
        for rho in (1, 2, 3):
            a.e(f's_add_u32 s{S_T}, s{S_W}, {rho}'); a.e(f's_and_b32 s{S_T}, s{S_T}, 3')
            if rho < 3:
                a.e(f's_lshl_b32 s{S_T}, s{S_T}, 15')
            else:
                a.e(f's_lshl_b32 s{S_T}, s{S_T}, 13'); a.e(f's_add_u32 s{S_T}, s{S_T}, {AUX}')
            a.e(f'v_add_u32 v{t+rho}, s{S_T}, v{V_L16}')
        for rho in (1, 2, 3):
            base = {1: slotA*8192, 2: slotB*8192, 3: 0}[rho]
            for i in range(6):
                a.e(f'ds_write_b128 v{t+rho}, {vr(O+24*rho+4*i, 4)} offset:{base+i*1024}')
        a.e(f'v_add_u32 v{t+4}, s{S_LB}, v{V_L16}')
        a.e(f's_lshl_b32 s{S_T}, s{S_W}, 13'); a.e(f's_add_u32 s{S_T}, s{S_T}, {AUX}')
        a.e(f'v_add_u32 v{t+5}, s{S_T}, v{V_L16}')
        a.e('s_waitcnt lgkmcnt(0)'); a.e('s_barrier')
        IN = S
        for rho in (1, 2, 3):
            for i in range(6):
                if rho < 3:
                    base = {1: slotA*8192, 2: slotB*8192}[rho]
                    a.e(f'ds_read_b128 {vr(IN+24*(rho-1)+4*i, 4)}, v{t+4} offset:{base+i*1024}')
                else:
                    a.e(f'ds_read_b128 {vr(IN+24*(rho-1)+4*i, 4)}, v{t+5} offset:{i*1024}')
        if kind == 'Q':
            a.e(f'v_lshrrev_b32 v{t+6}, 5, v{V_LANE}')
            a.e(f'v_lshlrev_b32 v{t+6}, 8, v{t+6}')
            a.e(f'v_and_b32 v{t+7}, 15, v{V_LANE}'); a.e(f'v_lshl_add_u32 v{t+6}, v{t+7}, 4, v{t+6}')
            a.e(f'v_bfe_u32 v{t+7}, v{V_LANE}, 4, 1'); a.e(f'v_lshl_add_u32 v{t+6}, v{t+7}, 3, v{t+6}')
            a.e(f'v_add_u32 v{t+6}, s{S_T}, v{t+6}')
            uoff = 512
        else:
            a.e(f'v_add_u32 v{t+6}, s{S_T}, v{V_L16}')
            uoff = 8
        a.e('s_waitcnt lgkmcnt(0)')
        if after_in: after_in()
        for i in range(24):
            a.e(f'v_add_f32 v{O+i}, v{O+i}, v{IN+i}')
        for i in range(24):
            a.e(f'v_add_f32 v{IN+24+i}, v{IN+24+i}, v{IN+48+i}')
        for i in range(24):
            a.e(f'v_add_f32 v{O+i}, v{O+i}, v{IN+24+i}')
        for tau in range(2):
            for qt in range(3):
                x = Oreg(tau, qt); d = IN + (tau*3+qt)*2
                a.e(f'v_cvt_pk_bf16_f32 v{d}, v{x}, v{x+1}'); a.e(f'v_cvt_pk_bf16_f32 v{d+1}, v{x+2}, v{x+3}')
        for tau in range(2):
            for qt in range(3):
                d = IN + (tau*3+qt)*2
                a.e(f'ds_write_b64 v{t+6}, {vr(d, 2)} offset:{qt*1024 + tau*uoff}')
        a.e(f'v_add_u32 v{t+7}, {AUX}, v{V_L16}')
        a.e('s_waitcnt lgkmcnt(0)'); a.e('s_barrier')
        for qt in range(3):
            for s in range(4):
                dst = aq(qt, s) if kind == 'Q' else ax(qt, s)
                a.e(f'ds_read_b128 {dst}, v{t+7} offset:{s*8192 + qt*1024}')
        a.e('s_waitcnt lgkmcnt(0)')

    def unit(u):
        sg = 0 if u == 1 else 2
        sl = lambda n: (n + sg) & 3
        a.c(f'================ unit {u}')
        a.wait_vm('X1')
        for tq in range(8):
            a.e(f'v_xor_b32 v{TMP+tq}, {tq<<5}, v{V_XB}')
        for qt in range(3):
            for j in range(4):
                for uu in range(2):
                    r = AX + (qt*4 + j)*4 + uu*2
                    off = (sl(0)*8192 + qt*4096) if qt < 2 else sl(1)*8192
                    a.e(f'ds_read_b64 a[{r}:{r+1}], v{TMP+2*j+uu} offset:{off}')
        a.e('s_waitcnt lgkmcnt(0)')
        stamp()
        dma_wq(u, 2, sl(0)); dma_wq(u, 3, sl(1))
        a.e(f's_lshl_b32 s{S_OFF}, s{S_W}, 13')
        wslot = [sl(2), sl(3), sl(0), sl(1)]
        for j in range(4):
            a.wait_vm(f'W{j}')
            after = None
            if j == 0: after = lambda: dma_kv('Ka', u, 'K', sl(2))
            if j == 1:
                def after():
                    dma_kv('Va', u, 'V', sl(3)); a.e(f's_add_u32 s{S_OFF}, s{S_OFF}, 32768')
            pv(wslot[j], lambda qt, j=j: ax(qt, j), j == 0, after)
        a.nop(8)
        stamp()
        a.e('s_barrier')
        def after_in():
            dma_kv('Kb', u, 'K', sl(0)); dma_kv('Vb', u, 'V', sl(1)); a.e(f's_add_u32 s{S_OFF}, s{S_OFF}, 32768')
        exchange('Q', sl(0), sl(1), after_in)
        stamp()
        for i in range(96): a.e(f'v_mov_b32 v{O+i}, 0')
        for qt in range(3):
            a.e(f'v_mov_b32 v{M_(qt)}, 0'); a.e(f'v_mov_b32 v{L_(qt)}, 0')
        a.e(f's_mov_b32 s{S_THR}, 0xff800000'); a.e(f's_mov_b32 s{S_FLOOR}, 0xff800000')
        assert a.vm[-32:] == ['Ka']*8 + ['Va']*8 + ['Kb']*8 + ['Vb']*8, a.vm
        a.e(f's_mov_b32 s{S_CNT}, 7')
        a.label(f'L_loop{u}')
        start = len(a.L)
        def nk(tag, slot): return lambda: dma_kv(tag, u, 'K', slot)
        def nv(tag, slot):
            def f():
                dma_kv(tag, u, 'V', slot); a.e(f's_add_u32 s{S_OFF}, s{S_OFF}, 32768')
            return f
        block(u, sl(2), sl(3), 'Ka', 'Va', nk('Ka', sl(2)), nv('Va', sl(3)))
        block(u, sl(0), sl(1), 'Kb', 'Vb', nk('Kb', sl(0)), nv('Vb', sl(1)))
        a.e(f's_sub_u32 s{S_CNT}, s{S_CNT}, 1'); a.e(f's_cmp_lg_u32 s{S_CNT}, 0'); a.e(f's_cbranch_scc1 L_loop{u}')
        assert a.vm[-32:] == ['Ka']*8 + ['Va']*8 + ['Kb']*8 + ['Vb']*8, a.vm
        loops.append((start, len(a.L)))
        stamp()
        if u == 1: finon[0] = True
        block(u, sl(2), sl(3), 'Ka', 'Va', lambda: dma_wo(u, 0, sl(2)), lambda: dma_wo(u, 1, sl(3)))
        block(u, sl(0), sl(1), 'Kb', 'Vb', None, None)
        finon[0] = False
        stamp()
        a.c('--- stats')
        for qt in range(3): allreduce(L_(qt), 'v_add_f32')
        t = TMP
        a.e(f'v_and_b32 v{t}, 15, v{V_LANE}'); a.e(f'v_lshlrev_b32 v{t}, 3, v{t}')
        a.e(f'v_add_u32 v{t}, {AUX+6144}, v{t}')
        a.e(f's_lshl_b32 s{S_T}, s{S_W}, 13'); a.e(f'v_add_u32 v{t+1}, s{S_T}, v{t}')
        for qt in range(3):
            a.e(f'ds_write_b64 v{t+1}, {vr(M_(qt), 2)} offset:{qt*128}')
        a.e('s_waitcnt lgkmcnt(0)'); a.e('s_barrier')
        ST = S
        for qt in range(3):
            for w2 in range(4):
                a.e(f'ds_read_b64 {vr(ST+(qt*4+w2)*2, 2)}, v{t} offset:{w2*8192+qt*128}')
        a.e('s_waitcnt lgkmcnt(0)')
        for qt in range(3):
            m = lambda w2: ST + (qt*4+w2)*2
            mm = t + 2 + qt
            a.e(f'v_max3_f32 v{mm}, v{m(0)}, v{m(1)}, v{m(2)}'); a.e(f'v_max_f32 v{mm}, v{mm}, v{m(3)}')
            for w2 in range(4):
                a.e(f'v_sub_f32 v{m(w2)}, v{m(w2)}, v{mm}')
            a.e(f'v_sub_f32 v{M_(qt)}, v{M_(qt)}, v{mm}')
            for w2 in range(4):
                a.e(f'v_exp_f32 v{m(w2)}, v{m(w2)}')
            a.e(f'v_exp_f32 v{M_(qt)}, v{M_(qt)}')
            a.e(f'v_mul_f32 v{t+5}, v{m(0)}, v{m(0)+1}')
            for w2 in range(1, 4):
                a.e(f'v_fma_f32 v{t+5}, v{m(w2)}, v{m(w2)+1}, v{t+5}')
            a.e(f'v_rcp_f32 v{t+5}, v{t+5}'); a.nop(1)
            a.e(f'v_mul_f32 v{L_(qt)}, v{M_(qt)}, v{t+5}')
        for tau in range(8):
            for qt in range(3):
                for r in range(4):
                    x = Oreg(tau, qt) + r
                    a.e(f'v_mul_f32 v{x}, v{x}, v{L_(qt)}')
        def after_in2():
            dma_wo(u, 2, sl(0)); dma_wo(u, 3, sl(1))
        exchange('O', sl(0), sl(1), after_in2)
        stamp()
        oslot = [sl(2), sl(3), sl(0), sl(1)]
        for s in range(4):
            a.wait_vm(f'WO{s}')
            after = None
            if u == 1:
                after = [lambda: dma_x(2, 0, oslot[0]), lambda: dma_x(2, 1, oslot[1]), lambda: dma_wq(2, 0, oslot[2]), lambda: dma_wq(2, 1, oslot[3])][s]
            pv(oslot[s], lambda qt, s=s: ax(qt, s), s == 0, after)
        a.nop(8)
        stamp()
        for qt in range(3):
            for pi in range(4):
                d = S + (qt*4+pi)*4
                for h2 in range(2):
                    x = Oreg(2*pi+h2, qt)
                    a.e(f'v_cvt_pk_bf16_f32 v{d+2*h2}, v{x}, v{x+1}'); a.e(f'v_cvt_pk_bf16_f32 v{d+2*h2+1}, v{x+2}, v{x+3}')
        r = SRD[u]['PT']
        for qt in range(3):
            a.e(f's_mov_b32 s{S_T2}, {qt*4096}')
            for pi in range(4):
                d = S + (qt*4+pi)*4
                a.vmop('ST', f'buffer_store_dwordx4 {vr(d, 4)}, v{V_ST}, s[{r}:{r+3}], s{S_T2} offen offset:{pi*1024}{cfg.st_flags}')

    loops = []
    stamp()
    dma_x(1, 0, 0); dma_x(1, 1, 1); dma_wq(1, 0, 2); dma_wq(1, 1, 3)
    unit(1)
    unit(2)
    a.wait_vm_all()
    if cfg.stamps or cfg.fine:
        stamp()
        a.e('s_load_dwordx2 s[96:97], s[0:1], 96'); a.e('s_waitcnt lgkmcnt(0)')
        a.e('s_add_u32 s96, s96, 0x4000000'); a.e('s_addc_u32 s97, s97, 0'); a.e('s_mov_b32 s98, 0x100000'); a.e('s_mov_b32 s99, 0x20000')
        a.e(f's_lshl_b32 s94, s2, 2'); a.e(f's_add_u32 s94, s94, s{S_W}'); a.e('s_lshl_b32 s94, s94, 7')
        a.e('v_mov_b32 v1, 0')
        for i in range(nst[0]):
            a.e(f'v_mov_b32 v2, s{4+i}')
            a.e(f'buffer_store_dword v2, v1, s[96:99], s94 offen offset:{4*i}')
            a.e('s_nop 1')
        a.e('s_waitcnt vmcnt(0)')
    a.label('L_k1_end')
    a.e('s_endpgm')
    rs0 = len(a.L)
    a.label('L_rescale')
    t = TMP
    for qt in range(3):
        allreduce(TMP+qt, 'v_max_f32')
    for qt in range(3):
        a.e(f'v_max_f32 v{t+qt}, s{S_FLOOR}, v{t+qt}')
    for qt in range(3):
        a.e(f'v_add_f32 v{M_(qt)}, v{M_(qt)}, v{t+qt}')
        a.e(f'v_max_f32 v{t+4+qt}, 0, v{t+qt}')
        a.e(f'v_sub_f32 v{t+4+qt}, 0, v{t+4+qt}')
    for qt in range(3):
        a.e(f'v_exp_f32 v{t+4+qt}, v{t+4+qt}')
    for kt in range(2):
        for qt in range(3):
            for r in range(4):
                x = Sreg(kt, qt) + r
                a.e(f'v_sub_f32 v{x}, v{x}, v{t+qt}')
    for qt in range(3):
        a.e(f'v_mul_f32 v{L_(qt)}, v{L_(qt)}, v{t+4+qt}')
    for tau in range(8):
        for qt in range(3):
            for r in range(4):
                x = Oreg(tau, qt) + r
                a.e(f'v_mul_f32 v{x}, v{x}, v{t+4+qt}')
    import struct as st_
    a.e(f's_mov_b32 s{S_THR}, {st_.unpack("<I", st_.pack("<f", cfg.thr))[0]:#x}'); a.e(f's_mov_b32 s{S_FLOOR}, 0')
    a.e(f's_setpc_b64 s[{S_RET}:{S_RET+1}]')
    rs1 = len(a.L)

    a.e(f'.globl {K2}'); a.e('.p2align 8'); a.e(f'.type {K2},@function'); a.label(K2)
    k2s = len(a.L)
    a.e('s_cmp_ge_u32 s2, 768'); a.e('s_cbranch_scc1 L_k2_end')
    a.e('s_load_dwordx2 s[4:5], s[0:1], 96'); a.e('s_load_dwordx2 s[6:7], s[0:1], 80')
    a.e('s_mul_hi_u32 s8, s2, 0x5555556')
    a.e('s_mul_i32 s9, s8, 48'); a.e('s_sub_u32 s9, s2, s9')
    a.e('s_mul_i32 s10, s9, 0x5556'); a.e('s_lshr_b32 s10, s10, 18')
    a.e('s_mul_i32 s11, s10, 12'); a.e('s_sub_u32 s11, s9, s11')
    a.e('s_lshr_b32 s12, s11, 2'); a.e('s_and_b32 s13, s11, 3')
    a.e('s_waitcnt lgkmcnt(0)')
    a.e('s_mul_i32 s14, s8, 1572864')
    a.e('s_add_u32 s16, s4, s14'); a.e('s_addc_u32 s17, s5, 0'); a.e('s_mov_b32 s18, 1572864'); a.e('s_mov_b32 s19, 0x20000')
    a.e('v_lshlrev_b32 v1, 4, v0'); a.e('s_lshl_b32 s15, s9, 10'); a.e('v_add_u32 v1, s15, v1')
    vm2 = []
    for h in range(32):
        a.e(f's_mov_b32 s20, {h*49152}')
        a.e(f'buffer_load_dwordx4 v[{16+4*h}:{19+4*h}], v1, s[16:19], s20 offen')
    a.e('s_and_b32 s21, s8, 7'); a.e('s_lshr_b32 s22, s8, 3')
    a.e('s_mul_i32 s21, s21, 48'); a.e('s_lshl_b32 s23, s12, 4'); a.e('s_add_u32 s21, s21, s23')
    a.e('v_and_b32 v2, 15, v0'); a.e('v_add_u32 v2, s21, v2'); a.e('v_lshlrev_b32 v2, 11, v2')
    a.e('v_lshrrev_b32 v3, 4, v0'); a.e('v_lshl_add_u32 v2, v3, 3, v2')
    a.e('s_lshl_b32 s24, s22, 10'); a.e('s_lshl_b32 s25, s10, 8'); a.e('s_add_u32 s24, s24, s25')
    a.e('s_add_u32 s25, s10, s13'); a.e('s_lshl_b32 s25, s25, 1')
    a.e('s_and_b32 s26, s25, 7'); a.e('s_lshl_b32 s26, s26, 5'); a.e('s_add_u32 s26, s26, s24')
    a.e('s_add_u32 s27, s25, 1'); a.e('s_and_b32 s27, s27, 7'); a.e('s_lshl_b32 s27, s27, 5'); a.e('s_add_u32 s27, s27, s24')
    a.e('s_mov_b32 s28, s6'); a.e('s_mov_b32 s29, s7'); a.e('s_mov_b32 s30, 786432'); a.e('s_mov_b32 s31, 0x20000')
    for i in range(8): a.e(f'v_mov_b32 v{4+i}, 0')
    for h in range(32):
        a.e(f's_waitcnt vmcnt({31-h})')
        for d in range(4):
            r = 16 + 4*h + d
            a.e(f'v_lshlrev_b32 v12, 16, v{r}'); a.e(f'v_and_b32 v13, 0xffff0000, v{r}')
            a.e(f'v_add_f32 v{4+2*d}, v{4+2*d}, v12'); a.e(f'v_add_f32 v{5+2*d}, v{5+2*d}, v13')
    a.e('v_cvt_pk_bf16_f32 v12, v4, v5'); a.e('v_cvt_pk_bf16_f32 v13, v6, v7')
    a.e('v_cvt_pk_bf16_f32 v14, v8, v9'); a.e('v_cvt_pk_bf16_f32 v15, v10, v11')
    a.e('buffer_store_dwordx2 v[12:13], v2, s[28:31], s26 offen')
    a.e('buffer_store_dwordx2 v[14:15], v2, s[28:31], s27 offen')
    a.e('s_waitcnt vmcnt(0)')
    a.label('L_k2_end'); a.e('s_endpgm')
    k2e = len(a.L)

    a.e('.section .rodata,"a"')
    for name, nv, acc, ns in ((K1, 352, 256, 102), (K2, 144, 144, 40)):
        a.e('.p2align 6'); a.e(f'.amdhsa_kernel {name}')
        a.e(f'  .amdhsa_next_free_vgpr {nv}'); a.e(f'  .amdhsa_next_free_sgpr {ns}'); a.e(f'  .amdhsa_accum_offset {acc}')
        a.e('  .amdhsa_group_segment_fixed_size 0'); a.e('  .amdhsa_kernarg_size 104'); a.e('  .amdhsa_user_sgpr_count 2')
        a.e('  .amdhsa_user_sgpr_kernarg_segment_ptr 1'); a.e('  .amdhsa_system_sgpr_workgroup_id_x 1')
        a.e('  .amdhsa_float_denorm_mode_32 3'); a.e('  .amdhsa_float_denorm_mode_16_64 3')
        a.e('.end_amdhsa_kernel')

    L = list(a.L)
    probs = check(L)
    for (s0, s1) in loops:
        probs += check(L[s0:s1] + L[s0:s1])
    return a.text(), probs

if __name__ == '__main__':
    cfg = Cfg()
    for kv in sys.argv[2:]:
        k, v = kv.split('='); setattr(cfg, k, eval(v))
    txt, probs = gen(cfg)
    for p in probs: print('HAZARD', p)
    out = sys.argv[1] if len(sys.argv) > 1 else 'v1.s'
    open(out, 'w').write(txt)
    print('written', out, len(txt))
```

```python
import sys
from asmlib import Asm, check

K1 = 'attn_main_kernel'
K2 = 'outreduce_kernel'

V_LANE = 0
V_T0 = 1
TRA = 16
KA = 24
DE, DO = 28, 29
ML = 30
def M_(qt): return ML + 2*qt
def L_(qt): return ML + 2*qt + 1
TMP = 36
S = 48
P = 72
KF = 84
VF = 116
O = 148
QE, QO, OE, OO = 244, 245, 246, 247
V_L16 = 248
V_XB = 249
V_ST = 250
def Oreg(tau, qt): return O + (tau*3 + qt)*4
def Sreg(kt, qt): return S + (kt*3 + qt)*4
AQ = 0
AX = 48
def aq(qt, s): r = AQ + (qt*4 + s)*4; return f'a[{r}:{r+3}]'
def ax(qt, s): r = AX + (qt*4 + s)*4; return f'a[{r}:{r+3}]'
def vr(b, n): return f'v[{b}:{b+n-1}]' if n > 1 else f'v{b}'

SRD = {1: dict(K=28, V=32, WQ=36, X=40, WO=44, PT=48), 2: dict(K=52, V=56, WQ=60, X=64, WO=68, PT=72)}
S_W = 76; S_LB = 77; S_OFF = 78; S_T = 79
S_CNT = 86; S_THR = 87; S_FLOOR = 88; S_C = 89; S_RET = 90
S_WQO = 92; S_XO = 93; S_T2 = 94
S_T3 = 95; S_STEP = 96; S_ROT = 97; S_HH = 26; S_W8 = 27; S_T4 = 98

AUX = 131072

class Cfg:
    order = 'BA'
    flK = {'A': '', 'B': ' nt'}
    flV = {'A': '', 'B': ''}
    rotA = True
    nt_w = False
    thr = 8.0
    st_flags = ''
    stamps = False
    fine = False

def gen(cfg=Cfg()):
    a = Asm()
    a.e(f'; @launch kernel={K1} grid=(256,1,1) block=(256,1,1) lds=163840')
    a.e(f'; @launch kernel={K2} grid=(768,1,1) block=(64,1,1) lds=0')
    a.e('.amdgcn_target "amdgcn-amd-amdhsa--gfx950"')
    a.e('.text')
    a.e(f'.globl {K1}'); a.e('.p2align 8'); a.e(f'.type {K1},@function'); a.label(K1)
    a.e('s_cmp_ge_u32 s2, 256'); a.e('s_cbranch_scc1 L_k1_end')
    a.e('s_load_dwordx16 s[4:19], s[0:1], 0')
    a.e('s_load_dwordx4 s[20:23], s[0:1], 64')
    a.e('s_load_dwordx2 s[24:25], s[0:1], 96')
    a.e(f'v_lshrrev_b32 v1, 6, v0')
    a.e(f'v_and_b32 v{V_LANE}, 63, v0')
    a.e(f'v_readfirstlane_b32 s{S_W}, v1')
    a.e(f'v_and_b32 v2, 15, v{V_LANE}'); a.e(f'v_lshrrev_b32 v3, 4, v{V_LANE}')
    a.e(f'v_lshlrev_b32 v{V_L16}, 4, v{V_LANE}')
    a.e(f's_lshl_b32 s{S_LB}, s{S_W}, 15')
    a.e('v_lshlrev_b32 v4, 1, v3'); a.e('v_xor_b32 v4, v2, v4'); a.e('v_lshlrev_b32 v4, 4, v4')
    a.e(f'v_lshl_add_u32 v{DE}, v3, 8, v4'); a.e(f'v_xor_b32 v{DO}, 0x80, v{DE}')
    a.e(f'v_lshl_add_u32 v{QE}, v3, 13, v4'); a.e(f'v_xor_b32 v{QO}, 0x80, v{QE}')
    a.e(f'v_lshl_add_u32 v{OE}, v3, 10, v4'); a.e(f'v_xor_b32 v{OO}, 0x80, v{OE}')
    a.e('v_and_b32 v5, 7, v2'); a.e('v_lshlrev_b32 v5, 1, v5')
    a.e('v_xor_b32 v6, v3, v5'); a.e('v_lshlrev_b32 v6, 4, v6')
    a.e('v_lshl_add_u32 v6, v2, 8, v6'); a.e(f'v_add_u32 v{KA}, s{S_LB}, v6')
    for s in range(1, 4): a.e(f'v_xor_b32 v{KA+s}, {s<<6}, v{KA}')
    a.e('v_lshrrev_b32 v6, 1, v3'); a.e('v_xor_b32 v6, v6, v5'); a.e('v_lshlrev_b32 v6, 4, v6')
    a.e('v_and_b32 v7, 1, v3'); a.e('v_lshl_add_u32 v6, v7, 3, v6')
    a.e('v_lshl_add_u32 v6, v2, 8, v6'); a.e(f'v_add_u32 v{V_XB}, s{S_LB}, v6')
    a.e('v_lshrrev_b32 v6, 2, v2'); a.e('v_lshl_add_u32 v6, v3, 2, v6')
    a.e('v_and_b32 v7, 7, v6'); a.e('v_lshlrev_b32 v7, 1, v7')
    a.e('v_bfe_u32 v8, v2, 1, 1'); a.e('v_xor_b32 v7, v8, v7'); a.e('v_lshlrev_b32 v7, 4, v7')
    a.e('v_and_b32 v8, 1, v2'); a.e('v_lshl_add_u32 v7, v8, 3, v7')
    a.e('v_lshl_add_u32 v7, v6, 8, v7'); a.e(f'v_add_u32 v7, s{S_LB}, v7')
    a.e(f's_lshl_b32 s{S_T}, s{S_W}, 1')
    for tau in range(8):
        a.e(f's_add_u32 s{S_T+1}, s{S_T}, {tau}'); a.e(f's_and_b32 s{S_T+1}, s{S_T+1}, 7'); a.e(f's_lshl_b32 s{S_T+1}, s{S_T+1}, 5')
        a.e(f'v_xor_b32 v{TRA+tau}, s{S_T+1}, v7')
    a.e(f's_mul_i32 s{S_T}, s{S_W}, 12288'); a.e(f'v_add_u32 v{V_ST}, s{S_T}, v{V_L16}')
    a.e(f's_lshl_b32 s{S_WQO}, s{S_W}, 20')
    a.e(f's_lshl_b32 s{S_XO}, s{S_W}, 8')
    a.e(f's_mov_b32 s{S_C}, 0x3e0293ee')
    import struct, math
    cbits = struct.unpack('<I', struct.pack('<f', math.log2(math.e) / math.sqrt(128.0)))[0]
    a.L[-1] = f's_mov_b32 s{S_C}, {cbits:#x}'
    a.e('s_and_b32 s79, s2, 7'); a.e('s_lshr_b32 s80, s2, 3'); a.e('s_lshr_b32 s81, s80, 2'); a.e('s_and_b32 s82, s80, 3')
    a.e('s_lshl_b32 s83, s79, 2'); a.e('s_add_u32 s83, s83, s82')
    a.e('s_lshl_b32 s84, s81, 3'); a.e('s_add_u32 s84, s84, s79')
    a.e('s_lshl_b32 s85, s81, 5'); a.e('s_add_u32 s85, s85, s83')
    a.e('s_waitcnt lgkmcnt(0)')
    br = {1: cfg.order[0], 2: cfg.order[1]}
    for u in (1, 2):
        R = SRD[u]
        isB = br[u] == 'B'
        PTR = dict(X=14, K=16, V=18, WQ=20, WO=22) if isB else dict(X=4, K=6, V=8, WQ=10, WO=12)
        kvi = 85 if isB else 84
        a.e(f's_lshl_b32 s97, s{kvi}, 19'); a.e(f's_lshr_b32 s98, s{kvi}, 13')
        for name in ('K', 'V'):
            r = R[name]; p = PTR[name]
            a.e(f's_add_u32 s{r}, s{p}, s97'); a.e(f's_addc_u32 s{r+1}, s{p+1}, s98')
            a.e(f's_mov_b32 s{r+2}, 0x80000'); a.e(f's_mov_b32 s{r+3}, 0x20000')
        r = R['X']; p = PTR['X']; a.e('s_mul_i32 s97, s81, 49152')
        a.e(f's_add_u32 s{r}, s{p}, s97'); a.e(f's_addc_u32 s{r+1}, s{p+1}, 0'); a.e(f's_mov_b32 s{r+2}, 49152'); a.e(f's_mov_b32 s{r+3}, 0x20000')
        r = R['WQ']; p = PTR['WQ']; a.e('s_lshl_b32 s97, s83, 8')
        a.e(f's_add_u32 s{r}, s{p}, s97'); a.e(f's_addc_u32 s{r+1}, s{p+1}, 0'); a.e(f's_sub_u32 s{r+2}, 0x400000, s97'); a.e(f's_mov_b32 s{r+3}, 0x20000')
        r = R['WO']; p = PTR['WO']; a.e('s_lshl_b32 s97, s83, 17')
        a.e(f's_add_u32 s{r}, s{p}, s97'); a.e(f's_addc_u32 s{r+1}, s{p+1}, 0'); a.e(f's_mov_b32 s{r+2}, 0x20000'); a.e(f's_mov_b32 s{r+3}, 0x20000')
        r = R['PT']; a.e(f's_add_u32 s96, s85, {256 if isB else 0}'); a.e('s_mul_i32 s97, s96, 49152'); a.e('s_mul_hi_u32 s98, s96, 49152')
        a.e(f's_add_u32 s{r}, s24, s97'); a.e(f's_addc_u32 s{r+1}, s25, s98'); a.e(f's_mov_b32 s{r+2}, 49152'); a.e(f's_mov_b32 s{r+3}, 0x20000')
    a.e(f's_mov_b32 s{S_HH}, s82')
    a.e(f's_lshl_b32 s{S_W8}, s{S_W}, 13')

    nst = [0]
    finon = [False]
    def fstamp():
        if not (cfg.fine and finon[0]): return
        a.e('s_memtime s[100:101]'); a.e('s_waitcnt lgkmcnt(0)'); a.e(f's_mov_b32 s{4+nst[0]}, s100'); nst[0] += 1
        assert nst[0] <= 20
    def stamp():
        if not cfg.stamps or cfg.fine: return
        a.e('s_memrealtime s[100:101]'); a.e('s_waitcnt lgkmcnt(0)'); a.e(f's_mov_b32 s{4+nst[0]}, s100'); nst[0] += 1
        assert nst[0] <= 20
    ntw = ' nt' if cfg.nt_w else ''
    pend = []
    def pump(n=1):
        for _ in range(n):
            if not pend: return
            tag, th = pend.pop(0); th()
    def flush(): pump(len(pend))
    def wait_vm(tag):
        while any(t == tag for t, _ in pend): pump()
        a.wait_vm(tag)

    def dma(tag, srd, slot, vE, vO, RS, sbase, const, npieces=8, flags='', pre=None):
        for p in range(npieces):
            def th(p=p):
                if p == 0 and pre: pre()
                if p % 4 == 0:
                    a.e(f's_add_u32 m0, s{S_LB}, {slot*8192 + (p//4)*4096}')
                off = const + p*4*RS - (p & 3)*1024
                if RS == 256:
                    if p % 4 == 0: a.e(f's_add_u32 s{S_T2}, s{sbase}, {off}')
                else:
                    a.e(f's_add_u32 s{S_T2}, s{sbase}, {off}')
                v = vE if p % 2 == 0 else vO
                a.vmop(tag, f'buffer_load_dwordx4 v{v}, s[{srd}:{srd+3}], s{S_T2} offen offset:{(p&3)*1024}{flags} lds')
            pend.append((tag, th))

    def dma_kv(tag, u, which, slot):
        pre = None
        if which == 'K':
            def pre():
                a.e(f's_add_u32 s{S_T4}, s{S_STEP}, s{S_ROT}'); a.e(f's_and_b32 s{S_T4}, s{S_T4}, 3')
                a.e(f's_and_b32 s{S_OFF}, s{S_STEP}, -4'); a.e(f's_or_b32 s{S_OFF}, s{S_OFF}, s{S_T4}')
                a.e(f's_lshl_b32 s{S_OFF}, s{S_OFF}, 15'); a.e(f's_add_u32 s{S_OFF}, s{S_OFF}, s{S_W8}')
                a.e(f's_add_u32 s{S_STEP}, s{S_STEP}, 1')
        fl = (cfg.flK if which == 'K' else cfg.flV)[br[u]]
        dma(tag, SRD[u][which], slot, DE, DO, 256, S_OFF, 0, flags=fl, pre=pre)
    def dma_x(u, part, slot):
        dma(f'X{part}', SRD[u]['X'], slot, OE, OO, 1024, S_XO, part*32*1024, npieces=8 if part == 0 else 4, flags=ntw)
    def dma_wq(u, j, slot):
        dma(f'W{j}', SRD[u]['WQ'], slot, QE, QO, 8192, S_WQO, j*32*8192, flags=ntw)
    def dma_wo(u, s, slot):
        dma(f'WO{s}', SRD[u]['WO'], slot, OE, OO, 1024, S_XO, s*32*1024, flags=ntw)

    def pv(slot, bfrag, first, after_reads):
        for tau in range(8):
            a.e(f'ds_read_b64_tr_b16 {vr(VF+4*tau, 2)}, v{TRA+tau} offset:{slot*8192}')
            a.e(f'ds_read_b64_tr_b16 {vr(VF+4*tau+2, 2)}, v{TRA+tau} offset:{slot*8192+4096}')
        a.e('s_waitcnt lgkmcnt(0)')
        fstamp()
        if after_reads: after_reads()
        fstamp()
        for tau in range(8):
            for qt in range(3):
                d = vr(Oreg(tau, qt), 4)
                a.e(f'v_mfma_f32_16x16x32_bf16 {d}, {vr(VF+4*tau, 4)}, {bfrag(qt)}, {"0" if first else d}')
            pump()
        fstamp()

    def qk(slot, after_reads):
        for s in range(4):
            for kt in range(2):
                a.e(f'ds_read_b128 {vr(KF+(s*2+kt)*4, 4)}, v{KA+s} offset:{slot*8192+kt*4096}')
        a.e('s_waitcnt lgkmcnt(0)')
        fstamp()
        if after_reads: after_reads()
        fstamp()
        for s in range(4):
            for kt in range(2):
                for qt in range(3):
                    d = vr(Sreg(kt, qt), 4)
                    a.e(f'v_mfma_f32_16x16x32_bf16 {d}, {vr(KF+(s*2+kt)*4, 4)}, {aq(qt, s)}, {"0" if s == 0 else d}')
            if s < 3: pump()
        fstamp()

    site = [0]
    def softmax():
        a.nop(3)
        for kt in range(2):
            for qt in range(3):
                for r in range(4):
                    x = Sreg(kt, qt) + r
                    a.e(f'v_fma_f32 v{x}, v{x}, s{S_C}, -v{M_(qt)}')
        pump()
        for qt in range(3):
            r0 = Sreg(0, qt); r1 = Sreg(1, qt)
            a.e(f'v_max3_f32 v{TMP+qt}, v{r0}, v{r0+1}, v{r0+2}')
        for qt in range(3):
            r0 = Sreg(0, qt); r1 = Sreg(1, qt)
            a.e(f'v_max3_f32 v{TMP+qt}, v{TMP+qt}, v{r0+3}, v{r1}')
        for qt in range(3):
            r1 = Sreg(1, qt)
            a.e(f'v_max3_f32 v{TMP+qt}, v{TMP+qt}, v{r1+1}, v{r1+2}')
        for qt in range(3):
            r1 = Sreg(1, qt)
            a.e(f'v_max_f32 v{TMP+qt}, v{TMP+qt}, v{r1+3}')
        a.e(f'v_max3_f32 v{TMP+3}, v{TMP}, v{TMP+1}, v{TMP+2}')
        a.e(f'v_cmp_lt_f32 vcc, s{S_THR}, v{TMP+3}')
        k = site[0]; site[0] += 1
        a.e(f's_cbranch_vccz L_fast{k}')
        a.e(f's_call_b64 s[{S_RET}:{S_RET+1}], L_rescale')
        a.label(f'L_fast{k}')
        for kt in range(2):
            for qt in range(3):
                for r in range(4):
                    x = Sreg(kt, qt) + r
                    a.e(f'v_exp_f32 v{x}, v{x}')
                if qt == 1: pump()
            pump() if kt == 0 else None
        for kt in range(2):
            for r in range(4):
                for qt in range(3):
                    a.e(f'v_add_f32 v{L_(qt)}, v{L_(qt)}, v{Sreg(kt, qt)+r}')
        pump()
        for qt in range(3):
            for kt in range(2):
                x = Sreg(kt, qt)
                a.e(f'v_cvt_pk_bf16_f32 v{P+qt*4+kt*2}, v{x}, v{x+1}')
                a.e(f'v_cvt_pk_bf16_f32 v{P+qt*4+kt*2+1}, v{x+2}, v{x+3}')

    def block(u, kslot, vslot, ktag, vtag, nextK, nextV):
        fstamp()
        wait_vm(ktag)
        fstamp()
        qk(kslot, nextK)
        softmax()
        fstamp()
        wait_vm(vtag)
        fstamp()
        pv(vslot, lambda qt: vr(P+qt*4, 4), False, nextV)

    def allreduce(reg, op):
        t = TMP + 10
        a.e(f'v_mov_b32 v{t}, v{reg}'); a.nop(2)
        a.e(f'v_permlane32_swap_b32 v{reg}, v{t}'); a.nop(1)
        a.e(f'{op} v{reg}, v{reg}, v{t}')
        a.e(f'v_mov_b32 v{t}, v{reg}'); a.nop(2)
        a.e(f'v_permlane16_swap_b32 v{reg}, v{t}'); a.nop(1)
        a.e(f'{op} v{reg}, v{reg}, v{t}')

    def exchange(kind, slotA, slotB, after_in):
        a.c(f'--- exchange {kind}')
        t = TMP
        for rho in (1, 2, 3):
            a.e(f's_add_u32 s{S_T}, s{S_W}, {rho}'); a.e(f's_and_b32 s{S_T}, s{S_T}, 3')
            if rho < 3:
                a.e(f's_lshl_b32 s{S_T}, s{S_T}, 15')
            else:
                a.e(f's_lshl_b32 s{S_T}, s{S_T}, 13'); a.e(f's_add_u32 s{S_T}, s{S_T}, {AUX}')
            a.e(f'v_add_u32 v{t+rho}, s{S_T}, v{V_L16}')
        for rho in (1, 2, 3):
            base = {1: slotA*8192, 2: slotB*8192, 3: 0}[rho]
            for i in range(6):
                a.e(f'ds_write_b128 v{t+rho}, {vr(O+24*rho+4*i, 4)} offset:{base+i*1024}')
        a.e(f'v_add_u32 v{t+4}, s{S_LB}, v{V_L16}')
        a.e(f's_lshl_b32 s{S_T}, s{S_W}, 13'); a.e(f's_add_u32 s{S_T}, s{S_T}, {AUX}')
        a.e(f'v_add_u32 v{t+5}, s{S_T}, v{V_L16}')
        a.e('s_waitcnt lgkmcnt(0)'); a.e('s_barrier')
        IN = S
        for rho in (1, 2, 3):
            for i in range(6):
                if rho < 3:
                    base = {1: slotA*8192, 2: slotB*8192}[rho]
                    a.e(f'ds_read_b128 {vr(IN+24*(rho-1)+4*i, 4)}, v{t+4} offset:{base+i*1024}')
                else:
                    a.e(f'ds_read_b128 {vr(IN+24*(rho-1)+4*i, 4)}, v{t+5} offset:{i*1024}')
        if kind == 'Q':
            a.e(f'v_lshrrev_b32 v{t+6}, 5, v{V_LANE}')
            a.e(f'v_lshlrev_b32 v{t+6}, 8, v{t+6}')
            a.e(f'v_and_b32 v{t+7}, 15, v{V_LANE}'); a.e(f'v_lshl_add_u32 v{t+6}, v{t+7}, 4, v{t+6}')
            a.e(f'v_bfe_u32 v{t+7}, v{V_LANE}, 4, 1'); a.e(f'v_lshl_add_u32 v{t+6}, v{t+7}, 3, v{t+6}')
            a.e(f'v_add_u32 v{t+6}, s{S_T}, v{t+6}')
            uoff = 512
        else:
            a.e(f'v_add_u32 v{t+6}, s{S_T}, v{V_L16}')
            uoff = 8
        a.e('s_waitcnt lgkmcnt(0)')
        if after_in: after_in()
        for i in range(24):
            a.e(f'v_add_f32 v{O+i}, v{O+i}, v{IN+i}')
            if i % 8 == 7: pump()
        for i in range(24):
            a.e(f'v_add_f32 v{IN+24+i}, v{IN+24+i}, v{IN+48+i}')
            if i % 8 == 7: pump()
        for i in range(24):
            a.e(f'v_add_f32 v{O+i}, v{O+i}, v{IN+24+i}')
            if i % 8 == 7: pump()
        for tau in range(2):
            for qt in range(3):
                x = Oreg(tau, qt); d = IN + (tau*3+qt)*2
                a.e(f'v_cvt_pk_bf16_f32 v{d}, v{x}, v{x+1}'); a.e(f'v_cvt_pk_bf16_f32 v{d+1}, v{x+2}, v{x+3}')
        for tau in range(2):
            for qt in range(3):
                d = IN + (tau*3+qt)*2
                a.e(f'ds_write_b64 v{t+6}, {vr(d, 2)} offset:{qt*1024 + tau*uoff}')
        a.e(f'v_add_u32 v{t+7}, {AUX}, v{V_L16}')
        pump(2)
        a.e('s_waitcnt lgkmcnt(0)'); a.e('s_barrier')
        for qt in range(3):
            for s in range(4):
                dst = aq(qt, s) if kind == 'Q' else ax(qt, s)
                a.e(f'ds_read_b128 {dst}, v{t+7} offset:{s*8192 + qt*1024}')
        pump(2)
        a.e('s_waitcnt lgkmcnt(0)')

    def unit(u):
        sg = 0 if u == 1 else 2
        sl = lambda n: (n + sg) & 3
        a.c(f'================ unit {u}')
        wait_vm('X1')
        for tq in range(8):
            a.e(f'v_xor_b32 v{TMP+tq}, {tq<<5}, v{V_XB}')
        for qt in range(3):
            for j in range(4):
                for uu in range(2):
                    r = AX + (qt*4 + j)*4 + uu*2
                    off = (sl(0)*8192 + qt*4096) if qt < 2 else sl(1)*8192
                    a.e(f'ds_read_b64 a[{r}:{r+1}], v{TMP+2*j+uu} offset:{off}')
        a.e('s_waitcnt lgkmcnt(0)')
        stamp()
        dma_wq(u, 2, sl(0)); dma_wq(u, 3, sl(1))
        flush()
        a.e(f's_mov_b32 s{S_STEP}, 0')
        if br[u] == 'A' and cfg.rotA: a.e(f's_mov_b32 s{S_ROT}, s{S_HH}')
        else: a.e(f's_mov_b32 s{S_ROT}, 0')
        wslot = [sl(2), sl(3), sl(0), sl(1)]
        for j in range(4):
            wait_vm(f'W{j}')
            after = None
            if j == 0: after = lambda: dma_kv('Ka', u, 'K', sl(2))
            if j == 1: after = lambda: dma_kv('Va', u, 'V', sl(3))
            pv(wslot[j], lambda qt, j=j: ax(qt, j), j == 0, after)
        a.nop(8)
        stamp()
        a.e('s_barrier')
        def after_in():
            dma_kv('Kb', u, 'K', sl(0)); dma_kv('Vb', u, 'V', sl(1))
        exchange('Q', sl(0), sl(1), after_in)
        stamp()
        for i in range(96):
            a.e(f'v_mov_b32 v{O+i}, 0')
            if i % 12 == 11: pump()
        flush()
        for qt in range(3):
            a.e(f'v_mov_b32 v{M_(qt)}, 0'); a.e(f'v_mov_b32 v{L_(qt)}, 0')
        a.e(f's_mov_b32 s{S_THR}, 0xff800000'); a.e(f's_mov_b32 s{S_FLOOR}, 0xff800000')
        assert a.vm[-32:] == ['Ka']*8 + ['Va']*8 + ['Kb']*8 + ['Vb']*8, a.vm
        a.e(f's_mov_b32 s{S_CNT}, 7')
        a.label(f'L_loop{u}')
        start = len(a.L)
        def nk(tag, slot): return lambda: dma_kv(tag, u, 'K', slot)
        def nv(tag, slot): return lambda: dma_kv(tag, u, 'V', slot)
        block(u, sl(2), sl(3), 'Ka', 'Va', nk('Ka', sl(2)), nv('Va', sl(3)))
        block(u, sl(0), sl(1), 'Kb', 'Vb', nk('Kb', sl(0)), nv('Vb', sl(1)))
        a.e(f's_sub_u32 s{S_CNT}, s{S_CNT}, 1'); a.e(f's_cmp_lg_u32 s{S_CNT}, 0'); a.e(f's_cbranch_scc1 L_loop{u}')
        assert not pend
        assert a.vm[-32:] == ['Ka']*8 + ['Va']*8 + ['Kb']*8 + ['Vb']*8, a.vm
        loops.append((start, len(a.L)))
        stamp()
        if u == 1: finon[0] = True
        block(u, sl(2), sl(3), 'Ka', 'Va', lambda: dma_wo(u, 0, sl(2)), lambda: dma_wo(u, 1, sl(3)))
        block(u, sl(0), sl(1), 'Kb', 'Vb', None, None)
        finon[0] = False
        stamp()
        a.c('--- stats')
        for qt in range(3): allreduce(L_(qt), 'v_add_f32')
        t = TMP
        a.e(f'v_and_b32 v{t}, 15, v{V_LANE}'); a.e(f'v_lshlrev_b32 v{t}, 3, v{t}')
        a.e(f'v_add_u32 v{t}, {AUX+6144}, v{t}')
        a.e(f's_lshl_b32 s{S_T}, s{S_W}, 13'); a.e(f'v_add_u32 v{t+1}, s{S_T}, v{t}')
        for qt in range(3):
            a.e(f'ds_write_b64 v{t+1}, {vr(M_(qt), 2)} offset:{qt*128}')
        a.e('s_waitcnt lgkmcnt(0)'); a.e('s_barrier')
        ST = S
        for qt in range(3):
            for w2 in range(4):
                a.e(f'ds_read_b64 {vr(ST+(qt*4+w2)*2, 2)}, v{t} offset:{w2*8192+qt*128}')
        a.e('s_waitcnt lgkmcnt(0)')
        for qt in range(3):
            m = lambda w2: ST + (qt*4+w2)*2
            mm = t + 2 + qt
            a.e(f'v_max3_f32 v{mm}, v{m(0)}, v{m(1)}, v{m(2)}'); a.e(f'v_max_f32 v{mm}, v{mm}, v{m(3)}')
            for w2 in range(4):
                a.e(f'v_sub_f32 v{m(w2)}, v{m(w2)}, v{mm}')
            a.e(f'v_sub_f32 v{M_(qt)}, v{M_(qt)}, v{mm}')
            for w2 in range(4):
                a.e(f'v_exp_f32 v{m(w2)}, v{m(w2)}')
            a.e(f'v_exp_f32 v{M_(qt)}, v{M_(qt)}')
            a.e(f'v_mul_f32 v{t+5}, v{m(0)}, v{m(0)+1}')
            for w2 in range(1, 4):
                a.e(f'v_fma_f32 v{t+5}, v{m(w2)}, v{m(w2)+1}, v{t+5}')
            a.e(f'v_rcp_f32 v{t+5}, v{t+5}'); a.nop(1)
            a.e(f'v_mul_f32 v{L_(qt)}, v{M_(qt)}, v{t+5}')
        for tau in range(8):
            for qt in range(3):
                for r in range(4):
                    x = Oreg(tau, qt) + r
                    a.e(f'v_mul_f32 v{x}, v{x}, v{L_(qt)}')
        def after_in2():
            dma_wo(u, 2, sl(0)); dma_wo(u, 3, sl(1))
        exchange('O', sl(0), sl(1), after_in2)
        stamp()
        oslot = [sl(2), sl(3), sl(0), sl(1)]
        for s in range(4):
            wait_vm(f'WO{s}')
            after = None
            if u == 1:
                after = [lambda: dma_x(2, 0, oslot[0]), lambda: dma_x(2, 1, oslot[1]), lambda: dma_wq(2, 0, oslot[2]), lambda: dma_wq(2, 1, oslot[3])][s]
            pv(oslot[s], lambda qt, s=s: ax(qt, s), s == 0, after)
        a.nop(8)
        stamp()
        for qt in range(3):
            for pi in range(4):
                d = S + (qt*4+pi)*4
                for h2 in range(2):
                    x = Oreg(2*pi+h2, qt)
                    a.e(f'v_cvt_pk_bf16_f32 v{d+2*h2}, v{x}, v{x+1}'); a.e(f'v_cvt_pk_bf16_f32 v{d+2*h2+1}, v{x+2}, v{x+3}')
        r = SRD[u]['PT']
        for qt in range(3):
            a.e(f's_mov_b32 s{S_T3}, {qt*4096}')
            for pi in range(4):
                d = S + (qt*4+pi)*4
                a.vmop('ST', f'buffer_store_dwordx4 {vr(d, 4)}, v{V_ST}, s[{r}:{r+3}], s{S_T3} offen offset:{pi*1024}{cfg.st_flags}')
            pump()

    loops = []
    stamp()
    dma_x(1, 0, 0); dma_x(1, 1, 1); dma_wq(1, 0, 2); dma_wq(1, 1, 3); flush()
    unit(1)
    unit(2)
    a.wait_vm_all()
    if cfg.stamps or cfg.fine:
        stamp()
        a.e('s_load_dwordx2 s[96:97], s[0:1], 96'); a.e('s_waitcnt lgkmcnt(0)')
        a.e('s_add_u32 s96, s96, 0x4000000'); a.e('s_addc_u32 s97, s97, 0'); a.e('s_mov_b32 s98, 0x100000'); a.e('s_mov_b32 s99, 0x20000')
        a.e(f's_lshl_b32 s94, s2, 2'); a.e(f's_add_u32 s94, s94, s{S_W}'); a.e('s_lshl_b32 s94, s94, 7')
        a.e('v_mov_b32 v1, 0')
        for i in range(nst[0]):
            a.e(f'v_mov_b32 v2, s{4+i}')
            a.e(f'buffer_store_dword v2, v1, s[96:99], s94 offen offset:{4*i}')
            a.e('s_nop 1')
        a.e('s_waitcnt vmcnt(0)')
    a.label('L_k1_end')
    a.e('s_endpgm')
    rs0 = len(a.L)
    a.label('L_rescale')
    t = TMP
    for qt in range(3):
        allreduce(TMP+qt, 'v_max_f32')
    for qt in range(3):
        a.e(f'v_max_f32 v{t+qt}, s{S_FLOOR}, v{t+qt}')
    for qt in range(3):
        a.e(f'v_add_f32 v{M_(qt)}, v{M_(qt)}, v{t+qt}')
        a.e(f'v_max_f32 v{t+4+qt}, 0, v{t+qt}')
        a.e(f'v_sub_f32 v{t+4+qt}, 0, v{t+4+qt}')
    for qt in range(3):
        a.e(f'v_exp_f32 v{t+4+qt}, v{t+4+qt}')
    for kt in range(2):
        for qt in range(3):
            for r in range(4):
                x = Sreg(kt, qt) + r
                a.e(f'v_sub_f32 v{x}, v{x}, v{t+qt}')
    for qt in range(3):
        a.e(f'v_mul_f32 v{L_(qt)}, v{L_(qt)}, v{t+4+qt}')
    for tau in range(8):
        for qt in range(3):
            for r in range(4):
                x = Oreg(tau, qt) + r
                a.e(f'v_mul_f32 v{x}, v{x}, v{t+4+qt}')
    import struct as st_
    a.e(f's_mov_b32 s{S_THR}, {st_.unpack("<I", st_.pack("<f", cfg.thr))[0]:#x}'); a.e(f's_mov_b32 s{S_FLOOR}, 0')
    a.e(f's_setpc_b64 s[{S_RET}:{S_RET+1}]')
    rs1 = len(a.L)

    a.e(f'.globl {K2}'); a.e('.p2align 8'); a.e(f'.type {K2},@function'); a.label(K2)
    k2s = len(a.L)
    a.e('s_cmp_ge_u32 s2, 768'); a.e('s_cbranch_scc1 L_k2_end')
    if cfg.stamps: a.e('s_memrealtime s[32:33]')
    a.e('s_load_dwordx2 s[4:5], s[0:1], 96'); a.e('s_load_dwordx2 s[6:7], s[0:1], 80')
    a.e('s_mul_hi_u32 s8, s2, 0x5555556')
    a.e('s_mul_i32 s9, s8, 48'); a.e('s_sub_u32 s9, s2, s9')
    a.e('s_mul_i32 s10, s9, 0x5556'); a.e('s_lshr_b32 s10, s10, 18')
    a.e('s_mul_i32 s11, s10, 12'); a.e('s_sub_u32 s11, s9, s11')
    a.e('s_lshr_b32 s12, s11, 2'); a.e('s_and_b32 s13, s11, 3')
    a.e('s_waitcnt lgkmcnt(0)')
    a.e('s_mul_i32 s14, s8, 1572864')
    a.e('s_add_u32 s16, s4, s14'); a.e('s_addc_u32 s17, s5, 0'); a.e('s_mov_b32 s18, 1572864'); a.e('s_mov_b32 s19, 0x20000')
    a.e('v_lshlrev_b32 v1, 4, v0'); a.e('s_lshl_b32 s15, s9, 10'); a.e('v_add_u32 v1, s15, v1')
    vm2 = []
    for h in range(32):
        a.e(f's_mov_b32 s20, {h*49152}')
        a.e(f'buffer_load_dwordx4 v[{16+4*h}:{19+4*h}], v1, s[16:19], s20 offen')
    a.e('s_and_b32 s21, s8, 7'); a.e('s_lshr_b32 s22, s8, 3')
    a.e('s_mul_i32 s21, s21, 48'); a.e('s_lshl_b32 s23, s12, 4'); a.e('s_add_u32 s21, s21, s23')
    a.e('v_and_b32 v2, 15, v0'); a.e('v_add_u32 v2, s21, v2'); a.e('v_lshlrev_b32 v2, 11, v2')
    a.e('v_lshrrev_b32 v3, 4, v0'); a.e('v_lshl_add_u32 v2, v3, 3, v2')
    a.e('s_lshl_b32 s24, s22, 10'); a.e('s_lshl_b32 s25, s10, 8'); a.e('s_add_u32 s24, s24, s25')
    a.e('s_add_u32 s25, s10, s13'); a.e('s_lshl_b32 s25, s25, 1')
    a.e('s_and_b32 s26, s25, 7'); a.e('s_lshl_b32 s26, s26, 5'); a.e('s_add_u32 s26, s26, s24')
    a.e('s_add_u32 s27, s25, 1'); a.e('s_and_b32 s27, s27, 7'); a.e('s_lshl_b32 s27, s27, 5'); a.e('s_add_u32 s27, s27, s24')
    a.e('s_mov_b32 s28, s6'); a.e('s_mov_b32 s29, s7'); a.e('s_mov_b32 s30, 786432'); a.e('s_mov_b32 s31, 0x20000')
    for i in range(8): a.e(f'v_mov_b32 v{4+i}, 0')
    for h in range(32):
        a.e(f's_waitcnt vmcnt({31-h})')
        for d in range(4):
            r = 16 + 4*h + d
            a.e(f'v_lshlrev_b32 v12, 16, v{r}'); a.e(f'v_and_b32 v13, 0xffff0000, v{r}')
            a.e(f'v_add_f32 v{4+2*d}, v{4+2*d}, v12'); a.e(f'v_add_f32 v{5+2*d}, v{5+2*d}, v13')
    a.e('v_cvt_pk_bf16_f32 v12, v4, v5'); a.e('v_cvt_pk_bf16_f32 v13, v6, v7')
    a.e('v_cvt_pk_bf16_f32 v14, v8, v9'); a.e('v_cvt_pk_bf16_f32 v15, v10, v11')
    a.e('buffer_store_dwordx2 v[12:13], v2, s[28:31], s26 offen')
    a.e('buffer_store_dwordx2 v[14:15], v2, s[28:31], s27 offen')
    a.e('s_waitcnt vmcnt(0)')
    if cfg.stamps:
        a.e('s_memrealtime s[34:35]'); a.e('s_waitcnt lgkmcnt(0)')
        a.e('s_add_u32 s36, s4, 0x4100000'); a.e('s_addc_u32 s37, s5, 0'); a.e('s_mov_b32 s38, 0x10000'); a.e('s_mov_b32 s39, 0x20000')
        a.e('s_lshl_b32 s33, s2, 3'); a.e('v_mov_b32 v1, 0'); a.e('v_mov_b32 v2, s32'); a.e('v_mov_b32 v3, s34')
        a.e('buffer_store_dwordx2 v[2:3], v1, s[36:39], s33 offen'); a.e('s_waitcnt vmcnt(0)')
    a.label('L_k2_end'); a.e('s_endpgm')
    k2e = len(a.L)

    a.e('.section .rodata,"a"')
    for name, nv, acc, ns in ((K1, 352, 256, 102), (K2, 144, 144, 48)):
        a.e('.p2align 6'); a.e(f'.amdhsa_kernel {name}')
        a.e(f'  .amdhsa_next_free_vgpr {nv}'); a.e(f'  .amdhsa_next_free_sgpr {ns}'); a.e(f'  .amdhsa_accum_offset {acc}')
        a.e('  .amdhsa_group_segment_fixed_size 0'); a.e('  .amdhsa_kernarg_size 104'); a.e('  .amdhsa_user_sgpr_count 2')
        a.e('  .amdhsa_user_sgpr_kernarg_segment_ptr 1'); a.e('  .amdhsa_system_sgpr_workgroup_id_x 1')
        a.e('  .amdhsa_float_denorm_mode_32 3'); a.e('  .amdhsa_float_denorm_mode_16_64 3')
        a.e('.end_amdhsa_kernel')

    L = list(a.L)
    probs = check(L)
    for (s0, s1) in loops:
        probs += check(L[s0:s1] + L[s0:s1])
    return a.text(), probs

if __name__ == '__main__':
    cfg = Cfg()
    for kv in sys.argv[2:]:
        k, v = kv.split('='); setattr(cfg, k, eval(v))
    txt, probs = gen(cfg)
    for p in probs: print('HAZARD', p)
    out = sys.argv[1] if len(sys.argv) > 1 else 'v1.s'
    open(out, 'w').write(txt)
    print('written', out, len(txt))
```

```python
import sys
from asmlib import Asm, check

K1 = 'attn_main_kernel'
K2 = 'outreduce_kernel'

V_LANE = 0
V_T0 = 1
TRA = 16
KA = 24
DE, DO = 28, 29
ML = 30
def M_(qt): return ML + 2*qt
def L_(qt): return ML + 2*qt + 1
TMP = 36
S = 48
P = 72
KF = 84
VF = 116
O = 148
QE, QO, OE, OO = 244, 245, 246, 247
V_L16 = 248
V_XB = 249
V_ST = 250
def Oreg(tau, qt): return O + (tau*3 + qt)*4
def Sreg(kt, qt): return S + (kt*3 + qt)*4
AQ = 0
AX = 48
def aq(qt, s): r = AQ + (qt*4 + s)*4; return f'a[{r}:{r+3}]'
def ax(qt, s): r = AX + (qt*4 + s)*4; return f'a[{r}:{r+3}]'
def vr(b, n): return f'v[{b}:{b+n-1}]' if n > 1 else f'v{b}'

SRD = {1: dict(K=28, V=32, WQ=36, X=40, WO=44, PT=48), 2: dict(K=52, V=56, WQ=60, X=64, WO=68, PT=72)}
S_W = 76; S_LB = 77; S_OFF = 78; S_T = 79
S_CNT = 86; S_THR = 87; S_FLOOR = 88; S_C = 89; S_RET = 90
S_WQO = 92; S_XO = 93; S_T2 = 94
S_T3 = 95; S_STEP = 96; S_ROT = 97; S_HH = 26; S_W8 = 27; S_T4 = 98

AUX = 131072

class Cfg:
    order = 'BA'
    flK = {'A': '', 'B': ' nt'}
    flV = {'A': '', 'B': ''}
    rotA = True
    nt_w = False
    thr = 8.0
    st_flags = ''
    stamps = False
    dbgtime = False
    k2report = False
    extra_k = 0
    fine = False

def gen(cfg=Cfg()):
    a = Asm()
    a.e(f'; @launch kernel={K1} grid=(256,1,1) block=(256,1,1) lds=163840')
    a.e(f'; @launch kernel={K2} grid=(768,1,1) block=(64,1,1) lds=0')
    for i in range(cfg.extra_k): a.e('; @launch kernel=empty_kernel grid=(1,1,1) block=(64,1,1) lds=0')
    a.e('.amdgcn_target "amdgcn-amd-amdhsa--gfx950"')
    a.e('.text')
    a.e(f'.globl {K1}'); a.e('.p2align 8'); a.e(f'.type {K1},@function'); a.label(K1)
    a.e('s_cmp_ge_u32 s2, 256'); a.e('s_cbranch_scc1 L_k1_end')
    if cfg.dbgtime: a.e('s_memrealtime s[100:101]'); a.e('s_waitcnt lgkmcnt(0)'); a.e('s_mov_b32 s99, s100')
    a.e('s_load_dwordx16 s[4:19], s[0:1], 0')
    a.e('s_load_dwordx4 s[20:23], s[0:1], 64')
    a.e('s_load_dwordx2 s[24:25], s[0:1], 96')
    a.e(f'v_lshrrev_b32 v1, 6, v0')
    a.e(f'v_and_b32 v{V_LANE}, 63, v0')
    a.e(f'v_readfirstlane_b32 s{S_W}, v1')
    a.e(f'v_and_b32 v2, 15, v{V_LANE}'); a.e(f'v_lshrrev_b32 v3, 4, v{V_LANE}')
    a.e(f'v_lshlrev_b32 v{V_L16}, 4, v{V_LANE}')
    a.e(f's_lshl_b32 s{S_LB}, s{S_W}, 15')
    a.e('v_lshlrev_b32 v4, 1, v3'); a.e('v_xor_b32 v4, v2, v4'); a.e('v_lshlrev_b32 v4, 4, v4')
    a.e(f'v_lshl_add_u32 v{DE}, v3, 8, v4'); a.e(f'v_xor_b32 v{DO}, 0x80, v{DE}')
    a.e(f'v_lshl_add_u32 v{QE}, v3, 13, v4'); a.e(f'v_xor_b32 v{QO}, 0x80, v{QE}')
    a.e(f'v_lshl_add_u32 v{OE}, v3, 10, v4'); a.e(f'v_xor_b32 v{OO}, 0x80, v{OE}')
    a.e('v_and_b32 v5, 7, v2'); a.e('v_lshlrev_b32 v5, 1, v5')
    a.e('v_xor_b32 v6, v3, v5'); a.e('v_lshlrev_b32 v6, 4, v6')
    a.e('v_lshl_add_u32 v6, v2, 8, v6'); a.e(f'v_add_u32 v{KA}, s{S_LB}, v6')
    for s in range(1, 4): a.e(f'v_xor_b32 v{KA+s}, {s<<6}, v{KA}')
    a.e('v_lshrrev_b32 v6, 1, v3'); a.e('v_xor_b32 v6, v6, v5'); a.e('v_lshlrev_b32 v6, 4, v6')
    a.e('v_and_b32 v7, 1, v3'); a.e('v_lshl_add_u32 v6, v7, 3, v6')
    a.e('v_lshl_add_u32 v6, v2, 8, v6'); a.e(f'v_add_u32 v{V_XB}, s{S_LB}, v6')
    a.e('v_lshrrev_b32 v6, 2, v2'); a.e('v_lshl_add_u32 v6, v3, 2, v6')
    a.e('v_and_b32 v7, 7, v6'); a.e('v_lshlrev_b32 v7, 1, v7')
    a.e('v_bfe_u32 v8, v2, 1, 1'); a.e('v_xor_b32 v7, v8, v7'); a.e('v_lshlrev_b32 v7, 4, v7')
    a.e('v_and_b32 v8, 1, v2'); a.e('v_lshl_add_u32 v7, v8, 3, v7')
    a.e('v_lshl_add_u32 v7, v6, 8, v7'); a.e(f'v_add_u32 v7, s{S_LB}, v7')
    a.e(f's_lshl_b32 s{S_T}, s{S_W}, 1')
    for tau in range(8):
        a.e(f's_add_u32 s{S_T+1}, s{S_T}, {tau}'); a.e(f's_and_b32 s{S_T+1}, s{S_T+1}, 7'); a.e(f's_lshl_b32 s{S_T+1}, s{S_T+1}, 5')
        a.e(f'v_xor_b32 v{TRA+tau}, s{S_T+1}, v7')
    a.e(f's_mul_i32 s{S_T}, s{S_W}, 12288'); a.e(f'v_add_u32 v{V_ST}, s{S_T}, v{V_L16}')
    a.e(f's_lshl_b32 s{S_WQO}, s{S_W}, 20')
    a.e(f's_lshl_b32 s{S_XO}, s{S_W}, 8')
    a.e(f's_mov_b32 s{S_C}, 0x3e0293ee')
    import struct, math
    cbits = struct.unpack('<I', struct.pack('<f', math.log2(math.e) / math.sqrt(128.0)))[0]
    a.L[-1] = f's_mov_b32 s{S_C}, {cbits:#x}'
    a.e('s_and_b32 s79, s2, 7'); a.e('s_lshr_b32 s80, s2, 3'); a.e('s_lshr_b32 s81, s80, 2'); a.e('s_and_b32 s82, s80, 3')
    a.e('s_lshl_b32 s83, s79, 2'); a.e('s_add_u32 s83, s83, s82')
    a.e('s_lshl_b32 s84, s81, 3'); a.e('s_add_u32 s84, s84, s79')
    a.e('s_lshl_b32 s85, s81, 5'); a.e('s_add_u32 s85, s85, s83')
    a.e('s_waitcnt lgkmcnt(0)')
    br = {1: cfg.order[0], 2: cfg.order[1]}
    for u in (1, 2):
        R = SRD[u]
        isB = br[u] == 'B'
        PTR = dict(X=14, K=16, V=18, WQ=20, WO=22) if isB else dict(X=4, K=6, V=8, WQ=10, WO=12)
        kvi = 85 if isB else 84
        a.e(f's_lshl_b32 s97, s{kvi}, 19'); a.e(f's_lshr_b32 s98, s{kvi}, 13')
        for name in ('K', 'V'):
            r = R[name]; p = PTR[name]
            a.e(f's_add_u32 s{r}, s{p}, s97'); a.e(f's_addc_u32 s{r+1}, s{p+1}, s98')
            a.e(f's_mov_b32 s{r+2}, 0x80000'); a.e(f's_mov_b32 s{r+3}, 0x20000')
        r = R['X']; p = PTR['X']; a.e('s_mul_i32 s97, s81, 49152')
        a.e(f's_add_u32 s{r}, s{p}, s97'); a.e(f's_addc_u32 s{r+1}, s{p+1}, 0'); a.e(f's_mov_b32 s{r+2}, 49152'); a.e(f's_mov_b32 s{r+3}, 0x20000')
        r = R['WQ']; p = PTR['WQ']; a.e('s_lshl_b32 s97, s83, 8')
        a.e(f's_add_u32 s{r}, s{p}, s97'); a.e(f's_addc_u32 s{r+1}, s{p+1}, 0'); a.e(f's_sub_u32 s{r+2}, 0x400000, s97'); a.e(f's_mov_b32 s{r+3}, 0x20000')
        r = R['WO']; p = PTR['WO']; a.e('s_lshl_b32 s97, s83, 17')
        a.e(f's_add_u32 s{r}, s{p}, s97'); a.e(f's_addc_u32 s{r+1}, s{p+1}, 0'); a.e(f's_mov_b32 s{r+2}, 0x20000'); a.e(f's_mov_b32 s{r+3}, 0x20000')
        r = R['PT']; a.e(f's_add_u32 s96, s85, {256 if isB else 0}'); a.e('s_mul_i32 s97, s96, 49152'); a.e('s_mul_hi_u32 s98, s96, 49152')
        a.e(f's_add_u32 s{r}, s24, s97'); a.e(f's_addc_u32 s{r+1}, s25, s98'); a.e(f's_mov_b32 s{r+2}, 49152'); a.e(f's_mov_b32 s{r+3}, 0x20000')
    a.e(f's_mov_b32 s{S_HH}, s82')
    a.e(f's_lshl_b32 s{S_W8}, s{S_W}, 13')

    nst = [0]
    finon = [False]
    def fstamp():
        if not (cfg.fine and finon[0]): return
        a.e('s_memtime s[100:101]'); a.e('s_waitcnt lgkmcnt(0)'); a.e(f's_mov_b32 s{4+nst[0]}, s100'); nst[0] += 1
        assert nst[0] <= 20
    def stamp():
        if not cfg.stamps or cfg.fine: return
        a.e('s_memrealtime s[100:101]'); a.e('s_waitcnt lgkmcnt(0)'); a.e(f's_mov_b32 s{4+nst[0]}, s100'); nst[0] += 1
        assert nst[0] <= 20
    ntw = ' nt' if cfg.nt_w else ''
    pend = []
    def pump(n=1):
        for _ in range(n):
            if not pend: return
            tag, th = pend.pop(0); th()
    def flush(): pump(len(pend))
    def wait_vm(tag):
        while any(t == tag for t, _ in pend): pump()
        a.wait_vm(tag)

    def dma(tag, srd, slot, vE, vO, RS, sbase, const, npieces=8, flags='', pre=None):
        for p in range(npieces):
            def th(p=p):
                if p == 0 and pre: pre()
                if p % 4 == 0:
                    a.e(f's_add_u32 m0, s{S_LB}, {slot*8192 + (p//4)*4096}')
                off = const + p*4*RS - (p & 3)*1024
                if RS == 256:
                    if p % 4 == 0: a.e(f's_add_u32 s{S_T2}, s{sbase}, {off}')
                else:
                    a.e(f's_add_u32 s{S_T2}, s{sbase}, {off}')
                v = vE if p % 2 == 0 else vO
                a.vmop(tag, f'buffer_load_dwordx4 v{v}, s[{srd}:{srd+3}], s{S_T2} offen offset:{(p&3)*1024}{flags} lds')
            pend.append((tag, th))

    def dma_kv(tag, u, which, slot):
        pre = None
        if which == 'K':
            def pre():
                a.e(f's_add_u32 s{S_T4}, s{S_STEP}, s{S_ROT}'); a.e(f's_and_b32 s{S_T4}, s{S_T4}, 3')
                a.e(f's_and_b32 s{S_OFF}, s{S_STEP}, -4'); a.e(f's_or_b32 s{S_OFF}, s{S_OFF}, s{S_T4}')
                a.e(f's_lshl_b32 s{S_OFF}, s{S_OFF}, 15'); a.e(f's_add_u32 s{S_OFF}, s{S_OFF}, s{S_W8}')
                a.e(f's_add_u32 s{S_STEP}, s{S_STEP}, 1')
        fl = (cfg.flK if which == 'K' else cfg.flV)[br[u]]
        dma(tag, SRD[u][which], slot, DE, DO, 256, S_OFF, 0, flags=fl, pre=pre)
    def dma_x(u, part, slot):
        dma(f'X{part}', SRD[u]['X'], slot, OE, OO, 1024, S_XO, part*32*1024, npieces=8 if part == 0 else 4, flags=ntw)
    def dma_wq(u, j, slot):
        dma(f'W{j}', SRD[u]['WQ'], slot, QE, QO, 8192, S_WQO, j*32*8192, flags=ntw)
    def dma_wo(u, s, slot):
        dma(f'WO{s}', SRD[u]['WO'], slot, OE, OO, 1024, S_XO, s*32*1024, flags=ntw)

    def pv(slot, bfrag, first, after_reads):
        for tau in range(8):
            a.e(f'ds_read_b64_tr_b16 {vr(VF+4*tau, 2)}, v{TRA+tau} offset:{slot*8192}')
            a.e(f'ds_read_b64_tr_b16 {vr(VF+4*tau+2, 2)}, v{TRA+tau} offset:{slot*8192+4096}')
        a.e('s_waitcnt lgkmcnt(0)')
        fstamp()
        if after_reads: after_reads()
        fstamp()
        for tau in range(8):
            for qt in range(3):
                d = vr(Oreg(tau, qt), 4)
                a.e(f'v_mfma_f32_16x16x32_bf16 {d}, {vr(VF+4*tau, 4)}, {bfrag(qt)}, {"0" if first else d}')
            pump()
        fstamp()

    def qk(slot, after_reads):
        for s in range(4):
            for kt in range(2):
                a.e(f'ds_read_b128 {vr(KF+(s*2+kt)*4, 4)}, v{KA+s} offset:{slot*8192+kt*4096}')
        a.e('s_waitcnt lgkmcnt(0)')
        fstamp()
        if after_reads: after_reads()
        fstamp()
        for s in range(4):
            for kt in range(2):
                for qt in range(3):
                    d = vr(Sreg(kt, qt), 4)
                    a.e(f'v_mfma_f32_16x16x32_bf16 {d}, {vr(KF+(s*2+kt)*4, 4)}, {aq(qt, s)}, {"0" if s == 0 else d}')
            if s < 3: pump()
        fstamp()

    site = [0]
    def softmax():
        a.nop(3)
        for kt in range(2):
            for qt in range(3):
                for r in range(4):
                    x = Sreg(kt, qt) + r
                    a.e(f'v_fma_f32 v{x}, v{x}, s{S_C}, -v{M_(qt)}')
        pump()
        for qt in range(3):
            r0 = Sreg(0, qt); r1 = Sreg(1, qt)
            a.e(f'v_max3_f32 v{TMP+qt}, v{r0}, v{r0+1}, v{r0+2}')
        for qt in range(3):
            r0 = Sreg(0, qt); r1 = Sreg(1, qt)
            a.e(f'v_max3_f32 v{TMP+qt}, v{TMP+qt}, v{r0+3}, v{r1}')
        for qt in range(3):
            r1 = Sreg(1, qt)
            a.e(f'v_max3_f32 v{TMP+qt}, v{TMP+qt}, v{r1+1}, v{r1+2}')
        for qt in range(3):
            r1 = Sreg(1, qt)
            a.e(f'v_max_f32 v{TMP+qt}, v{TMP+qt}, v{r1+3}')
        a.e(f'v_max3_f32 v{TMP+3}, v{TMP}, v{TMP+1}, v{TMP+2}')
        a.e(f'v_cmp_lt_f32 vcc, s{S_THR}, v{TMP+3}')
        k = site[0]; site[0] += 1
        a.e(f's_cbranch_vccz L_fast{k}')
        a.e(f's_call_b64 s[{S_RET}:{S_RET+1}], L_rescale')
        a.label(f'L_fast{k}')
        for kt in range(2):
            for qt in range(3):
                for r in range(4):
                    x = Sreg(kt, qt) + r
                    a.e(f'v_exp_f32 v{x}, v{x}')
                if qt == 1: pump()
            pump() if kt == 0 else None
        for kt in range(2):
            for r in range(4):
                for qt in range(3):
                    a.e(f'v_add_f32 v{L_(qt)}, v{L_(qt)}, v{Sreg(kt, qt)+r}')
        pump()
        for qt in range(3):
            for kt in range(2):
                x = Sreg(kt, qt)
                a.e(f'v_cvt_pk_bf16_f32 v{P+qt*4+kt*2}, v{x}, v{x+1}')
                a.e(f'v_cvt_pk_bf16_f32 v{P+qt*4+kt*2+1}, v{x+2}, v{x+3}')

    def block(u, kslot, vslot, ktag, vtag, nextK, nextV):
        fstamp()
        wait_vm(ktag)
        fstamp()
        qk(kslot, nextK)
        softmax()
        fstamp()
        wait_vm(vtag)
        fstamp()
        pv(vslot, lambda qt: vr(P+qt*4, 4), False, nextV)

    def allreduce(reg, op):
        t = TMP + 10
        a.e(f'v_mov_b32 v{t}, v{reg}'); a.nop(2)
        a.e(f'v_permlane32_swap_b32 v{reg}, v{t}'); a.nop(1)
        a.e(f'{op} v{reg}, v{reg}, v{t}')
        a.e(f'v_mov_b32 v{t}, v{reg}'); a.nop(2)
        a.e(f'v_permlane16_swap_b32 v{reg}, v{t}'); a.nop(1)
        a.e(f'{op} v{reg}, v{reg}, v{t}')

    def exchange(kind, slotA, slotB, after_in):
        a.c(f'--- exchange {kind}')
        t = TMP
        for rho in (1, 2, 3):
            a.e(f's_add_u32 s{S_T}, s{S_W}, {rho}'); a.e(f's_and_b32 s{S_T}, s{S_T}, 3')
            if rho < 3:
                a.e(f's_lshl_b32 s{S_T}, s{S_T}, 15')
            else:
                a.e(f's_lshl_b32 s{S_T}, s{S_T}, 13'); a.e(f's_add_u32 s{S_T}, s{S_T}, {AUX}')
            a.e(f'v_add_u32 v{t+rho}, s{S_T}, v{V_L16}')
        for rho in (1, 2, 3):
            base = {1: slotA*8192, 2: slotB*8192, 3: 0}[rho]
            for i in range(6):
                a.e(f'ds_write_b128 v{t+rho}, {vr(O+24*rho+4*i, 4)} offset:{base+i*1024}')
        a.e(f'v_add_u32 v{t+4}, s{S_LB}, v{V_L16}')
        a.e(f's_lshl_b32 s{S_T}, s{S_W}, 13'); a.e(f's_add_u32 s{S_T}, s{S_T}, {AUX}')
        a.e(f'v_add_u32 v{t+5}, s{S_T}, v{V_L16}')
        a.e('s_waitcnt lgkmcnt(0)'); a.e('s_barrier')
        IN = S
        for rho in (1, 2, 3):
            for i in range(6):
                if rho < 3:
                    base = {1: slotA*8192, 2: slotB*8192}[rho]
                    a.e(f'ds_read_b128 {vr(IN+24*(rho-1)+4*i, 4)}, v{t+4} offset:{base+i*1024}')
                else:
                    a.e(f'ds_read_b128 {vr(IN+24*(rho-1)+4*i, 4)}, v{t+5} offset:{i*1024}')
        if kind == 'Q':
            a.e(f'v_lshrrev_b32 v{t+6}, 5, v{V_LANE}')
            a.e(f'v_lshlrev_b32 v{t+6}, 8, v{t+6}')
            a.e(f'v_and_b32 v{t+7}, 15, v{V_LANE}'); a.e(f'v_lshl_add_u32 v{t+6}, v{t+7}, 4, v{t+6}')
            a.e(f'v_bfe_u32 v{t+7}, v{V_LANE}, 4, 1'); a.e(f'v_lshl_add_u32 v{t+6}, v{t+7}, 3, v{t+6}')
            a.e(f'v_add_u32 v{t+6}, s{S_T}, v{t+6}')
            uoff = 512
        else:
            a.e(f'v_add_u32 v{t+6}, s{S_T}, v{V_L16}')
            uoff = 8
        a.e('s_waitcnt lgkmcnt(0)')
        if after_in: after_in()
        for i in range(24):
            a.e(f'v_add_f32 v{O+i}, v{O+i}, v{IN+i}')
            if i % 8 == 7: pump()
        for i in range(24):
            a.e(f'v_add_f32 v{IN+24+i}, v{IN+24+i}, v{IN+48+i}')
            if i % 8 == 7: pump()
        for i in range(24):
            a.e(f'v_add_f32 v{O+i}, v{O+i}, v{IN+24+i}')
            if i % 8 == 7: pump()
        for tau in range(2):
            for qt in range(3):
                x = Oreg(tau, qt); d = IN + (tau*3+qt)*2
                a.e(f'v_cvt_pk_bf16_f32 v{d}, v{x}, v{x+1}'); a.e(f'v_cvt_pk_bf16_f32 v{d+1}, v{x+2}, v{x+3}')
        for tau in range(2):
            for qt in range(3):
                d = IN + (tau*3+qt)*2
                a.e(f'ds_write_b64 v{t+6}, {vr(d, 2)} offset:{qt*1024 + tau*uoff}')
        a.e(f'v_add_u32 v{t+7}, {AUX}, v{V_L16}')
        pump(2)
        a.e('s_waitcnt lgkmcnt(0)'); a.e('s_barrier')
        for qt in range(3):
            for s in range(4):
                dst = aq(qt, s) if kind == 'Q' else ax(qt, s)
                a.e(f'ds_read_b128 {dst}, v{t+7} offset:{s*8192 + qt*1024}')
        pump(2)
        a.e('s_waitcnt lgkmcnt(0)')

    def unit(u):
        sg = 0 if u == 1 else 2
        sl = lambda n: (n + sg) & 3
        a.c(f'================ unit {u}')
        wait_vm('X1')
        for tq in range(8):
            a.e(f'v_xor_b32 v{TMP+tq}, {tq<<5}, v{V_XB}')
        for qt in range(3):
            for j in range(4):
                for uu in range(2):
                    r = AX + (qt*4 + j)*4 + uu*2
                    off = (sl(0)*8192 + qt*4096) if qt < 2 else sl(1)*8192
                    a.e(f'ds_read_b64 a[{r}:{r+1}], v{TMP+2*j+uu} offset:{off}')
        a.e('s_waitcnt lgkmcnt(0)')
        stamp()
        dma_wq(u, 2, sl(0)); dma_wq(u, 3, sl(1))
        flush()
        a.e(f's_mov_b32 s{S_STEP}, 0')
        if br[u] == 'A' and cfg.rotA: a.e(f's_mov_b32 s{S_ROT}, s{S_HH}')
        else: a.e(f's_mov_b32 s{S_ROT}, 0')
        wslot = [sl(2), sl(3), sl(0), sl(1)]
        for j in range(4):
            wait_vm(f'W{j}')
            after = None
            if j == 0: after = lambda: dma_kv('Ka', u, 'K', sl(2))
            if j == 1: after = lambda: dma_kv('Va', u, 'V', sl(3))
            pv(wslot[j], lambda qt, j=j: ax(qt, j), j == 0, after)
        a.nop(8)
        stamp()
        a.e('s_barrier')
        def after_in():
            dma_kv('Kb', u, 'K', sl(0)); dma_kv('Vb', u, 'V', sl(1))
        exchange('Q', sl(0), sl(1), after_in)
        stamp()
        for i in range(96):
            a.e(f'v_mov_b32 v{O+i}, 0')
            if i % 12 == 11: pump()
        flush()
        for qt in range(3):
            a.e(f'v_mov_b32 v{M_(qt)}, 0'); a.e(f'v_mov_b32 v{L_(qt)}, 0')
        a.e(f's_mov_b32 s{S_THR}, 0xff800000'); a.e(f's_mov_b32 s{S_FLOOR}, 0xff800000')
        assert a.vm[-32:] == ['Ka']*8 + ['Va']*8 + ['Kb']*8 + ['Vb']*8, a.vm
        a.e(f's_mov_b32 s{S_CNT}, 7')
        a.label(f'L_loop{u}')
        start = len(a.L)
        def nk(tag, slot): return lambda: dma_kv(tag, u, 'K', slot)
        def nv(tag, slot): return lambda: dma_kv(tag, u, 'V', slot)
        block(u, sl(2), sl(3), 'Ka', 'Va', nk('Ka', sl(2)), nv('Va', sl(3)))
        block(u, sl(0), sl(1), 'Kb', 'Vb', nk('Kb', sl(0)), nv('Vb', sl(1)))
        a.e(f's_sub_u32 s{S_CNT}, s{S_CNT}, 1'); a.e(f's_cmp_lg_u32 s{S_CNT}, 0'); a.e(f's_cbranch_scc1 L_loop{u}')
        assert not pend
        assert a.vm[-32:] == ['Ka']*8 + ['Va']*8 + ['Kb']*8 + ['Vb']*8, a.vm
        loops.append((start, len(a.L)))
        stamp()
        if u == 1: finon[0] = True
        block(u, sl(2), sl(3), 'Ka', 'Va', lambda: dma_wo(u, 0, sl(2)), lambda: dma_wo(u, 1, sl(3)))
        block(u, sl(0), sl(1), 'Kb', 'Vb', None, None)
        finon[0] = False
        stamp()
        a.c('--- stats')
        for qt in range(3): allreduce(L_(qt), 'v_add_f32')
        t = TMP
        a.e(f'v_and_b32 v{t}, 15, v{V_LANE}'); a.e(f'v_lshlrev_b32 v{t}, 3, v{t}')
        a.e(f'v_add_u32 v{t}, {AUX+6144}, v{t}')
        a.e(f's_lshl_b32 s{S_T}, s{S_W}, 13'); a.e(f'v_add_u32 v{t+1}, s{S_T}, v{t}')
        for qt in range(3):
            a.e(f'ds_write_b64 v{t+1}, {vr(M_(qt), 2)} offset:{qt*128}')
        a.e('s_waitcnt lgkmcnt(0)'); a.e('s_barrier')
        ST = S
        for qt in range(3):
            for w2 in range(4):
                a.e(f'ds_read_b64 {vr(ST+(qt*4+w2)*2, 2)}, v{t} offset:{w2*8192+qt*128}')
        a.e('s_waitcnt lgkmcnt(0)')
        for qt in range(3):
            m = lambda w2: ST + (qt*4+w2)*2
            mm = t + 2 + qt
            a.e(f'v_max3_f32 v{mm}, v{m(0)}, v{m(1)}, v{m(2)}'); a.e(f'v_max_f32 v{mm}, v{mm}, v{m(3)}')
            for w2 in range(4):
                a.e(f'v_sub_f32 v{m(w2)}, v{m(w2)}, v{mm}')
            a.e(f'v_sub_f32 v{M_(qt)}, v{M_(qt)}, v{mm}')
            for w2 in range(4):
                a.e(f'v_exp_f32 v{m(w2)}, v{m(w2)}')
            a.e(f'v_exp_f32 v{M_(qt)}, v{M_(qt)}')
            a.e(f'v_mul_f32 v{t+5}, v{m(0)}, v{m(0)+1}')
            for w2 in range(1, 4):
                a.e(f'v_fma_f32 v{t+5}, v{m(w2)}, v{m(w2)+1}, v{t+5}')
            a.e(f'v_rcp_f32 v{t+5}, v{t+5}'); a.nop(1)
            a.e(f'v_mul_f32 v{L_(qt)}, v{M_(qt)}, v{t+5}')
        for tau in range(8):
            for qt in range(3):
                for r in range(4):
                    x = Oreg(tau, qt) + r
                    a.e(f'v_mul_f32 v{x}, v{x}, v{L_(qt)}')
        def after_in2():
            dma_wo(u, 2, sl(0)); dma_wo(u, 3, sl(1))
        exchange('O', sl(0), sl(1), after_in2)
        stamp()
        oslot = [sl(2), sl(3), sl(0), sl(1)]
        for s in range(4):
            wait_vm(f'WO{s}')
            after = None
            if u == 1:
                after = [lambda: dma_x(2, 0, oslot[0]), lambda: dma_x(2, 1, oslot[1]), lambda: dma_wq(2, 0, oslot[2]), lambda: dma_wq(2, 1, oslot[3])][s]
            pv(oslot[s], lambda qt, s=s: ax(qt, s), s == 0, after)
        a.nop(8)
        stamp()
        for qt in range(3):
            for pi in range(4):
                d = S + (qt*4+pi)*4
                for h2 in range(2):
                    x = Oreg(2*pi+h2, qt)
                    a.e(f'v_cvt_pk_bf16_f32 v{d+2*h2}, v{x}, v{x+1}'); a.e(f'v_cvt_pk_bf16_f32 v{d+2*h2+1}, v{x+2}, v{x+3}')
        r = SRD[u]['PT']
        for qt in range(3):
            a.e(f's_mov_b32 s{S_T3}, {qt*4096}')
            for pi in range(4):
                d = S + (qt*4+pi)*4
                a.vmop('ST', f'buffer_store_dwordx4 {vr(d, 4)}, v{V_ST}, s[{r}:{r+3}], s{S_T3} offen offset:{pi*1024}{cfg.st_flags}')
            pump()

    loops = []
    stamp()
    dma_x(1, 0, 0); dma_x(1, 1, 1); dma_wq(1, 0, 2); dma_wq(1, 1, 3); flush()
    unit(1)
    unit(2)
    a.wait_vm_all()
    if cfg.dbgtime:
        a.e('s_memrealtime s[100:101]'); a.e('s_load_dwordx2 s[4:5], s[0:1], 88'); a.e('s_waitcnt lgkmcnt(0)')
        a.e('s_mov_b32 s6, 256'); a.e('s_mov_b32 s7, 0x20000')
        a.e('s_not_b32 s99, s99'); a.e('v_mov_b32 v1, 0'); a.e('v_mov_b32 v2, s99'); a.e('v_mov_b32 v3, s100')
        a.e('s_mov_b64 exec, 1')
        a.e('buffer_atomic_umax v2, v1, s[4:7], 0 offen sc1'); a.e('buffer_atomic_umax v3, v1, s[4:7], 0 offen offset:4 sc1')
        a.e('s_waitcnt vmcnt(0)')
    if cfg.stamps or cfg.fine:
        stamp()
        a.e('s_load_dwordx2 s[96:97], s[0:1], 96'); a.e('s_waitcnt lgkmcnt(0)')
        a.e('s_add_u32 s96, s96, 0x4000000'); a.e('s_addc_u32 s97, s97, 0'); a.e('s_mov_b32 s98, 0x100000'); a.e('s_mov_b32 s99, 0x20000')
        a.e(f's_lshl_b32 s94, s2, 2'); a.e(f's_add_u32 s94, s94, s{S_W}'); a.e('s_lshl_b32 s94, s94, 7')
        a.e('v_mov_b32 v1, 0')
        for i in range(nst[0]):
            a.e(f'v_mov_b32 v2, s{4+i}')
            a.e(f'buffer_store_dword v2, v1, s[96:99], s94 offen offset:{4*i}')
            a.e('s_nop 1')
        a.e('s_waitcnt vmcnt(0)')
    a.label('L_k1_end')
    a.e('s_endpgm')
    rs0 = len(a.L)
    a.label('L_rescale')
    t = TMP
    for qt in range(3):
        allreduce(TMP+qt, 'v_max_f32')
    for qt in range(3):
        a.e(f'v_max_f32 v{t+qt}, s{S_FLOOR}, v{t+qt}')
    for qt in range(3):
        a.e(f'v_add_f32 v{M_(qt)}, v{M_(qt)}, v{t+qt}')
        a.e(f'v_max_f32 v{t+4+qt}, 0, v{t+qt}')
        a.e(f'v_sub_f32 v{t+4+qt}, 0, v{t+4+qt}')
    for qt in range(3):
        a.e(f'v_exp_f32 v{t+4+qt}, v{t+4+qt}')
    for kt in range(2):
        for qt in range(3):
            for r in range(4):
                x = Sreg(kt, qt) + r
                a.e(f'v_sub_f32 v{x}, v{x}, v{t+qt}')
    for qt in range(3):
        a.e(f'v_mul_f32 v{L_(qt)}, v{L_(qt)}, v{t+4+qt}')
    for tau in range(8):
        for qt in range(3):
            for r in range(4):
                x = Oreg(tau, qt) + r
                a.e(f'v_mul_f32 v{x}, v{x}, v{t+4+qt}')
    import struct as st_
    a.e(f's_mov_b32 s{S_THR}, {st_.unpack("<I", st_.pack("<f", cfg.thr))[0]:#x}'); a.e(f's_mov_b32 s{S_FLOOR}, 0')
    a.e(f's_setpc_b64 s[{S_RET}:{S_RET+1}]')
    rs1 = len(a.L)

    a.e(f'.globl {K2}'); a.e('.p2align 8'); a.e(f'.type {K2},@function'); a.label(K2)
    k2s = len(a.L)
    a.e('s_cmp_ge_u32 s2, 768'); a.e('s_cbranch_scc1 L_k2_end')
    if cfg.stamps: a.e('s_memrealtime s[32:33]')
    a.e('s_load_dwordx2 s[4:5], s[0:1], 96'); a.e('s_load_dwordx2 s[6:7], s[0:1], 80')
    a.e('s_mul_hi_u32 s8, s2, 0x5555556')
    a.e('s_mul_i32 s9, s8, 48'); a.e('s_sub_u32 s9, s2, s9')
    a.e('s_mul_i32 s10, s9, 0x5556'); a.e('s_lshr_b32 s10, s10, 18')
    a.e('s_mul_i32 s11, s10, 12'); a.e('s_sub_u32 s11, s9, s11')
    a.e('s_lshr_b32 s12, s11, 2'); a.e('s_and_b32 s13, s11, 3')
    a.e('s_waitcnt lgkmcnt(0)')
    a.e('s_mul_i32 s14, s8, 1572864')
    a.e('s_add_u32 s16, s4, s14'); a.e('s_addc_u32 s17, s5, 0'); a.e('s_mov_b32 s18, 1572864'); a.e('s_mov_b32 s19, 0x20000')
    a.e('v_lshlrev_b32 v1, 4, v0'); a.e('s_lshl_b32 s15, s9, 10'); a.e('v_add_u32 v1, s15, v1')
    vm2 = []
    for h in range(32):
        a.e(f's_mov_b32 s20, {h*49152}')
        a.e(f'buffer_load_dwordx4 v[{16+4*h}:{19+4*h}], v1, s[16:19], s20 offen')
    a.e('s_and_b32 s21, s8, 7'); a.e('s_lshr_b32 s22, s8, 3')
    a.e('s_mul_i32 s21, s21, 48'); a.e('s_lshl_b32 s23, s12, 4'); a.e('s_add_u32 s21, s21, s23')
    a.e('v_and_b32 v2, 15, v0'); a.e('v_add_u32 v2, s21, v2'); a.e('v_lshlrev_b32 v2, 11, v2')
    a.e('v_lshrrev_b32 v3, 4, v0'); a.e('v_lshl_add_u32 v2, v3, 3, v2')
    a.e('s_lshl_b32 s24, s22, 10'); a.e('s_lshl_b32 s25, s10, 8'); a.e('s_add_u32 s24, s24, s25')
    a.e('s_add_u32 s25, s10, s13'); a.e('s_lshl_b32 s25, s25, 1')
    a.e('s_and_b32 s26, s25, 7'); a.e('s_lshl_b32 s26, s26, 5'); a.e('s_add_u32 s26, s26, s24')
    a.e('s_add_u32 s27, s25, 1'); a.e('s_and_b32 s27, s27, 7'); a.e('s_lshl_b32 s27, s27, 5'); a.e('s_add_u32 s27, s27, s24')
    a.e('s_mov_b32 s28, s6'); a.e('s_mov_b32 s29, s7'); a.e('s_mov_b32 s30, 786432'); a.e('s_mov_b32 s31, 0x20000')
    for i in range(8): a.e(f'v_mov_b32 v{4+i}, 0')
    for h in range(32):
        a.e(f's_waitcnt vmcnt({31-h})')
        for d in range(4):
            r = 16 + 4*h + d
            a.e(f'v_lshlrev_b32 v12, 16, v{r}'); a.e(f'v_and_b32 v13, 0xffff0000, v{r}')
            a.e(f'v_add_f32 v{4+2*d}, v{4+2*d}, v12'); a.e(f'v_add_f32 v{5+2*d}, v{5+2*d}, v13')
    a.e('v_cvt_pk_bf16_f32 v12, v4, v5'); a.e('v_cvt_pk_bf16_f32 v13, v6, v7')
    a.e('v_cvt_pk_bf16_f32 v14, v8, v9'); a.e('v_cvt_pk_bf16_f32 v15, v10, v11')
    a.e('buffer_store_dwordx2 v[12:13], v2, s[28:31], s26 offen')
    a.e('buffer_store_dwordx2 v[14:15], v2, s[28:31], s27 offen')
    a.e('s_waitcnt vmcnt(0)')
    if cfg.stamps:
        a.e('s_memrealtime s[34:35]'); a.e('s_waitcnt lgkmcnt(0)')
        a.e('s_add_u32 s36, s4, 0x4100000'); a.e('s_addc_u32 s37, s5, 0'); a.e('s_mov_b32 s38, 0x10000'); a.e('s_mov_b32 s39, 0x20000')
        a.e('s_lshl_b32 s33, s2, 3'); a.e('v_mov_b32 v1, 0'); a.e('v_mov_b32 v2, s32'); a.e('v_mov_b32 v3, s34')
        a.e('buffer_store_dwordx2 v[2:3], v1, s[36:39], s33 offen'); a.e('s_waitcnt vmcnt(0)')
    if cfg.k2report:
        a.e('s_cmp_lg_u32 s2, 0'); a.e('s_cbranch_scc1 L_k2_end')
        a.e('s_load_dwordx2 s[40:41], s[0:1], 88'); a.e('s_memrealtime s[34:35]'); a.e('s_waitcnt lgkmcnt(0)')
        a.e('s_mov_b32 s42, 256'); a.e('s_mov_b32 s43, 0x20000')
        a.e('s_add_u32 s36, s4, 0x4000000'); a.e('s_addc_u32 s37, s5, 0'); a.e('s_mov_b32 s38, 0x100000'); a.e('s_mov_b32 s39, 0x20000')
        a.e('v_lshlrev_b32 v1, 11, v0')
        a.e('v_mov_b32 v20, -1'); a.e('v_mov_b32 v21, 0')
        ks = [3, 4, 5, 6, 7, 10, 11, 12, 13, 14, 15]
        for j in range(len(ks)): a.e(f'v_mov_b32 v{24+j}, 0')
        for i in range(16):
            a.e(f's_mov_b32 s44, {i*128}')
            for q in range(4):
                a.e(f'buffer_load_dwordx4 v[{40+4*q}:{43+4*q}], v1, s[36:39], s44 offen offset:{16*q}')
            a.e('s_waitcnt vmcnt(0)')
            a.e('v_min_u32 v20, v20, v40'); a.e('v_max_u32 v21, v21, v55')
            for j, kk in enumerate(ks):
                a.e(f'v_sub_u32 v56, v{40+kk}, v40'); a.e(f'v_add_u32 v{24+j}, v{24+j}, v56')
        a.e('v_not_b32 v20, v20'); a.e('v_mov_b32 v2, 0')
        a.e('buffer_atomic_umax v20, v2, s[40:43], 0 offen sc1'); a.e('buffer_atomic_umax v21, v2, s[40:43], 0 offen offset:4 sc1')
        a.e('v_mov_b32 v22, s32'); a.e('v_mov_b32 v23, s34')
        a.e('buffer_atomic_umax v22, v2, s[40:43], 0 offen offset:8 sc1'); a.e('buffer_atomic_umax v23, v2, s[40:43], 0 offen offset:12 sc1')
        for j in range(len(ks)):
            a.e(f'buffer_atomic_add v{24+j}, v2, s[40:43], 0 offen offset:{16+4*j} sc1')
        a.e('s_waitcnt vmcnt(0)')
    a.label('L_k2_end'); a.e('s_endpgm')
    k2e = len(a.L)

    if cfg.extra_k:
        a.e('.globl empty_kernel'); a.e('.p2align 8'); a.e('.type empty_kernel,@function'); a.label('empty_kernel'); a.e('s_endpgm')
    a.e('.section .rodata,"a"')
    for name, nv, acc, ns in ([('empty_kernel', 8, 8, 8)] if cfg.extra_k else []) + [(K1, 352, 256, 102), (K2, 144, 144, 48)]:
        a.e('.p2align 6'); a.e(f'.amdhsa_kernel {name}')
        a.e(f'  .amdhsa_next_free_vgpr {nv}'); a.e(f'  .amdhsa_next_free_sgpr {ns}'); a.e(f'  .amdhsa_accum_offset {acc}')
        a.e('  .amdhsa_group_segment_fixed_size 0'); a.e('  .amdhsa_kernarg_size 104'); a.e('  .amdhsa_user_sgpr_count 2')
        a.e('  .amdhsa_user_sgpr_kernarg_segment_ptr 1'); a.e('  .amdhsa_system_sgpr_workgroup_id_x 1')
        a.e('  .amdhsa_float_denorm_mode_32 3'); a.e('  .amdhsa_float_denorm_mode_16_64 3')
        a.e('.end_amdhsa_kernel')

    L = list(a.L)
    probs = check(L)
    for (s0, s1) in loops:
        probs += check(L[s0:s1] + L[s0:s1])
    return a.text(), probs

if __name__ == '__main__':
    cfg = Cfg()
    for kv in sys.argv[2:]:
        k, v = kv.split('='); setattr(cfg, k, eval(v))
    txt, probs = gen(cfg)
    for p in probs: print('HAZARD', p)
    out = sys.argv[1] if len(sys.argv) > 1 else 'v1.s'
    open(out, 'w').write(txt)
    print('written', out, len(txt))
```

```python
import sys, struct, math
from asmlib import Asm, check

KN = 'concat_heads__gqa_block_cached__mha_block_cached__near_ridge_kernel'

V_LANE = 0
TRA = 16; KA = 24; DE, DO = 28, 29; ML = 30
def M_(qt): return ML + 2*qt
def L_(qt): return ML + 2*qt + 1
TMP = 36; S = 48; P = 72; KF = 84; VF = 116; O = 148
QE, QO, OE, OO = 244, 245, 246, 247
V_L16, V_XB, V_ST = 248, 249, 250
def Oreg(tau, qt): return O + (tau*3 + qt)*4
def Sreg(kt, qt): return S + (kt*3 + qt)*4
AQ, AX = 0, 48
def aq(qt, s): r = AQ + (qt*4 + s)*4; return f'a[{r}:{r+3}]'
def ax(qt, s): r = AX + (qt*4 + s)*4; return f'a[{r}:{r+3}]'
def vr(b, n): return f'v[{b}:{b+n-1}]' if n > 1 else f'v{b}'
R_FLG = 4
S_FG = {1: 8, 2: 9}
S_ISA = {1: 10, 2: 11}
STAMP0 = 12
SRD = {1: dict(K=28, V=32, WQ=36, X=40, WO=44, PT=48), 2: dict(K=52, V=56, WQ=60, X=64, WO=68, PT=72)}
S_W, S_LB, S_OFF, S_T = 76, 77, 78, 79
S_CNT, S_THR, S_FLOOR, S_C, S_RET = 86, 87, 88, 89, 90
S_WQO, S_XO, S_T2, S_T3, S_STEP, S_ROT, S_T4, S_W8 = 92, 93, 94, 95, 96, 97, 98, 99
S_HH = 3
AUX = 131072
FLG_OFF = 0x2000000

class Cfg:
    afirst = 0x55
    flA = ''
    flBK = ' nt'; flBV = ' nt'
    rotA = True
    nt_w = False
    thr = 8.0
    st_flags = ' sc1'
    stamps = False

def f32bits(x): return struct.unpack('<I', struct.pack('<f', x))[0]

def gen(cfg=Cfg()):
    a = Asm()
    a.e(f'; @launch grid=(256,1,1) block=(256,1,1) lds=163840')
    a.e('.amdgcn_target "amdgcn-amd-amdhsa--gfx950"')
    a.e('.text')
    a.e(f'.globl {KN}'); a.e('.p2align 8'); a.e(f'.type {KN},@function'); a.label(KN)
    a.e('s_cmp_ge_u32 s2, 256'); a.e('s_cbranch_scc1 L_end')
    nst = [0]
    def stamp():
        if not cfg.stamps: return
        a.e('s_memrealtime s[100:101]'); a.e('s_waitcnt lgkmcnt(0)'); a.e(f's_mov_b32 s{STAMP0+nst[0]}, s100'); nst[0] += 1
        assert nst[0] <= 16
    if cfg.stamps:
        a.e('s_memrealtime s[100:101]'); a.e('s_waitcnt lgkmcnt(0)'); a.e('v_mov_b32 v255, s100')
    a.e('s_load_dwordx16 s[12:27], s[0:1], 0')
    a.e('s_load_dwordx4 s[84:87], s[0:1], 64')
    a.e('s_load_dwordx4 s[88:91], s[0:1], 88')
    a.e(f'v_lshrrev_b32 v1, 6, v0')
    a.e(f'v_and_b32 v{V_LANE}, 63, v0')
    a.e(f'v_readfirstlane_b32 s{S_W}, v1')
    a.e(f'v_and_b32 v2, 15, v{V_LANE}'); a.e(f'v_lshrrev_b32 v3, 4, v{V_LANE}')
    a.e(f'v_lshlrev_b32 v{V_L16}, 4, v{V_LANE}')
    a.e(f's_lshl_b32 s{S_LB}, s{S_W}, 15')
    a.e('v_lshlrev_b32 v4, 1, v3'); a.e('v_xor_b32 v4, v2, v4'); a.e('v_lshlrev_b32 v4, 4, v4')
    a.e(f'v_lshl_add_u32 v{DE}, v3, 8, v4'); a.e(f'v_xor_b32 v{DO}, 0x80, v{DE}')
    a.e(f'v_lshl_add_u32 v{QE}, v3, 13, v4'); a.e(f'v_xor_b32 v{QO}, 0x80, v{QE}')
    a.e(f'v_lshl_add_u32 v{OE}, v3, 10, v4'); a.e(f'v_xor_b32 v{OO}, 0x80, v{OE}')
    a.e('v_and_b32 v5, 7, v2'); a.e('v_lshlrev_b32 v5, 1, v5')
    a.e('v_xor_b32 v6, v3, v5'); a.e('v_lshlrev_b32 v6, 4, v6')
    a.e('v_lshl_add_u32 v6, v2, 8, v6'); a.e(f'v_add_u32 v{KA}, s{S_LB}, v6')
    for s in range(1, 4): a.e(f'v_xor_b32 v{KA+s}, {s<<6}, v{KA}')
    a.e('v_lshrrev_b32 v6, 1, v3'); a.e('v_xor_b32 v6, v6, v5'); a.e('v_lshlrev_b32 v6, 4, v6')
    a.e('v_and_b32 v7, 1, v3'); a.e('v_lshl_add_u32 v6, v7, 3, v6')
    a.e('v_lshl_add_u32 v6, v2, 8, v6'); a.e(f'v_add_u32 v{V_XB}, s{S_LB}, v6')
    a.e('v_lshrrev_b32 v6, 2, v2'); a.e('v_lshl_add_u32 v6, v3, 2, v6')
    a.e('v_and_b32 v7, 7, v6'); a.e('v_lshlrev_b32 v7, 1, v7')
    a.e('v_bfe_u32 v8, v2, 1, 1'); a.e('v_xor_b32 v7, v8, v7'); a.e('v_lshlrev_b32 v7, 4, v7')
    a.e('v_and_b32 v8, 1, v2'); a.e('v_lshl_add_u32 v7, v8, 3, v7')
    a.e('v_lshl_add_u32 v7, v6, 8, v7'); a.e(f'v_add_u32 v7, s{S_LB}, v7')
    a.e(f's_lshl_b32 s{S_T}, s{S_W}, 1')
    for tau in range(8):
        a.e(f's_add_u32 s{S_T+1}, s{S_T}, {tau}'); a.e(f's_and_b32 s{S_T+1}, s{S_T+1}, 7'); a.e(f's_lshl_b32 s{S_T+1}, s{S_T+1}, 5')
        a.e(f'v_xor_b32 v{TRA+tau}, s{S_T+1}, v7')
    a.e(f's_mul_i32 s{S_T}, s{S_W}, 12288'); a.e(f'v_add_u32 v{V_ST}, s{S_T}, v{V_L16}')
    a.e(f's_lshl_b32 s{S_WQO}, s{S_W}, 20'); a.e(f's_lshl_b32 s{S_XO}, s{S_W}, 8'); a.e(f's_lshl_b32 s{S_W8}, s{S_W}, 13')
    a.e('s_and_b32 s79, s2, 7'); a.e('s_lshr_b32 s80, s2, 3'); a.e('s_lshr_b32 s81, s80, 2'); a.e(f's_and_b32 s{S_HH}, s80, 3')
    a.e('s_lshl_b32 s83, s79, 2'); a.e(f's_add_u32 s83, s83, s{S_HH}')
    a.e('s_lshl_b32 s79, s79, 0'); a.e('s_lshl_b32 s80, s81, 3'); a.e('s_add_u32 s79, s80, s79')
    a.e('s_lshl_b32 s80, s81, 5'); a.e('s_add_u32 s80, s80, s83')
    a.e(f's_mov_b32 s6, {cfg.afirst}'); a.e('s_lshr_b32 s6, s6, s81'); a.e(f's_and_b32 s{S_ISA[1]}, s6, 1'); a.e(f's_xor_b32 s{S_ISA[2]}, s{S_ISA[1]}, 1')
    a.e('s_waitcnt lgkmcnt(0)')
    for u in (1, 2):
        R = SRD[u]
        a.e(f's_cmp_eq_u32 s{S_ISA[u]}, 1')
        a.e('s_cselect_b32 s92, s79, s80')
        a.e('s_cselect_b32 s93, 0, 256')
        a.e('s_cselect_b32 s94, 0, 8')
        for name, pa, pb in (('X', 12, 22), ('K', 14, 24), ('V', 16, 26), ('WQ', 18, 84), ('WO', 20, 86)):
            r = R[name]
            a.e(f's_cselect_b32 s{r}, s{pa}, s{pb}'); a.e(f's_cselect_b32 s{r+1}, s{pa+1}, s{pb+1}')
        a.e('s_lshl_b32 s95, s92, 19'); a.e('s_lshr_b32 s96, s92, 13')
        for name in ('K', 'V'):
            r = R[name]
            a.e(f's_add_u32 s{r}, s{r}, s95'); a.e(f's_addc_u32 s{r+1}, s{r+1}, s96')
            a.e(f's_mov_b32 s{r+2}, 0x80000'); a.e(f's_mov_b32 s{r+3}, 0x20000')
        r = R['X']; a.e('s_mul_i32 s95, s81, 49152')
        a.e(f's_add_u32 s{r}, s{r}, s95'); a.e(f's_addc_u32 s{r+1}, s{r+1}, 0'); a.e(f's_mov_b32 s{r+2}, 49152'); a.e(f's_mov_b32 s{r+3}, 0x20000')
        r = R['WQ']; a.e('s_lshl_b32 s95, s83, 8')
        a.e(f's_add_u32 s{r}, s{r}, s95'); a.e(f's_addc_u32 s{r+1}, s{r+1}, 0'); a.e(f's_sub_u32 s{r+2}, 0x400000, s95'); a.e(f's_mov_b32 s{r+3}, 0x20000')
        r = R['WO']; a.e('s_lshl_b32 s95, s83, 17')
        a.e(f's_add_u32 s{r}, s{r}, s95'); a.e(f's_addc_u32 s{r+1}, s{r+1}, 0'); a.e(f's_mov_b32 s{r+2}, 0x20000'); a.e(f's_mov_b32 s{r+3}, 0x20000')
        r = R['PT']; a.e('s_add_u32 s93, s93, s80'); a.e('s_mul_i32 s95, s93, 49152'); a.e('s_mul_hi_u32 s96, s93, 49152')
        a.e(f's_add_u32 s{r}, s90, s95'); a.e(f's_addc_u32 s{r+1}, s91, s96'); a.e(f's_mov_b32 s{r+2}, 49152'); a.e(f's_mov_b32 s{r+3}, 0x20000')
        a.e('s_add_u32 s94, s94, s81'); a.e('s_lshl_b32 s94, s94, 7'); a.e('s_lshl_b32 s95, s83, 2'); a.e(f's_add_u32 s{S_FG[u]}, s94, s95')
    a.e(f's_add_u32 s{R_FLG}, s90, {FLG_OFF:#x}'); a.e(f's_addc_u32 s{R_FLG+1}, s91, 0'); a.e(f's_mov_b32 s{R_FLG+2}, 2048'); a.e(f's_mov_b32 s{R_FLG+3}, 0x20000')
    a.e(f's_lshl_b32 s{S_WQO}, s{S_W}, 20'); a.e(f's_lshl_b32 s{S_XO}, s{S_W}, 8')
    a.e('s_mov_b32 s80, s88'); a.e('s_mov_b32 s81, s89'); a.e('s_mov_b32 s82, 256'); a.e('s_mov_b32 s83, 0x20000')
    a.e(f's_mov_b32 s{S_C}, {f32bits(math.log2(math.e) / math.sqrt(128.0)):#x}')
    a.e(f's_cmp_lg_u32 s{S_W}, 0'); a.e('s_cbranch_scc1 L_noclear')
    a.e('s_mov_b64 exec, 1'); a.e('v_mov_b32 v1, 0')
    a.e(f'buffer_store_dword v1, v1, s[{R_FLG}:{R_FLG+3}], s{S_FG[1]} offen sc1')
    a.e(f'buffer_store_dword v1, v1, s[{R_FLG}:{R_FLG+3}], s{S_FG[2]} offen sc1')
    a.e('s_mov_b64 exec, -1')
    a.label('L_noclear')

    ntw = ' nt' if cfg.nt_w else ''
    pend = []
    def pump(n=1):
        for _ in range(n):
            if not pend: return
            tag, th = pend.pop(0); th()
    def flush(): pump(len(pend))
    def wait_vm(tag):
        while any(t == tag for t, _ in pend): pump()
        a.wait_vm(tag)
    def dma(tag, srd, slot, vE, vO, RS, sbase, const, npieces=8, flags='', pre=None):
        for p in range(npieces):
            def th(p=p):
                if p == 0 and pre: pre()
                if p % 4 == 0: a.e(f's_add_u32 m0, s{S_LB}, {slot*8192 + (p//4)*4096}')
                off = const + p*4*RS - (p & 3)*1024
                if RS == 256:
                    if p % 4 == 0: a.e(f's_add_u32 s{S_T2}, s{sbase}, {off}')
                else:
                    a.e(f's_add_u32 s{S_T2}, s{sbase}, {off}')
                v = vE if p % 2 == 0 else vO
                a.vmop(tag, f'buffer_load_dwordx4 v{v}, s[{srd}:{srd+3}], s{S_T2} offen offset:{(p&3)*1024}{flags} lds')
            pend.append((tag, th))
    def dma_kv(tag, u, which, slot, fl):
        pre = None
        if which == 'K':
            def pre():
                a.e(f's_add_u32 s{S_T4}, s{S_STEP}, s{S_ROT}'); a.e(f's_and_b32 s{S_T4}, s{S_T4}, 3')
                a.e(f's_and_b32 s{S_OFF}, s{S_STEP}, -4'); a.e(f's_or_b32 s{S_OFF}, s{S_OFF}, s{S_T4}')
                a.e(f's_lshl_b32 s{S_OFF}, s{S_OFF}, 15'); a.e(f's_add_u32 s{S_OFF}, s{S_OFF}, s{S_W8}')
                a.e(f's_add_u32 s{S_STEP}, s{S_STEP}, 1')
        dma(tag, SRD[u][which], slot, DE, DO, 256, S_OFF, 0, flags=fl, pre=pre)
    def dma_x(u, part, slot): dma(f'X{part}', SRD[u]['X'], slot, OE, OO, 1024, S_XO, part*32*1024, npieces=8 if part == 0 else 4, flags=ntw)
    def dma_wq(u, j, slot): dma(f'W{j}', SRD[u]['WQ'], slot, QE, QO, 8192, S_WQO, j*32*8192, flags=ntw)
    def dma_wo(u, s, slot): dma(f'WO{s}', SRD[u]['WO'], slot, OE, OO, 1024, S_XO, s*32*1024, flags=ntw)

    def pv(slot, bfrag, first, after_reads):
        for tau in range(8):
            a.e(f'ds_read_b64_tr_b16 {vr(VF+4*tau, 2)}, v{TRA+tau} offset:{slot*8192}')
            a.e(f'ds_read_b64_tr_b16 {vr(VF+4*tau+2, 2)}, v{TRA+tau} offset:{slot*8192+4096}')
        a.e('s_waitcnt lgkmcnt(0)')
        if after_reads: after_reads()
        for tau in range(8):
            for qt in range(3):
                d = vr(Oreg(tau, qt), 4)
                a.e(f'v_mfma_f32_16x16x32_bf16 {d}, {vr(VF+4*tau, 4)}, {bfrag(qt)}, {"0" if first else d}')
            pump()
    def qk(slot, after_reads):
        for s in range(4):
            for kt in range(2):
                a.e(f'ds_read_b128 {vr(KF+(s*2+kt)*4, 4)}, v{KA+s} offset:{slot*8192+kt*4096}')
        a.e('s_waitcnt lgkmcnt(0)')
        if after_reads: after_reads()
        for s in range(4):
            for kt in range(2):
                for qt in range(3):
                    d = vr(Sreg(kt, qt), 4)
                    a.e(f'v_mfma_f32_16x16x32_bf16 {d}, {vr(KF+(s*2+kt)*4, 4)}, {aq(qt, s)}, {"0" if s == 0 else d}')
            if s < 3: pump()
    site = [0]
    def softmax():
        a.nop(3)
        for kt in range(2):
            for qt in range(3):
                for r in range(4):
                    x = Sreg(kt, qt) + r
                    a.e(f'v_fma_f32 v{x}, v{x}, s{S_C}, -v{M_(qt)}')
        pump()
        for qt in range(3):
            r0 = Sreg(0, qt); a.e(f'v_max3_f32 v{TMP+qt}, v{r0}, v{r0+1}, v{r0+2}')
        for qt in range(3):
            r0 = Sreg(0, qt); r1 = Sreg(1, qt); a.e(f'v_max3_f32 v{TMP+qt}, v{TMP+qt}, v{r0+3}, v{r1}')
        for qt in range(3):
            r1 = Sreg(1, qt); a.e(f'v_max3_f32 v{TMP+qt}, v{TMP+qt}, v{r1+1}, v{r1+2}')
        for qt in range(3):
            r1 = Sreg(1, qt); a.e(f'v_max_f32 v{TMP+qt}, v{TMP+qt}, v{r1+3}')
        a.e(f'v_max3_f32 v{TMP+3}, v{TMP}, v{TMP+1}, v{TMP+2}')
        a.e(f'v_cmp_lt_f32 vcc, s{S_THR}, v{TMP+3}')
        k = site[0]; site[0] += 1
        a.e(f's_cbranch_vccz L_fast{k}')
        a.e(f's_call_b64 s[{S_RET}:{S_RET+1}], L_rescale')
        a.label(f'L_fast{k}')
        for kt in range(2):
            for qt in range(3):
                for r in range(4):
                    x = Sreg(kt, qt) + r
                    a.e(f'v_exp_f32 v{x}, v{x}')
                if qt == 1: pump()
            if kt == 0: pump()
        for kt in range(2):
            for r in range(4):
                for qt in range(3):
                    a.e(f'v_add_f32 v{L_(qt)}, v{L_(qt)}, v{Sreg(kt, qt)+r}')
        pump()
        for qt in range(3):
            for kt in range(2):
                x = Sreg(kt, qt)
                a.e(f'v_cvt_pk_bf16_f32 v{P+qt*4+kt*2}, v{x}, v{x+1}')
                a.e(f'v_cvt_pk_bf16_f32 v{P+qt*4+kt*2+1}, v{x+2}, v{x+3}')
    def block(kslot, vslot, ktag, vtag, nextK, nextV):
        wait_vm(ktag); qk(kslot, nextK); softmax()
        wait_vm(vtag); pv(vslot, lambda qt: vr(P+qt*4, 4), False, nextV)
    def allreduce(reg, op):
        t = TMP + 10
        a.e(f'v_mov_b32 v{t}, v{reg}'); a.nop(2)
        a.e(f'v_permlane32_swap_b32 v{reg}, v{t}'); a.nop(1)
        a.e(f'{op} v{reg}, v{reg}, v{t}')
        a.e(f'v_mov_b32 v{t}, v{reg}'); a.nop(2)
        a.e(f'v_permlane16_swap_b32 v{reg}, v{t}'); a.nop(1)
        a.e(f'{op} v{reg}, v{reg}, v{t}')
    def exchange(kind, slotA, slotB, after_in, after_b1=None):
        a.c(f'--- exchange {kind}')
        t = TMP
        for rho in (1, 2, 3):
            a.e(f's_add_u32 s{S_T}, s{S_W}, {rho}'); a.e(f's_and_b32 s{S_T}, s{S_T}, 3')
            if rho < 3: a.e(f's_lshl_b32 s{S_T}, s{S_T}, 15')
            else: a.e(f's_lshl_b32 s{S_T}, s{S_T}, 13'); a.e(f's_add_u32 s{S_T}, s{S_T}, {AUX}')
            a.e(f'v_add_u32 v{t+rho}, s{S_T}, v{V_L16}')
        for rho in (1, 2, 3):
            base = {1: slotA*8192, 2: slotB*8192, 3: 0}[rho]
            for i in range(6):
                a.e(f'ds_write_b128 v{t+rho}, {vr(O+24*rho+4*i, 4)} offset:{base+i*1024}')
        a.e(f'v_add_u32 v{t+4}, s{S_LB}, v{V_L16}')
        a.e(f's_lshl_b32 s{S_T}, s{S_W}, 13'); a.e(f's_add_u32 s{S_T}, s{S_T}, {AUX}')
        a.e(f'v_add_u32 v{t+5}, s{S_T}, v{V_L16}')
        a.e('s_waitcnt lgkmcnt(0)'); a.e('s_barrier')
        IN = S
        for rho in (1, 2, 3):
            for i in range(6):
                if rho < 3: a.e(f'ds_read_b128 {vr(IN+24*(rho-1)+4*i, 4)}, v{t+4} offset:{ {1: slotA*8192, 2: slotB*8192}[rho] + i*1024}')
                else: a.e(f'ds_read_b128 {vr(IN+24*(rho-1)+4*i, 4)}, v{t+5} offset:{i*1024}')
        if kind == 'Q':
            a.e(f'v_lshrrev_b32 v{t+6}, 5, v{V_LANE}'); a.e(f'v_lshlrev_b32 v{t+6}, 8, v{t+6}')
            a.e(f'v_and_b32 v{t+7}, 15, v{V_LANE}'); a.e(f'v_lshl_add_u32 v{t+6}, v{t+7}, 4, v{t+6}')
            a.e(f'v_bfe_u32 v{t+7}, v{V_LANE}, 4, 1'); a.e(f'v_lshl_add_u32 v{t+6}, v{t+7}, 3, v{t+6}')
            a.e(f'v_add_u32 v{t+6}, s{S_T}, v{t+6}')
            uoff = 512
        else:
            a.e(f'v_add_u32 v{t+6}, s{S_T}, v{V_L16}')
            uoff = 8
        a.e('s_waitcnt lgkmcnt(0)')
        if after_in: after_in()
        for i in range(24):
            a.e(f'v_add_f32 v{O+i}, v{O+i}, v{IN+i}')
            if i % 8 == 7: pump()
        for i in range(24):
            a.e(f'v_add_f32 v{IN+24+i}, v{IN+24+i}, v{IN+48+i}')
            if i % 8 == 7: pump()
        for i in range(24):
            a.e(f'v_add_f32 v{O+i}, v{O+i}, v{IN+24+i}')
            if i % 8 == 7: pump()
        for tau in range(2):
            for qt in range(3):
                x = Oreg(tau, qt); d = IN + (tau*3+qt)*2
                a.e(f'v_cvt_pk_bf16_f32 v{d}, v{x}, v{x+1}'); a.e(f'v_cvt_pk_bf16_f32 v{d+1}, v{x+2}, v{x+3}')
        for tau in range(2):
            for qt in range(3):
                d = IN + (tau*3+qt)*2
                a.e(f'ds_write_b64 v{t+6}, {vr(d, 2)} offset:{qt*1024 + tau*uoff}')
        a.e(f'v_add_u32 v{t+7}, {AUX}, v{V_L16}')
        pump(2)
        a.e('s_waitcnt lgkmcnt(0)'); a.e('s_barrier')
        for qt in range(3):
            for s in range(4):
                dst = aq(qt, s) if kind == 'Q' else ax(qt, s)
                a.e(f'ds_read_b128 {dst}, v{t+7} offset:{s*8192 + qt*1024}')
        pump(2)
        a.e('s_waitcnt lgkmcnt(0)')

    def set_flag(u, lbl):
        a.e(f's_cmp_lg_u32 s{S_W}, 0'); a.e(f's_cbranch_scc1 {lbl}')
        a.e('s_mov_b64 exec, 1'); a.e(f'v_mov_b32 v{TMP}, 0'); a.e(f'v_mov_b32 v{TMP+1}, 1')
        a.e(f'buffer_store_dword v{TMP+1}, v{TMP}, s[{R_FLG}:{R_FLG+3}], s{S_FG[u]} offen sc1')
        a.e('s_mov_b64 exec, -1')
        a.label(lbl)

    loops = []
    def unit(u):
        sg = 0 if u == 1 else 2
        sl = lambda n: (n + sg) & 3
        a.c(f'================ unit {u}')
        wait_vm('X1')
        if u == 1:
            a.e(f's_cmp_lg_u32 s{S_W}, 0'); a.e('s_cbranch_scc1 L_nocount')
            a.e('s_mov_b64 exec, 1'); a.e('v_mov_b32 v1, 0'); a.e('v_mov_b32 v2, 1')
            a.e('buffer_atomic_add v2, v1, s[80:83], 0 offen sc1')
            a.e('s_mov_b64 exec, -1')
            a.label('L_nocount')
        for tq in range(8):
            a.e(f'v_xor_b32 v{TMP+tq}, {tq<<5}, v{V_XB}')
        for qt in range(3):
            for j in range(4):
                for uu in range(2):
                    r = AX + (qt*4 + j)*4 + uu*2
                    off = (sl(0)*8192 + qt*4096) if qt < 2 else sl(1)*8192
                    a.e(f'ds_read_b64 a[{r}:{r+1}], v{TMP+2*j+uu} offset:{off}')
        a.e('s_waitcnt lgkmcnt(0)')
        if u == 1: stamp()
        dma_wq(u, 2, sl(0)); dma_wq(u, 3, sl(1)); flush()
        a.e(f's_mov_b32 s{S_STEP}, 0')
        if cfg.rotA: a.e(f's_mul_i32 s{S_ROT}, s{S_HH}, s{S_ISA[u]}')
        else: a.e(f's_mov_b32 s{S_ROT}, 0')
        wslot = [sl(2), sl(3), sl(0), sl(1)]
        for j in range(4):
            wait_vm(f'W{j}')
            after = None
            if j == 0: after = lambda: dma_kv('Ka', u, 'K', sl(2), '')
            if j == 1: after = lambda: dma_kv('Va', u, 'V', sl(3), '')
            pv(wslot[j], lambda qt, j=j: ax(qt, j), j == 0, after)
        a.nop(8)
        stamp()
        if u == 2: wait_vm('ST')
        a.e('s_barrier')
        if u == 2: set_flag(1, 'L_flag1')
        def after_in():
            dma_kv('Kb', u, 'K', sl(0), ''); dma_kv('Vb', u, 'V', sl(1), '')
        exchange('Q', sl(0), sl(1), after_in)
        stamp()
        for i in range(96):
            a.e(f'v_mov_b32 v{O+i}, 0')
            if i % 12 == 11: pump()
        flush()
        for qt in range(3):
            a.e(f'v_mov_b32 v{M_(qt)}, 0'); a.e(f'v_mov_b32 v{L_(qt)}, 0')
        a.e(f's_mov_b32 s{S_THR}, 0xff800000'); a.e(f's_mov_b32 s{S_FLOOR}, 0xff800000')
        steady = ['Ka']*8 + ['Va']*8 + ['Kb']*8 + ['Vb']*8
        assert a.vm[-32:] == steady, a.vm
        vm0 = list(a.vm)
        variants = [('A', cfg.flA, cfg.flA), ('B', cfg.flBK, cfg.flBV)]
        if variants[0][1:] == variants[1][1:]: variants = variants[:1]
        a.e(f's_mov_b32 s{S_CNT}, 7')
        if len(variants) == 2:
            a.e(f's_cmp_eq_u32 s{S_ISA[u]}, 0'); a.e(f's_cbranch_scc1 L_loopB{u}')
        for vi, (nm, fk, fv) in enumerate(variants):
            a.vm = list(vm0)
            a.label(f'L_loop{nm}{u}')
            start = len(a.L)
            block(sl(2), sl(3), 'Ka', 'Va', lambda: dma_kv('Ka', u, 'K', sl(2), fk), lambda: dma_kv('Va', u, 'V', sl(3), fv))
            block(sl(0), sl(1), 'Kb', 'Vb', lambda: dma_kv('Kb', u, 'K', sl(0), fk), lambda: dma_kv('Vb', u, 'V', sl(1), fv))
            a.e(f's_sub_u32 s{S_CNT}, s{S_CNT}, 1'); a.e(f's_cmp_lg_u32 s{S_CNT}, 0'); a.e(f's_cbranch_scc1 L_loop{nm}{u}')
            assert not pend and a.vm[-32:] == steady, a.vm
            loops.append((start, len(a.L)))
            if len(variants) == 2 and vi == 0: a.e(f's_branch L_loopdone{u}')
        a.label(f'L_loopdone{u}')
        stamp()
        block(sl(2), sl(3), 'Ka', 'Va', lambda: dma_wo(u, 0, sl(2)), lambda: dma_wo(u, 1, sl(3)))
        block(sl(0), sl(1), 'Kb', 'Vb', None, None)
        stamp()
        a.c('--- stats')
        for qt in range(3): allreduce(L_(qt), 'v_add_f32')
        t = TMP
        a.e(f'v_and_b32 v{t}, 15, v{V_LANE}'); a.e(f'v_lshlrev_b32 v{t}, 3, v{t}')
        a.e(f'v_add_u32 v{t}, {AUX+6144}, v{t}')
        a.e(f's_lshl_b32 s{S_T}, s{S_W}, 13'); a.e(f'v_add_u32 v{t+1}, s{S_T}, v{t}')
        for qt in range(3): a.e(f'ds_write_b64 v{t+1}, {vr(M_(qt), 2)} offset:{qt*128}')
        a.e('s_waitcnt lgkmcnt(0)'); a.e('s_barrier')
        ST = S
        for qt in range(3):
            for w2 in range(4):
                a.e(f'ds_read_b64 {vr(ST+(qt*4+w2)*2, 2)}, v{t} offset:{w2*8192+qt*128}')
        a.e('s_waitcnt lgkmcnt(0)')
        for qt in range(3):
            m = lambda w2: ST + (qt*4+w2)*2
            mm = t + 2 + qt
            a.e(f'v_max3_f32 v{mm}, v{m(0)}, v{m(1)}, v{m(2)}'); a.e(f'v_max_f32 v{mm}, v{mm}, v{m(3)}')
            for w2 in range(4): a.e(f'v_sub_f32 v{m(w2)}, v{m(w2)}, v{mm}')
            a.e(f'v_sub_f32 v{M_(qt)}, v{M_(qt)}, v{mm}')
            for w2 in range(4): a.e(f'v_exp_f32 v{m(w2)}, v{m(w2)}')
            a.e(f'v_exp_f32 v{M_(qt)}, v{M_(qt)}')
            a.e(f'v_mul_f32 v{t+5}, v{m(0)}, v{m(0)+1}')
            for w2 in range(1, 4): a.e(f'v_fma_f32 v{t+5}, v{m(w2)}, v{m(w2)+1}, v{t+5}')
            a.e(f'v_rcp_f32 v{t+5}, v{t+5}'); a.nop(1)
            a.e(f'v_mul_f32 v{L_(qt)}, v{M_(qt)}, v{t+5}')
        for tau in range(8):
            for qt in range(3):
                for r in range(4):
                    x = Oreg(tau, qt) + r
                    a.e(f'v_mul_f32 v{x}, v{x}, v{L_(qt)}')
        exchange('O', sl(0), sl(1), lambda: (dma_wo(u, 2, sl(0)), dma_wo(u, 3, sl(1))))
        stamp()
        oslot = [sl(2), sl(3), sl(0), sl(1)]
        for s in range(4):
            wait_vm(f'WO{s}')
            after = None
            if u == 1:
                after = [lambda: dma_x(2, 0, oslot[0]), lambda: dma_x(2, 1, oslot[1]), lambda: dma_wq(2, 0, oslot[2]), lambda: dma_wq(2, 1, oslot[3])][s]
            pv(oslot[s], lambda qt, s=s: ax(qt, s), s == 0, after)
        a.nop(8)
        stamp()
        for qt in range(3):
            for pi in range(4):
                d = S + (qt*4+pi)*4
                for h2 in range(2):
                    x = Oreg(2*pi+h2, qt)
                    a.e(f'v_cvt_pk_bf16_f32 v{d+2*h2}, v{x}, v{x+1}'); a.e(f'v_cvt_pk_bf16_f32 v{d+2*h2+1}, v{x+2}, v{x+3}')
        r = SRD[u]['PT']
        for qt in range(3):
            a.e(f's_mov_b32 s{S_T3}, {qt*4096}')
            for pi in range(4):
                d = S + (qt*4+pi)*4
                a.vmop('ST', f'buffer_store_dwordx4 {vr(d, 4)}, v{V_ST}, s[{r}:{r+3}], s{S_T3} offen offset:{pi*1024}{cfg.st_flags}')
            pump()

    dma_x(1, 0, 0); dma_x(1, 1, 1); dma_wq(1, 0, 2); dma_wq(1, 1, 3); flush()
    unit(1)
    unit(2)
    a.c('================ final reduce')
    a.wait_vm_all()
    a.e('s_barrier')
    set_flag(2, 'L_flag2')
    stamp()
    a.e('s_load_dwordx4 s[28:31], s[0:1], 80')
    a.e('s_load_dwordx2 s[32:33], s[0:1], 96')
    a.e(f's_lshl_b32 s{S_T}, s{S_W}, 6'); a.e(f'v_add_u32 v1, s{S_T}, v{V_LANE}')
    a.e(f's_bfe_u32 s{S_T+1}, s{S_FG[1]}, 0x50002')
    a.e(f's_mul_i32 s{S_T+2}, s{S_T+1}, 1536')
    a.e(f'v_lshlrev_b32 v2, 3, v1'); a.e(f'v_add_u32 v2, s{S_T+2}, v2')
    a.e(f's_mul_i32 s{S_T+2}, s{S_T+1}, 96')
    a.e(f'v_lshrrev_b32 v3, 1, v1'); a.e(f'v_add_u32 v3, s{S_T+2}, v3')
    a.e('v_and_b32 v4, 1, v1')
    a.e('v_lshrrev_b32 v5, 8, v3'); a.e('v_mul_u32_u24 v5, 21846, v5'); a.e('v_lshrrev_b32 v5, 16, v5')
    a.e('v_mul_u32_u24 v6, 768, v5'); a.e('v_sub_u32 v6, v3, v6')
    a.e('v_lshrrev_b32 v7, 6, v6'); a.e('v_and_b32 v8, 63, v6')
    a.e('v_lshrrev_b32 v9, 2, v7'); a.e('v_and_b32 v10, 3, v7')
    a.e('v_add_u32 v11, v5, v10'); a.e('v_lshlrev_b32 v11, 1, v11'); a.e('v_add_u32 v11, v11, v4'); a.e('v_and_b32 v11, 7, v11')
    a.e('v_and_b32 v12, 15, v8'); a.e('v_lshl_add_u32 v12, v9, 4, v12')
    a.e('v_lshlrev_b32 v12, 11, v12')
    a.e('v_lshl_add_u32 v12, v5, 8, v12'); a.e('v_lshl_add_u32 v12, v11, 5, v12')
    a.e('v_lshrrev_b32 v13, 4, v8'); a.e('v_lshl_add_u32 v12, v13, 3, v12')
    a.e('s_waitcnt lgkmcnt(0)')
    a.e('s_mov_b32 s36, s28'); a.e('s_mov_b32 s37, s29'); a.e('s_mov_b32 s38, 786432'); a.e('s_mov_b32 s39, 0x20000')
    a.e('s_mov_b32 s40, s30'); a.e('s_mov_b32 s41, s31'); a.e('s_mov_b32 s42, 256'); a.e('s_mov_b32 s43, 0x20000')
    for u in (1, 2):
        a.e(f's_lshr_b32 s{S_T}, s{S_FG[u]}, 7')
        a.e(f's_cmp_lg_u32 s{S_W}, 0'); a.e(f's_cbranch_scc1 L_pd{u}')
        a.e(f'v_and_b32 v14, 31, v{V_LANE}'); a.e('v_lshlrev_b32 v14, 2, v14')
        a.e(f's_lshl_b32 s{S_T+1}, s{S_T}, 7'); a.e(f's_mov_b32 s{S_T+2}, 4000')
        a.e('v_mov_b32 v16, 0')
        a.label(f'L_poll{u}')
        a.e(f'buffer_load_dword v15, v14, s[{R_FLG}:{R_FLG+3}], s{S_T+1} offen sc1')
        a.e(f'buffer_load_dword v17, v16, s[40:43], 0 offen sc1')
        a.e('s_waitcnt vmcnt(0)')
        a.e('v_cmp_eq_u32 vcc, 1, v15')
        a.e('v_mov_b32 v18, 0x100'); a.e('v_cmp_eq_u32 s[44:45], v18, v17')
        a.e('s_nop 1')
        a.e('s_and_b64 vcc, vcc, s[44:45]'); a.e('s_cmp_eq_u64 vcc, -1'); a.e(f's_cbranch_scc1 L_pd{u}')
        a.e('s_sleep 2')
        a.e(f's_sub_u32 s{S_T+2}, s{S_T+2}, 1'); a.e(f's_cmp_lg_u32 s{S_T+2}, 0'); a.e(f's_cbranch_scc1 L_poll{u}')
        a.label(f'L_pd{u}')
        a.e('s_barrier')
        if u == 2: stamp()
        a.e(f's_cmp_eq_u32 s{S_W}, 3'); a.e(f's_cbranch_scc1 L_rd{u}')
        a.e(f's_mul_i32 s{S_T+1}, s{S_T}, 1572864')
        a.e(f's_add_u32 s44, s32, s{S_T+1}'); a.e('s_addc_u32 s45, s33, 0'); a.e('s_mov_b32 s46, 1572864'); a.e('s_mov_b32 s47, 0x20000')
        for h in range(32):
            a.e(f's_mov_b32 s48, {h*49152}')
            a.e(f'buffer_load_dwordx2 v[{48+2*h}:{49+2*h}], v2, s[44:47], s48 offen sc1')
        a.e(f's_and_b32 s49, s{S_T}, 7'); a.e('s_mul_i32 s49, s49, 98304'); a.e(f's_lshr_b32 s50, s{S_T}, 3'); a.e('s_lshl_b32 s50, s50, 10'); a.e('s_add_u32 s49, s49, s50')
        for i in range(4): a.e(f'v_mov_b32 v{20+i}, 0')
        for h in range(32):
            a.e(f's_waitcnt vmcnt({31-h})')
            for d in range(2):
                r = 48 + 2*h + d
                a.e(f'v_lshlrev_b32 v24, 16, v{r}'); a.e(f'v_and_b32 v25, 0xffff0000, v{r}')
                a.e(f'v_add_f32 v{20+2*d}, v{20+2*d}, v24'); a.e(f'v_add_f32 v{21+2*d}, v{21+2*d}, v25')
        a.e(f'v_cvt_pk_bf16_f32 v{26+2*u}, v20, v21'); a.e(f'v_cvt_pk_bf16_f32 v{27+2*u}, v22, v23')
        a.e(f'buffer_store_dwordx2 v[{26+2*u}:{27+2*u}], v12, s[36:39], s49 offen')
        a.label(f'L_rd{u}')
    a.e('s_waitcnt vmcnt(0)')
    if cfg.stamps:
        stamp()
        a.e('s_add_u32 s32, s32, 0x4000000'); a.e('s_addc_u32 s33, s33, 0'); a.e('s_mov_b32 s34, 0x100000'); a.e('s_mov_b32 s35, 0x20000')
        a.e(f's_lshl_b32 s94, s2, 2'); a.e(f's_add_u32 s94, s94, s{S_W}'); a.e('s_lshl_b32 s94, s94, 7')
        a.e('v_mov_b32 v1, 0')
        a.e(f'buffer_store_dword v255, v1, s[32:35], s94 offen')
        for i in range(nst[0]):
            a.e(f'v_mov_b32 v2, s{STAMP0+i}')
            a.e(f'buffer_store_dword v2, v1, s[32:35], s94 offen offset:{4*i+4}')
            a.e('s_nop 1')
        a.e('s_waitcnt vmcnt(0)')
    a.label('L_end')
    a.e('s_endpgm')
    a.label('L_rescale')
    t = TMP
    for qt in range(3): allreduce(TMP+qt, 'v_max_f32')
    for qt in range(3): a.e(f'v_max_f32 v{t+qt}, s{S_FLOOR}, v{t+qt}')
    for qt in range(3):
        a.e(f'v_add_f32 v{M_(qt)}, v{M_(qt)}, v{t+qt}')
        a.e(f'v_max_f32 v{t+4+qt}, 0, v{t+qt}')
        a.e(f'v_sub_f32 v{t+4+qt}, 0, v{t+4+qt}')
    for qt in range(3): a.e(f'v_exp_f32 v{t+4+qt}, v{t+4+qt}')
    for kt in range(2):
        for qt in range(3):
            for r in range(4):
                x = Sreg(kt, qt) + r
                a.e(f'v_sub_f32 v{x}, v{x}, v{t+qt}')
    for qt in range(3): a.e(f'v_mul_f32 v{L_(qt)}, v{L_(qt)}, v{t+4+qt}')
    for tau in range(8):
        for qt in range(3):
            for r in range(4):
                x = Oreg(tau, qt) + r
                a.e(f'v_mul_f32 v{x}, v{x}, v{t+4+qt}')
    a.e(f's_mov_b32 s{S_THR}, {f32bits(cfg.thr):#x}'); a.e(f's_mov_b32 s{S_FLOOR}, 0')
    a.e(f's_setpc_b64 s[{S_RET}:{S_RET+1}]')

    a.e('.section .rodata,"a"')
    a.e('.p2align 6'); a.e(f'.amdhsa_kernel {KN}')
    a.e('  .amdhsa_next_free_vgpr 352'); a.e('  .amdhsa_next_free_sgpr 102'); a.e('  .amdhsa_accum_offset 256')
    a.e('  .amdhsa_group_segment_fixed_size 0'); a.e('  .amdhsa_kernarg_size 104'); a.e('  .amdhsa_user_sgpr_count 2')
    a.e('  .amdhsa_user_sgpr_kernarg_segment_ptr 1'); a.e('  .amdhsa_system_sgpr_workgroup_id_x 1')
    a.e('  .amdhsa_float_denorm_mode_32 3'); a.e('  .amdhsa_float_denorm_mode_16_64 3')
    a.e('.end_amdhsa_kernel')
    L = [l for l in a.L if l is not None]
    probs = check(L)
    for (s0, s1) in loops: probs += check(a.L[s0:s1] + a.L[s0:s1])
    return a.text(), probs, nst[0]

if __name__ == '__main__':
    cfg = Cfg()
    for kv in sys.argv[2:]:
        k, v = kv.split('=', 1); setattr(cfg, k, eval(v))
    txt, probs, n = gen(cfg)
    for p in probs: print('HAZARD', p)
    open(sys.argv[1], 'w').write(txt)
    print('written', sys.argv[1], len(txt), 'stamps', n)
```

```python
import sys, struct, math
from asmlib import Asm, check

KN = 'concat_heads__gqa_block_cached__mha_block_cached__near_ridge_kernel'

V_LANE = 0
TRA = 16; KA = 24; DE, DO = 28, 29; ML = 30
def M_(qt): return ML + 2*qt
def L_(qt): return ML + 2*qt + 1
TMP = 36; S0 = 48; S1 = 72; P = 96; XT = 108; O = 120
IN = 48
QE, QO, OE, OO = 216, 217, 218, 219
V_L16, V_XB, V_ST = 220, 221, 222
def Oreg(tau, qt): return O + (tau*3 + qt)*4
def Sreg(buf, kt, qt): return (S0 if buf == 0 else S1) + (kt*3 + qt)*4
AQ, AX, AK, AV = 0, 48, 96, 128
def ar(b, n): return f'a[{b}:{b+n-1}]'
def aq(qt, s): return ar(AQ + (qt*4 + s)*4, 4)
def ax(qt, s): return ar(AX + (qt*4 + s)*4, 4)
def vr(b, n): return f'v[{b}:{b+n-1}]' if n > 1 else f'v{b}'
R_FLG = 4
S_FG = {1: 8, 2: 9}
S_ISA = {1: 10, 2: 11}
STAMP0 = 12
SRD = {1: dict(K=28, V=32, WQ=36, X=40, WO=44, PT=48), 2: dict(K=52, V=56, WQ=60, X=64, WO=68, PT=72)}
S_W, S_LB, S_OFF, S_T = 76, 77, 78, 79
S_CNT, S_THR, S_FLOOR, S_C, S_RET = 86, 87, 88, 89, 90
S_WQO, S_XO, S_T2, S_T3, S_STEP, S_ROT, S_T4, S_W8 = 92, 93, 94, 95, 96, 97, 98, 99
S_HH = 3
S_RW = 2
S_WB = 85
AUX = 131072
FLG_OFF = 0x2000000

class Cfg:
    afirst = 0x55
    flA = ''
    flBK = ' nt'; flBV = ' nt'
    rotA = True
    rotW = True
    nt_w = False
    thr = 8.0
    st_flags = ' sc1'
    stamps = False
    fine = None
    dynflags = True
    late_st = True

def f32bits(x): return struct.unpack('<I', struct.pack('<f', x))[0]

def gen(cfg=Cfg()):
    a = Asm()
    a.e(f'; @launch grid=(256,1,1) block=(256,1,1) lds=163840')
    a.e('.amdgcn_target "amdgcn-amd-amdhsa--gfx950"')
    a.e('.text')
    a.e(f'.globl {KN}'); a.e('.p2align 8'); a.e(f'.type {KN},@function'); a.label(KN)
    a.e('s_cmp_ge_u32 s2, 256'); a.e('s_cbranch_scc1 L_end')
    nst = [0]
    fon = [False]
    def fs():
        if not (cfg.fine and fon[0]): return
        a.e('s_memrealtime s[100:101]'); a.e('s_waitcnt lgkmcnt(0)'); a.e(f's_mov_b32 s{STAMP0+nst[0]}, s100'); nst[0] += 1
        assert nst[0] <= 16
    def stamp():
        if cfg.fine or not cfg.stamps: return
        a.e('s_memrealtime s[100:101]'); a.e('s_waitcnt lgkmcnt(0)'); a.e(f's_mov_b32 s{STAMP0+nst[0]}, s100'); nst[0] += 1
        assert nst[0] <= 16
    if cfg.stamps:
        a.e('s_memrealtime s[100:101]'); a.e('s_waitcnt lgkmcnt(0)'); a.e('v_mov_b32 v255, s100')
        a.e('s_memtime s[100:101]'); a.e('s_waitcnt lgkmcnt(0)'); a.e('v_mov_b32 v254, s100')
        a.e('v_mov_b32 v251, s2')
    a.e('s_load_dwordx16 s[12:27], s[0:1], 0')
    a.e('s_load_dwordx4 s[84:87], s[0:1], 64')
    a.e('s_load_dwordx4 s[88:91], s[0:1], 88')
    a.e(f'v_lshrrev_b32 v1, 6, v0')
    a.e(f'v_and_b32 v{V_LANE}, 63, v0')
    a.e(f'v_readfirstlane_b32 s{S_W}, v1')
    a.e(f'v_and_b32 v2, 15, v{V_LANE}'); a.e(f'v_lshrrev_b32 v3, 4, v{V_LANE}')
    a.e(f'v_lshlrev_b32 v{V_L16}, 4, v{V_LANE}')
    a.e(f's_lshl_b32 s{S_LB}, s{S_W}, 15')
    a.e('v_lshlrev_b32 v4, 1, v3'); a.e('v_xor_b32 v4, v2, v4'); a.e('v_lshlrev_b32 v4, 4, v4')
    a.e(f'v_lshl_add_u32 v{DE}, v3, 8, v4'); a.e(f'v_xor_b32 v{DO}, 0x80, v{DE}')
    a.e(f'v_lshl_add_u32 v{QE}, v3, 13, v4'); a.e(f'v_xor_b32 v{QO}, 0x80, v{QE}')
    a.e(f'v_lshl_add_u32 v{OE}, v3, 10, v4'); a.e(f'v_xor_b32 v{OO}, 0x80, v{OE}')
    a.e('v_and_b32 v5, 7, v2'); a.e('v_lshlrev_b32 v5, 1, v5')
    a.e('v_xor_b32 v6, v3, v5'); a.e('v_lshlrev_b32 v6, 4, v6')
    a.e('v_lshl_add_u32 v6, v2, 8, v6'); a.e(f'v_add_u32 v{KA}, s{S_LB}, v6')
    for s in range(1, 4): a.e(f'v_xor_b32 v{KA+s}, {s<<6}, v{KA}')
    a.e('v_lshrrev_b32 v6, 1, v3'); a.e('v_xor_b32 v6, v6, v5'); a.e('v_lshlrev_b32 v6, 4, v6')
    a.e('v_and_b32 v7, 1, v3'); a.e('v_lshl_add_u32 v6, v7, 3, v6')
    a.e('v_lshl_add_u32 v6, v2, 8, v6'); a.e(f'v_add_u32 v{V_XB}, s{S_LB}, v6')
    a.e('v_lshrrev_b32 v6, 2, v2'); a.e('v_lshl_add_u32 v6, v3, 2, v6')
    a.e('v_and_b32 v7, 7, v6'); a.e('v_lshlrev_b32 v7, 1, v7')
    a.e('v_bfe_u32 v8, v2, 1, 1'); a.e('v_xor_b32 v7, v8, v7'); a.e('v_lshlrev_b32 v7, 4, v7')
    a.e('v_and_b32 v8, 1, v2'); a.e('v_lshl_add_u32 v7, v8, 3, v7')
    a.e('v_lshl_add_u32 v7, v6, 8, v7'); a.e(f'v_add_u32 v7, s{S_LB}, v7')
    a.e(f's_lshl_b32 s{S_T}, s{S_W}, 1')
    for tau in range(8):
        a.e(f's_add_u32 s{S_T+1}, s{S_T}, {tau}'); a.e(f's_and_b32 s{S_T+1}, s{S_T+1}, 7'); a.e(f's_lshl_b32 s{S_T+1}, s{S_T+1}, 5')
        a.e(f'v_xor_b32 v{TRA+tau}, s{S_T+1}, v7')
    a.e(f's_mul_i32 s{S_T}, s{S_W}, 12288'); a.e(f'v_add_u32 v{V_ST}, s{S_T}, v{V_L16}')
    a.e(f's_lshl_b32 s{S_W8}, s{S_W}, 13')
    a.e('s_and_b32 s79, s2, 7'); a.e('s_lshr_b32 s80, s2, 3'); a.e('s_lshr_b32 s81, s80, 2'); a.e(f's_and_b32 s{S_HH}, s80, 3')
    a.e('s_lshl_b32 s83, s79, 2'); a.e(f's_add_u32 s83, s83, s{S_HH}')
    a.e('s_lshl_b32 s80, s81, 3'); a.e('s_add_u32 s79, s80, s79')
    a.e('s_lshl_b32 s80, s81, 5'); a.e('s_add_u32 s80, s80, s83')
    a.e(f's_mov_b32 s6, {cfg.afirst}'); a.e('s_lshr_b32 s6, s6, s81'); a.e(f's_and_b32 s{S_ISA[1]}, s6, 1'); a.e(f's_xor_b32 s{S_ISA[2]}, s{S_ISA[1]}, 1')
    if cfg.rotW: a.e(f's_lshr_b32 s{S_RW}, s81, 1'); a.e(f's_and_b32 s{S_RW}, s{S_RW}, 3')
    else: a.e(f's_mov_b32 s{S_RW}, 0')
    a.e('s_waitcnt lgkmcnt(0)')
    for u in (1, 2):
        R = SRD[u]
        a.e(f's_cmp_eq_u32 s{S_ISA[u]}, 1')
        a.e('s_cselect_b32 s92, s79, s80'); a.e('s_cselect_b32 s93, 0, 256'); a.e('s_cselect_b32 s94, 0, 8')
        for name, pa, pb in (('X', 12, 22), ('K', 14, 24), ('V', 16, 26), ('WQ', 18, 84), ('WO', 20, 86)):
            r = R[name]
            a.e(f's_cselect_b32 s{r}, s{pa}, s{pb}'); a.e(f's_cselect_b32 s{r+1}, s{pa+1}, s{pb+1}')
        a.e('s_lshl_b32 s95, s92, 19'); a.e('s_lshr_b32 s96, s92, 13')
        for name in ('K', 'V'):
            r = R[name]
            a.e(f's_add_u32 s{r}, s{r}, s95'); a.e(f's_addc_u32 s{r+1}, s{r+1}, s96')
            a.e(f's_mov_b32 s{r+2}, 0x80000'); a.e(f's_mov_b32 s{r+3}, 0x20000')
        r = R['X']; a.e('s_mul_i32 s95, s81, 49152')
        a.e(f's_add_u32 s{r}, s{r}, s95'); a.e(f's_addc_u32 s{r+1}, s{r+1}, 0'); a.e(f's_mov_b32 s{r+2}, 49152'); a.e(f's_mov_b32 s{r+3}, 0x20000')
        r = R['WQ']; a.e('s_lshl_b32 s95, s83, 8')
        a.e(f's_add_u32 s{r}, s{r}, s95'); a.e(f's_addc_u32 s{r+1}, s{r+1}, 0'); a.e(f's_sub_u32 s{r+2}, 0x400000, s95'); a.e(f's_mov_b32 s{r+3}, 0x20000')
        r = R['WO']; a.e('s_lshl_b32 s95, s83, 17')
        a.e(f's_add_u32 s{r}, s{r}, s95'); a.e(f's_addc_u32 s{r+1}, s{r+1}, 0'); a.e(f's_mov_b32 s{r+2}, 0x20000'); a.e(f's_mov_b32 s{r+3}, 0x20000')
        r = R['PT']; a.e('s_add_u32 s93, s93, s80'); a.e('s_mul_i32 s95, s93, 49152'); a.e('s_mul_hi_u32 s96, s93, 49152')
        a.e(f's_add_u32 s{r}, s90, s95'); a.e(f's_addc_u32 s{r+1}, s91, s96'); a.e(f's_mov_b32 s{r+2}, 49152'); a.e(f's_mov_b32 s{r+3}, 0x20000')
        a.e('s_add_u32 s94, s94, s81'); a.e('s_lshl_b32 s94, s94, 7'); a.e('s_lshl_b32 s95, s83, 2'); a.e(f's_add_u32 s{S_FG[u]}, s94, s95')
    a.e(f's_add_u32 s{R_FLG}, s90, {FLG_OFF:#x}'); a.e(f's_addc_u32 s{R_FLG+1}, s91, 0'); a.e(f's_mov_b32 s{R_FLG+2}, 2048'); a.e(f's_mov_b32 s{R_FLG+3}, 0x20000')
    a.e(f's_lshl_b32 s{S_WQO}, s{S_W}, 20'); a.e(f's_lshl_b32 s{S_XO}, s{S_W}, 8')
    a.e('s_mov_b32 s80, s88'); a.e('s_mov_b32 s81, s89'); a.e('s_mov_b32 s82, 256'); a.e('s_mov_b32 s83, 0x20000')
    a.e(f's_mov_b32 s{S_C}, {f32bits(math.log2(math.e) / math.sqrt(128.0)):#x}')
    a.e(f's_cmp_lg_u32 s{S_W}, 0'); a.e('s_cbranch_scc1 L_noclear')
    a.e('s_mov_b64 exec, 1'); a.e('v_mov_b32 v1, 0')
    a.e(f'buffer_store_dword v1, v1, s[{R_FLG}:{R_FLG+3}], s{S_FG[1]} offen sc1')
    a.e(f'buffer_store_dword v1, v1, s[{R_FLG}:{R_FLG+3}], s{S_FG[2]} offen sc1')
    a.e('s_mov_b64 exec, -1')
    a.label('L_noclear')

    ntw = ' nt' if cfg.nt_w else ''
    pend = []
    def pump(n=1):
        for _ in range(n):
            if not pend: return
            tag, th = pend.pop(0); th()
    def flush(): pump(len(pend))
    def wait_vm(tag):
        while any(t == tag for t, _ in pend): pump()
        a.wait_vm(tag)
    DYN = 'DYN'
    dynid = [0]
    def dma(tag, srd, slot, vE, vO, RS, sbase, const, npieces=8, flags='', pre=None, dyn=None):
        for p in range(npieces):
            def th(p=p):
                if p == 0 and pre: pre()
                if p % 4 == 0: a.e(f's_add_u32 m0, s{S_LB}, {slot*8192 + (p//4)*4096}')
                off = const + p*4*RS - (p & 3)*1024
                if RS == 256:
                    if p % 4 == 0: a.e(f's_add_u32 s{S_T2}, s{sbase}, {off}')
                else:
                    a.e(f's_add_u32 s{S_T2}, s{sbase}, {off}')
                v = vE if p % 2 == 0 else vO
                if dyn is None:
                    a.vmop(tag, f'buffer_load_dwordx4 v{v}, s[{srd}:{srd+3}], s{S_T2} offen offset:{(p&3)*1024}{flags} lds')
                else:
                    isa, fa, fb = dyn
                    k = dynid[0]; dynid[0] += 1
                    a.e(f's_cmp_eq_u32 s{isa}, 0'); a.e(f's_cbranch_scc1 L_dyb{k}')
                    a.e(f'buffer_load_dwordx4 v{v}, s[{srd}:{srd+3}], s{S_T2} offen offset:{(p&3)*1024}{fa} lds')
                    a.e(f's_branch L_dye{k}'); a.label(f'L_dyb{k}')
                    a.vmop(tag, f'buffer_load_dwordx4 v{v}, s[{srd}:{srd+3}], s{S_T2} offen offset:{(p&3)*1024}{fb} lds')
                    a.label(f'L_dye{k}')
            pend.append((tag, th))
    def dma_kv(n, u, which, slot, fl):
        pre = None
        if which == 'K':
            def pre():
                a.e(f's_add_u32 s{S_T4}, s{S_STEP}, s{S_ROT}'); a.e(f's_and_b32 s{S_T4}, s{S_T4}, 3')
                a.e(f's_and_b32 s{S_OFF}, s{S_STEP}, -4'); a.e(f's_or_b32 s{S_OFF}, s{S_OFF}, s{S_T4}')
                a.e(f's_lshl_b32 s{S_OFF}, s{S_OFF}, 15'); a.e(f's_add_u32 s{S_OFF}, s{S_OFF}, s{S_W8}')
                a.e(f's_add_u32 s{S_STEP}, s{S_STEP}, 1')
            dyn = None
            if fl == DYN:
                fl = ''
                if cfg.dynflags and cfg.flA != cfg.flBK: dyn = (S_ISA[u], cfg.flA, cfg.flBK)
            dma(f'K{n&1}', SRD[u]['K'], slot, DE, DO, 256, S_OFF, 0, flags=fl, pre=pre, dyn=dyn)
        else:
            def pre():
                a.e(f's_add_u32 s{S_T4}, s{S_VSTEP}, s{S_ROT}'); a.e(f's_and_b32 s{S_T4}, s{S_T4}, 3')
                a.e(f's_and_b32 s{S_OFFV}, s{S_VSTEP}, -4'); a.e(f's_or_b32 s{S_OFFV}, s{S_OFFV}, s{S_T4}')
                a.e(f's_lshl_b32 s{S_OFFV}, s{S_OFFV}, 15'); a.e(f's_add_u32 s{S_OFFV}, s{S_OFFV}, s{S_W8}')
                a.e(f's_add_u32 s{S_VSTEP}, s{S_VSTEP}, 1')
            dyn = None
            if fl == DYN:
                fl = ''
                if cfg.dynflags and cfg.flA != cfg.flBV: dyn = (S_ISA[u], cfg.flA, cfg.flBV)
            dma(f'V{n&1}', SRD[u]['V'], slot, DE, DO, 256, S_OFFV, 0, flags=fl, pre=pre, dyn=dyn)
    S_VSTEP, S_OFFV = 84, 83
    def rot_pre(j, base_sgpr, shift):
        def pre():
            a.e(f's_add_u32 s{S_WB}, s{S_RW}, {j}'); a.e(f's_and_b32 s{S_WB}, s{S_WB}, 3'); a.e(f's_lshl_b32 s{S_WB}, s{S_WB}, {shift}')
            a.e(f's_add_u32 s{S_WB}, s{S_WB}, s{base_sgpr}')
        return pre
    def dma_x(u, part, slot): dma(f'X{part}', SRD[u]['X'], slot, OE, OO, 1024, S_XO, part*32*1024, npieces=8 if part == 0 else 4, flags=ntw)
    def dma_wq(u, j, slot): dma(f'W{j}', SRD[u]['WQ'], slot, QE, QO, 8192, S_WB, 0, flags=ntw, pre=rot_pre(j, S_WQO, 18))
    def dma_wo(u, s, slot): dma(f'WO{s}', SRD[u]['WO'], slot, OE, OO, 1024, S_WB, 0, flags=ntw, pre=rot_pre(s, S_XO, 15))

    def tr_reads(slot):
        for tau in range(8):
            a.e(f'ds_read_b64_tr_b16 {ar(AV+4*tau, 2)}, v{TRA+tau} offset:{slot*8192}')
            a.e(f'ds_read_b64_tr_b16 {ar(AV+4*tau+2, 2)}, v{TRA+tau} offset:{slot*8192+4096}')
    def k_reads(slot):
        for s in range(4):
            for kt in range(2):
                a.e(f'ds_read_b128 {ar(AK+(s*2+kt)*4, 4)}, v{KA+s} offset:{slot*8192+kt*4096}')
    def pv_mfmas(bfrag, first):
        out = []
        for tau in range(8):
            for qt in range(3):
                d = vr(Oreg(tau, qt), 4)
                out.append(f'v_mfma_f32_16x16x32_bf16 {d}, {ar(AV+4*tau, 4)}, {bfrag(qt)}, {"0" if first else d}')
        return out
    def qk_mfmas(buf):
        out = []
        for s in range(4):
            for kt in range(2):
                for qt in range(3):
                    d = vr(Sreg(buf, kt, qt), 4)
                    out.append(f'v_mfma_f32_16x16x32_bf16 {d}, {ar(AK+(s*2+kt)*4, 4)}, {aq(qt, s)}, {"0" if s == 0 else d}')
        return out
    def pvw(slot, bfrag, first, after_reads):
        tr_reads(slot)
        a.e('s_waitcnt lgkmcnt(0)')
        if after_reads: after_reads()
        for i, m in enumerate(pv_mfmas(bfrag, first)):
            a.e(m)
            if i % 3 == 2: pump()
    def interleave(mf, va, extras):
        tot = sum(c for c, _ in va)
        n = len(mf); done = 0; vi = 0
        if n == 0:
            for c, s_ in va: a.e(s_)
            for k in sorted(extras): extras[k]()
            return
        for i, m in enumerate(mf):
            a.e(m)
            target = tot * (i + 1) / n
            while vi < len(va) and done + va[vi][0] / 2 <= target:
                a.e(va[vi][1]); done += va[vi][0]; vi += 1
            if i in extras: extras[i]()
        while vi < len(va): a.e(va[vi][1]); vi += 1
    def sm_exp_cvt(buf):
        va = []
        def exps(qt):
            for kt in range(2):
                for r in range(4):
                    x = Sreg(buf, kt, qt) + r; va.append((8, f'v_exp_f32 v{x}, v{x}'))
        def cvts(qt):
            for kt in range(2):
                x = Sreg(buf, kt, qt)
                va.append((4, f'v_cvt_pk_bf16_f32 v{P+qt*4+kt*2}, v{x}, v{x+1}'))
                va.append((4, f'v_cvt_pk_bf16_f32 v{P+qt*4+kt*2+1}, v{x+2}, v{x+3}'))
        exps(0); exps(1); cvts(0); exps(2); cvts(1); cvts(2)
        return va
    def sm_adds(buf):
        va = []
        for kt in range(2):
            for r in range(4):
                for qt in range(3):
                    va.append((4, f'v_add_f32 v{L_(qt)}, v{L_(qt)}, v{Sreg(buf, kt, qt)+r}'))
        return va
    def sm_first(buf):
        va = []
        for kt in range(2):
            for qt in range(3):
                for r in range(4):
                    x = Sreg(buf, kt, qt) + r
                    va.append((4, f'v_fma_f32 v{x}, v{x}, s{S_C}, -v{M_(qt)}'))
        for qt in range(3):
            r0 = Sreg(buf, 0, qt); va.append((4, f'v_max3_f32 v{TMP+qt}, v{r0}, v{r0+1}, v{r0+2}'))
        for qt in range(3):
            r0 = Sreg(buf, 0, qt); r1 = Sreg(buf, 1, qt); va.append((4, f'v_max3_f32 v{TMP+qt}, v{TMP+qt}, v{r0+3}, v{r1}'))
        for qt in range(3):
            r1 = Sreg(buf, 1, qt); va.append((4, f'v_max3_f32 v{TMP+qt}, v{TMP+qt}, v{r1+1}, v{r1+2}'))
        for qt in range(3):
            r1 = Sreg(buf, 1, qt); va.append((4, f'v_max_f32 v{TMP+qt}, v{TMP+qt}, v{r1+3}'))
        va.append((4, f'v_max3_f32 v{TMP+3}, v{TMP}, v{TMP+1}, v{TMP+2}'))
        return va
    site = [0]
    def sm_check(buf):
        a.e(f'v_cmp_lt_f32 vcc, s{S_THR}, v{TMP+3}')
        k = site[0]; site[0] += 1
        a.e(f's_cbranch_vccz L_fast{k}')
        a.e(f's_call_b64 s[{S_RET}:{S_RET+1}], L_rescale{buf}')
        a.label(f'L_fast{k}')
    def kslot(sl, n): return sl(2) if n % 2 == 0 else sl(0)
    def vslot(sl, n): return sl(3) if n % 2 == 0 else sl(1)

    def stage1(i, sl, do_qk, enq):
        a.e('s_waitcnt lgkmcnt(0)')
        if enq: enq()
        mf = qk_mfmas((i+1) & 1) if do_qk else []
        def vread():
            wait_vm(f'V{i&1}'); tr_reads(vslot(sl, i))
        ex = {}
        if do_qk:
            for k in (1, 4, 7, 13, 16, 19, 21, 23): ex[k] = pump
            ex[10] = vread
        else:
            vread()
        interleave(mf, sm_exp_cvt(i & 1), ex)
        flush()
    def stage2(i, sl, do_next, enq, kread_next):
        a.e('s_waitcnt lgkmcnt(0)')
        if enq: enq()
        mf = pv_mfmas(lambda qt: vr(P+qt*4, 4), False)
        va = sm_adds(i & 1) + (sm_first((i+1) & 1) if do_next else [])
        ex = {}
        for k in (1, 4, 7, 13, 16, 19, 21, 23): ex[k] = pump
        if kread_next:
            def kread():
                wait_vm(f'K{i&1}'); k_reads(kslot(sl, i+2))
            ex[10] = kread
        interleave(mf, va, ex)
        flush()
        if do_next: sm_check((i+1) & 1)

    def allreduce(reg, op):
        t = TMP + 10
        a.e(f'v_mov_b32 v{t}, v{reg}'); a.nop(2)
        a.e(f'v_permlane32_swap_b32 v{reg}, v{t}'); a.nop(1)
        a.e(f'{op} v{reg}, v{reg}, v{t}')
        a.e(f'v_mov_b32 v{t}, v{reg}'); a.nop(2)
        a.e(f'v_permlane16_swap_b32 v{reg}, v{t}'); a.nop(1)
        a.e(f'{op} v{reg}, v{reg}, v{t}')

    def exchange(kind, slotA, slotB, after_in):
        a.c(f'--- exchange {kind}')
        t = TMP
        FA = 1
        if kind == 'O':
            a.e(f'v_and_b32 v{t}, 15, v{V_LANE}'); a.e(f'v_lshlrev_b32 v{t}, 3, v{t}')
            for rho in range(4):
                a.e(f's_sub_u32 s{S_T}, s{S_W}, {rho}'); a.e(f's_and_b32 s{S_T}, s{S_T}, 3'); a.e(f's_lshl_b32 s{S_T}, s{S_T}, 13')
                a.e(f's_add_u32 s{S_T}, s{S_T}, {AUX+6144}'); a.e(f'v_add_u32 v{t+1+rho}, s{S_T}, v{t}')
            for rho in range(4):
                for qt in range(3):
                    a.e(f'ds_read_b64 {vr(IN+(rho*3+qt)*2, 2)}, v{t+1+rho} offset:{qt*128}')
        for rho in (1, 2, 3):
            a.e(f's_add_u32 s{S_T}, s{S_W}, {rho}'); a.e(f's_and_b32 s{S_T}, s{S_T}, 3')
            if rho < 3: a.e(f's_lshl_b32 s{S_T}, s{S_T}, 15')
            else: a.e(f's_lshl_b32 s{S_T}, s{S_T}, 13'); a.e(f's_add_u32 s{S_T}, s{S_T}, {AUX}')
            a.e(f'v_add_u32 v{t+5+rho}, s{S_T}, v{V_L16}')
        for rho in (1, 2, 3):
            base = {1: slotA*8192, 2: slotB*8192, 3: 0}[rho]
            for i in range(6):
                a.e(f'ds_write_b128 v{t+5+rho}, {vr(O+24*rho+4*i, 4)} offset:{base+i*1024}')
        if kind == 'O':
            a.e('s_waitcnt lgkmcnt(15)')
            for qt in range(3):
                m = lambda rho: IN + (rho*3+qt)*2
                mm = t
                a.e(f'v_max3_f32 v{mm}, v{m(0)}, v{m(1)}, v{m(2)}'); a.e(f'v_max_f32 v{mm}, v{mm}, v{m(3)}')
                for rho in range(4): a.e(f'v_sub_f32 v{m(rho)}, v{m(rho)}, v{mm}')
                for rho in range(4): a.e(f'v_exp_f32 v{m(rho)}, v{m(rho)}')
                a.nop(1)
                a.e(f'v_mul_f32 v{t+1}, v{m(0)}, v{m(0)+1}')
                for rho in range(1, 4): a.e(f'v_fma_f32 v{t+1}, v{m(rho)}, v{m(rho)+1}, v{t+1}')
                a.e(f'v_rcp_f32 v{t+1}, v{t+1}'); a.nop(1)
                for rho in range(4): a.e(f'v_mul_f32 v{FA+rho*3+qt}, v{m(rho)}, v{t+1}')
        a.e(f'v_add_u32 v{t+2}, s{S_LB}, v{V_L16}')
        a.e(f's_lshl_b32 s{S_T}, s{S_W}, 13'); a.e(f's_add_u32 s{S_T}, s{S_T}, {AUX}')
        a.e(f'v_add_u32 v{t+3}, s{S_T}, v{V_L16}')
        a.e('s_waitcnt lgkmcnt(0)'); a.e('s_barrier')
        for rho in (1, 2, 3):
            for i in range(6):
                if rho < 3: a.e(f'ds_read_b128 {vr(IN+24*(rho-1)+4*i, 4)}, v{t+2} offset:{ {1: slotA*8192, 2: slotB*8192}[rho] + i*1024}')
                else: a.e(f'ds_read_b128 {vr(IN+24*(rho-1)+4*i, 4)}, v{t+3} offset:{i*1024}')
        if kind == 'Q':
            a.e(f'v_lshrrev_b32 v{t+4}, 5, v{V_LANE}'); a.e(f'v_lshlrev_b32 v{t+4}, 8, v{t+4}')
            a.e(f'v_and_b32 v{t+5}, 15, v{V_LANE}'); a.e(f'v_lshl_add_u32 v{t+4}, v{t+5}, 4, v{t+4}')
            a.e(f'v_bfe_u32 v{t+5}, v{V_LANE}, 4, 1'); a.e(f'v_lshl_add_u32 v{t+4}, v{t+5}, 3, v{t+4}')
            a.e(f'v_add_u32 v{t+4}, s{S_T}, v{t+4}')
            uoff = 512
        else:
            a.e(f'v_add_u32 v{t+4}, s{S_T}, v{V_L16}')
            uoff = 8
            for i in range(6):
                for r in range(4): a.e(f'v_mul_f32 v{O+4*i+r}, v{O+4*i+r}, v{FA+(i%3)}')
        a.e('s_waitcnt lgkmcnt(12)')
        for rho in (1, 2, 3):
            if rho == 2: a.e('s_waitcnt lgkmcnt(6)')
            if rho == 3:
                a.e('s_waitcnt lgkmcnt(0)')
                if after_in: after_in()
            for i in range(6):
                for r in range(4):
                    x = O + 4*i + r; y = IN + 24*(rho-1) + 4*i + r
                    if kind == 'O': a.e(f'v_fmac_f32 v{x}, v{y}, v{FA+rho*3+(i%3)}')
                    else: a.e(f'v_add_f32 v{x}, v{x}, v{y}')
        for tau in range(2):
            for qt in range(3):
                x = Oreg(tau, qt); d = IN + (tau*3+qt)*2
                a.e(f'v_cvt_pk_bf16_f32 v{d}, v{x}, v{x+1}'); a.e(f'v_cvt_pk_bf16_f32 v{d+1}, v{x+2}, v{x+3}')
        for tau in range(2):
            for qt in range(3):
                d = IN + (tau*3+qt)*2
                a.e(f'ds_write_b64 v{t+4}, {vr(d, 2)} offset:{qt*1024 + tau*uoff}')
        pump(4)
        if kind == 'O':
            for s in range(4):
                a.e(f's_add_u32 s{S_T}, s{S_RW}, {s}'); a.e(f's_and_b32 s{S_T}, s{S_T}, 3'); a.e(f's_lshl_b32 s{S_T}, s{S_T}, 13')
                a.e(f's_add_u32 s{S_T}, s{S_T}, {AUX}'); a.e(f'v_add_u32 v{t+5+s}, s{S_T}, v{V_L16}')
        else:
            a.e(f'v_add_u32 v{t+5}, {AUX}, v{V_L16}')
        a.e('s_waitcnt lgkmcnt(0)'); a.e('s_barrier')
        for s in range(4):
            for qt in range(3):
                if kind == 'Q': a.e(f'ds_read_b128 {aq(qt, s)}, v{t+5} offset:{s*8192 + qt*1024}')
                else: a.e(f'ds_read_b128 {ax(qt, s)}, v{t+5+s} offset:{qt*1024}')
        pump(4)
        a.e('s_waitcnt lgkmcnt(0)')

    def set_flag(u, lbl):
        a.e(f's_cmp_lg_u32 s{S_W}, 0'); a.e(f's_cbranch_scc1 {lbl}')
        a.e('s_mov_b64 exec, 1'); a.e(f'v_mov_b32 v{TMP}, 0'); a.e(f'v_mov_b32 v{TMP+1}, 1')
        a.e(f'buffer_store_dword v{TMP+1}, v{TMP}, s[{R_FLG}:{R_FLG+3}], s{S_FG[u]} offen sc1')
        a.e('s_mov_b64 exec, -1')
        a.label(lbl)
        a.nop(2)

    def stores(u):
        r = SRD[u]['PT']
        for qt in range(3):
            a.e(f's_mov_b32 s{S_T3}, {qt*4096}')
            for pi in range(4):
                d = IN + (qt*4+pi)*4
                a.vmop('ST', f'buffer_store_dwordx4 {vr(d, 4)}, v{V_ST}, s[{r}:{r+3}], s{S_T3} offen offset:{pi*1024}{cfg.st_flags}')
            pump()
    loops = []
    def unit(u):
        sg = 0 if u == 1 else 2
        sl = lambda n: (n + sg) & 3
        a.c(f'================ unit {u}')
        for j in range(4):
            a.e(f's_add_u32 s{S_T}, s{S_RW}, {j}'); a.e(f's_and_b32 s{S_T}, s{S_T}, 3'); a.e(f's_lshl_b32 s{S_T}, s{S_T}, 6')
            a.e(f'v_xor_b32 v{TMP+2*j}, s{S_T}, v{V_XB}'); a.e(f'v_xor_b32 v{TMP+2*j+1}, 32, v{TMP+2*j}')
        if cfg.fine == f'P{u}': fon[0] = True
        fs()
        wait_vm('X1')
        fs()
        if u == 1:
            a.e(f's_cmp_lg_u32 s{S_W}, 0'); a.e('s_cbranch_scc1 L_nocount')
            a.e('s_mov_b64 exec, 1'); a.e('v_mov_b32 v1, 0'); a.e('v_mov_b32 v2, 1')
            a.e('buffer_atomic_add v2, v1, s[80:83], 0 offen sc1')
            a.e('s_mov_b64 exec, -1')
            a.label('L_nocount')
        for qt in range(3):
            for j in range(4):
                for uu in range(2):
                    r = AX + (qt*4 + j)*4 + uu*2
                    off = (sl(0)*8192 + qt*4096) if qt < 2 else sl(1)*8192
                    a.e(f'ds_read_b64 a[{r}:{r+1}], v{TMP+2*j+uu} offset:{off}')
        a.e('s_waitcnt lgkmcnt(0)')
        if u == 1: stamp()
        dma_wq(u, 2, sl(0)); dma_wq(u, 3, sl(1)); flush()
        a.e(f's_mov_b32 s{S_STEP}, 0'); a.e(f's_mov_b32 s{S_VSTEP}, 0')
        if cfg.rotA: a.e(f's_mul_i32 s{S_ROT}, s{S_HH}, s{S_ISA[u]}')
        else: a.e(f's_mov_b32 s{S_ROT}, 0')
        wslot = [sl(2), sl(3), sl(0), sl(1)]
        for j in range(4):
            wait_vm(f'W{j}')
            fs()
            after = None
            if j == 0: after = lambda: dma_kv(0, u, 'K', sl(2), DYN)
            if j == 1: after = lambda: dma_kv(0, u, 'V', sl(3), DYN)
            pvw(wslot[j], lambda qt, j=j: ax(qt, j), j == 0, after)
            fs()
        flush()
        a.nop(8)
        stamp()
        if u == 2 and cfg.late_st: stores(1)
        if u == 2 and not cfg.late_st: wait_vm('ST')
        a.e('s_barrier')
        if u == 2 and not cfg.late_st: set_flag(1, 'L_flag1')
        fs()
        exchange('Q', sl(0), sl(1), lambda: dma_kv(1, u, 'K', sl(0), DYN))
        flush()
        fs()
        stamp()
        wait_vm('K0'); k_reads(sl(2))
        for i in range(96): a.e(f'v_mov_b32 v{O+i}, 0')
        for qt in range(3):
            a.e(f'v_mov_b32 v{M_(qt)}, 0'); a.e(f'v_mov_b32 v{L_(qt)}, 0')
        a.e(f's_mov_b32 s{S_THR}, 0xff800000'); a.e(f's_mov_b32 s{S_FLOOR}, 0xff800000')
        a.e('s_waitcnt lgkmcnt(0)')
        dma_kv(2, u, 'K', sl(2), DYN); dma_kv(1, u, 'V', sl(1), DYN)
        for i, m in enumerate(qk_mfmas(0)):
            a.e(m)
            if i % 3 == 2: pump()
        wait_vm('K1'); k_reads(sl(0))
        flush()
        a.nop(4)
        for c, s_ in sm_first(0): a.e(s_)
        sm_check(0)
        fs()
        fon[0] = False
        assert a.vm[-16:] == ['K0']*8 + ['V1']*8, a.vm
        steady = ['V0']*8 + ['K0']*8 + ['V1']*8
        variants = [('A', cfg.flA, cfg.flA), ('B', cfg.flBK, cfg.flBV)]
        if variants[0][1:] == variants[1][1:]: variants = variants[:1]
        a.e(f's_mov_b32 s{S_CNT}, 6')
        if len(variants) == 2:
            a.e(f's_cmp_eq_u32 s{S_ISA[u]}, 0'); a.e(f's_cbranch_scc1 L_loopB{u}')
        for vi, (nm, fk, fv) in enumerate(variants):
            a.vm = list(steady)
            a.label(f'L_loop{nm}{u}')
            start = len(a.L)
            for i in (0, 1):
                stage1(i, sl, True, lambda i=i: dma_kv(i+3, u, 'K', kslot(sl, i+3), fk))
                stage2(i, sl, True, lambda i=i: dma_kv(i+2, u, 'V', vslot(sl, i+2), fv), True)
            a.e(f's_sub_u32 s{S_CNT}, s{S_CNT}, 1'); a.e(f's_cmp_lg_u32 s{S_CNT}, 0'); a.e(f's_cbranch_scc1 L_loop{nm}{u}')
            assert not pend and a.vm[-24:] == steady, a.vm
            loops.append((start, len(a.L)))
            if len(variants) == 2 and vi == 0: a.e(f's_branch L_loopdone{u}')
        a.label(f'L_loopdone{u}')
        a.vm = list(steady)
        stamp()
        stage1(12, sl, True, lambda: dma_kv(15, u, 'K', kslot(sl, 15), DYN))
        stage2(12, sl, True, lambda: dma_kv(14, u, 'V', vslot(sl, 14), DYN), True)
        stage1(13, sl, True, lambda: dma_wo(u, 0, sl(2)))
        stage2(13, sl, True, lambda: dma_kv(15, u, 'V', vslot(sl, 15), DYN), True)
        stage1(14, sl, True, None)
        stage2(14, sl, True, lambda: dma_wo(u, 1, sl(3)), False)
        stage1(15, sl, False, None)
        stage2(15, sl, False, None, False)
        stamp()
        a.c('--- stats')
        for qt in range(3): allreduce(L_(qt), 'v_add_f32')
        t = TMP
        a.e(f'v_and_b32 v{t}, 15, v{V_LANE}'); a.e(f'v_lshlrev_b32 v{t}, 3, v{t}')
        a.e(f's_lshl_b32 s{S_T}, s{S_W}, 13'); a.e(f's_add_u32 s{S_T}, s{S_T}, {AUX+6144}'); a.e(f'v_add_u32 v{t+1}, s{S_T}, v{t}')
        for qt in range(3): a.e(f'ds_write_b64 v{t+1}, {vr(M_(qt), 2)} offset:{qt*128}')
        if u == 2 and cfg.late_st: wait_vm('ST')
        a.e('s_waitcnt lgkmcnt(0)'); a.e('s_barrier')
        if u == 2 and cfg.late_st: set_flag(1, 'L_flag1')
        exchange('O', sl(0), sl(1), lambda: (dma_wo(u, 2, sl(0)), dma_wo(u, 3, sl(1))))
        stamp()
        oslot = [sl(2), sl(3), sl(0), sl(1)]
        for s in range(4):
            wait_vm(f'WO{s}')
            after = None
            if u == 1:
                after = [lambda: dma_x(2, 0, oslot[0]), lambda: dma_x(2, 1, oslot[1]), lambda: dma_wq(2, 0, oslot[2]), lambda: dma_wq(2, 1, oslot[3])][s]
            pvw(oslot[s], lambda qt, s=s: ax(qt, s), s == 0, after)
        a.nop(8)
        stamp()
        for qt in range(3):
            for pi in range(4):
                d = IN + (qt*4+pi)*4
                for h2 in range(2):
                    x = Oreg(2*pi+h2, qt)
                    a.e(f'v_cvt_pk_bf16_f32 v{d+2*h2}, v{x}, v{x+1}'); a.e(f'v_cvt_pk_bf16_f32 v{d+2*h2+1}, v{x+2}, v{x+3}')
            pump(2)
        if not (u == 1 and cfg.late_st): stores(u)

    dma_x(1, 0, 0); dma_x(1, 1, 1); dma_wq(1, 0, 2); dma_wq(1, 1, 3); flush()
    unit(1)
    unit(2)
    a.c('================ final reduce')
    a.wait_vm_all()
    a.e('s_barrier')
    set_flag(2, 'L_flag2')
    stamp()
    a.e('s_load_dwordx4 s[28:31], s[0:1], 80')
    a.e('s_load_dwordx2 s[32:33], s[0:1], 96')
    a.e(f's_lshl_b32 s{S_T}, s{S_W}, 6'); a.e(f'v_add_u32 v1, s{S_T}, v{V_LANE}')
    a.e(f's_bfe_u32 s{S_T+1}, s{S_FG[1]}, 0x50002')
    a.e(f's_mul_i32 s{S_T+2}, s{S_T+1}, 1536')
    a.e(f'v_lshlrev_b32 v2, 3, v1'); a.e(f'v_add_u32 v2, s{S_T+2}, v2')
    a.e(f's_mul_i32 s{S_T+2}, s{S_T+1}, 96')
    a.e(f'v_lshrrev_b32 v3, 1, v1'); a.e(f'v_add_u32 v3, s{S_T+2}, v3')
    a.e('v_and_b32 v4, 1, v1')
    a.e('v_lshrrev_b32 v5, 8, v3'); a.e('v_mul_u32_u24 v5, 21846, v5'); a.e('v_lshrrev_b32 v5, 16, v5')
    a.e('v_mul_u32_u24 v6, 768, v5'); a.e('v_sub_u32 v6, v3, v6')
    a.e('v_lshrrev_b32 v7, 6, v6'); a.e('v_and_b32 v8, 63, v6')
    a.e('v_lshrrev_b32 v9, 2, v7'); a.e('v_and_b32 v10, 3, v7')
    a.e('v_add_u32 v11, v5, v10'); a.e('v_lshlrev_b32 v11, 1, v11'); a.e('v_add_u32 v11, v11, v4'); a.e('v_and_b32 v11, 7, v11')
    a.e('v_and_b32 v12, 15, v8'); a.e('v_lshl_add_u32 v12, v9, 4, v12')
    a.e('v_lshlrev_b32 v12, 11, v12')
    a.e('v_lshl_add_u32 v12, v5, 8, v12'); a.e('v_lshl_add_u32 v12, v11, 5, v12')
    a.e('v_lshrrev_b32 v13, 4, v8'); a.e('v_lshl_add_u32 v12, v13, 3, v12')
    a.e('s_waitcnt lgkmcnt(0)')
    a.e('s_mov_b32 s36, s28'); a.e('s_mov_b32 s37, s29'); a.e('s_mov_b32 s38, 786432'); a.e('s_mov_b32 s39, 0x20000')
    a.e('s_mov_b32 s40, s30'); a.e('s_mov_b32 s41, s31'); a.e('s_mov_b32 s42, 256'); a.e('s_mov_b32 s43, 0x20000')
    for u in (1, 2):
        a.e(f's_lshr_b32 s{S_T}, s{S_FG[u]}, 7')
        a.e(f's_cmp_lg_u32 s{S_W}, 0'); a.e(f's_cbranch_scc1 L_pd{u}')
        a.e(f'v_and_b32 v14, 31, v{V_LANE}'); a.e('v_lshlrev_b32 v14, 2, v14')
        a.e(f's_lshl_b32 s{S_T+1}, s{S_T}, 7'); a.e(f's_mov_b32 s{S_T+2}, 4000')
        a.e('v_mov_b32 v16, 0')
        a.label(f'L_poll{u}')
        a.e(f'buffer_load_dword v15, v14, s[{R_FLG}:{R_FLG+3}], s{S_T+1} offen sc1')
        a.e(f'buffer_load_dword v17, v16, s[40:43], 0 offen sc1')
        a.e('s_waitcnt vmcnt(0)')
        a.e('v_cmp_eq_u32 vcc, 1, v15')
        a.e('v_mov_b32 v18, 0x100'); a.e('v_cmp_eq_u32 s[44:45], v18, v17')
        a.e('s_nop 1')
        a.e('s_and_b64 vcc, vcc, s[44:45]'); a.e('s_cmp_eq_u64 vcc, -1'); a.e(f's_cbranch_scc1 L_pd{u}')
        a.e('s_sleep 2')
        a.e(f's_sub_u32 s{S_T+2}, s{S_T+2}, 1'); a.e(f's_cmp_lg_u32 s{S_T+2}, 0'); a.e(f's_cbranch_scc1 L_poll{u}')
        a.label(f'L_pd{u}')
        a.e('s_barrier')
        if u == 2: stamp()
        a.e(f's_cmp_eq_u32 s{S_W}, 3'); a.e(f's_cbranch_scc1 L_rd{u}')
        a.e(f's_mul_i32 s{S_T+1}, s{S_T}, 1572864')
        a.e(f's_add_u32 s44, s32, s{S_T+1}'); a.e('s_addc_u32 s45, s33, 0'); a.e('s_mov_b32 s46, 1572864'); a.e('s_mov_b32 s47, 0x20000')
        for h in range(32):
            a.e(f's_mov_b32 s48, {h*49152}')
            a.e(f'buffer_load_dwordx2 v[{48+2*h}:{49+2*h}], v2, s[44:47], s48 offen sc1')
        a.e(f's_and_b32 s49, s{S_T}, 7'); a.e('s_mul_i32 s49, s49, 98304'); a.e(f's_lshr_b32 s50, s{S_T}, 3'); a.e('s_lshl_b32 s50, s50, 10'); a.e('s_add_u32 s49, s49, s50')
        for i in range(4): a.e(f'v_mov_b32 v{20+i}, 0')
        for h in range(32):
            a.e(f's_waitcnt vmcnt({31-h})')
            for d in range(2):
                r = 48 + 2*h + d
                a.e(f'v_lshlrev_b32 v24, 16, v{r}'); a.e(f'v_and_b32 v25, 0xffff0000, v{r}')
                a.e(f'v_add_f32 v{20+2*d}, v{20+2*d}, v24'); a.e(f'v_add_f32 v{21+2*d}, v{21+2*d}, v25')
        a.e(f'v_cvt_pk_bf16_f32 v{26+2*u}, v20, v21'); a.e(f'v_cvt_pk_bf16_f32 v{27+2*u}, v22, v23')
        a.e(f'buffer_store_dwordx2 v[{26+2*u}:{27+2*u}], v12, s[36:39], s49 offen')
        a.label(f'L_rd{u}')
    a.e('s_waitcnt vmcnt(0)')
    if cfg.stamps:
        stamp()
        a.e('s_memtime s[98:99]'); a.e('s_memrealtime s[100:101]'); a.e('s_waitcnt lgkmcnt(0)')
        a.e('v_mov_b32 v252, s98'); a.e('v_mov_b32 v253, s100')
        a.e('v_readfirstlane_b32 s2, v251')
        a.e('s_add_u32 s32, s32, 0x4000000'); a.e('s_addc_u32 s33, s33, 0'); a.e('s_mov_b32 s34, 0x100000'); a.e('s_mov_b32 s35, 0x20000')
        a.e('s_nop 3')
        a.e(f's_lshl_b32 s94, s2, 2'); a.e(f's_add_u32 s94, s94, s{S_W}'); a.e('s_lshl_b32 s94, s94, 7')
        a.e('v_mov_b32 v1, 0')
        a.e(f'buffer_store_dword v255, v1, s[32:35], s94 offen')
        a.e(f'buffer_store_dwordx4 v[252:255], v1, s[32:35], s94 offen offset:96')
        for i in range(nst[0]):
            a.e(f'v_mov_b32 v2, s{STAMP0+i}')
            a.e(f'buffer_store_dword v2, v1, s[32:35], s94 offen offset:{4*i+4}')
            a.e('s_nop 1')
        a.e('s_waitcnt vmcnt(0)')
    a.label('L_end')
    a.e('s_endpgm')
    for buf in (0, 1):
        a.label(f'L_rescale{buf}')
        t = TMP
        for qt in range(3): allreduce(TMP+qt, 'v_max_f32')
        for qt in range(3): a.e(f'v_max_f32 v{t+qt}, s{S_FLOOR}, v{t+qt}')
        for qt in range(3):
            a.e(f'v_add_f32 v{M_(qt)}, v{M_(qt)}, v{t+qt}')
            a.e(f'v_max_f32 v{t+4+qt}, 0, v{t+qt}')
            a.e(f'v_sub_f32 v{t+4+qt}, 0, v{t+4+qt}')
        for qt in range(3): a.e(f'v_exp_f32 v{t+4+qt}, v{t+4+qt}')
        for kt in range(2):
            for qt in range(3):
                for r in range(4):
                    x = Sreg(buf, kt, qt) + r
                    a.e(f'v_sub_f32 v{x}, v{x}, v{t+qt}')
        for qt in range(3): a.e(f'v_mul_f32 v{L_(qt)}, v{L_(qt)}, v{t+4+qt}')
        for tau in range(8):
            for qt in range(3):
                for r in range(4):
                    x = Oreg(tau, qt) + r
                    a.e(f'v_mul_f32 v{x}, v{x}, v{t+4+qt}')
        a.e(f's_mov_b32 s{S_THR}, {f32bits(cfg.thr):#x}'); a.e(f's_mov_b32 s{S_FLOOR}, 0')
        a.e(f's_setpc_b64 s[{S_RET}:{S_RET+1}]')

    a.e('.section .rodata,"a"')
    a.e('.p2align 6'); a.e(f'.amdhsa_kernel {KN}')
    a.e('  .amdhsa_next_free_vgpr 416'); a.e('  .amdhsa_next_free_sgpr 102'); a.e('  .amdhsa_accum_offset 256')
    a.e('  .amdhsa_group_segment_fixed_size 0'); a.e('  .amdhsa_kernarg_size 104'); a.e('  .amdhsa_user_sgpr_count 2')
    a.e('  .amdhsa_user_sgpr_kernarg_segment_ptr 1'); a.e('  .amdhsa_system_sgpr_workgroup_id_x 1')
    a.e('  .amdhsa_float_denorm_mode_32 3'); a.e('  .amdhsa_float_denorm_mode_16_64 3')
    a.e('.end_amdhsa_kernel')
    probs = check(a.L)
    for (s0, s1) in loops: probs += check(a.L[s0:s1] + a.L[s0:s1])
    return a.text(), probs, nst[0]

if __name__ == '__main__':
    cfg = Cfg()
    for kv in sys.argv[2:]:
        k, v = kv.split('=', 1); setattr(cfg, k, eval(v))
    txt, probs, n = gen(cfg)
    for p in probs: print('HAZARD', p)
    open(sys.argv[1], 'w').write(txt)
    print('written', sys.argv[1], len(txt), 'stamps', n)
```

```python
import sys, struct, math
from asmlib import Asm, check

KN = 'concat_heads__gqa_block_cached__mha_block_cached__near_ridge_kernel'

V_LANE = 0
TRA = 16; KA = 24; DE, DO = 28, 29; ML = 30
def M_(qt): return ML + 2*qt
def L_(qt): return ML + 2*qt + 1
TMP = 36; S0 = 48; S1 = 72; P = 96; XT = 108; O = 120
IN = 48
QE, QO, OE, OO = 216, 217, 218, 219
V_L16, V_XB, V_ST = 220, 221, 222
def Oreg(tau, qt): return O + (tau*3 + qt)*4
def Sreg(buf, kt, qt): return (S0 if buf == 0 else S1) + (kt*3 + qt)*4
AQ, AX, AK, AV, ASAVE = 0, 48, 96, 128, 160
def ar(b, n): return f'a[{b}:{b+n-1}]'
def aq(qt, s): return ar(AQ + (qt*4 + s)*4, 4)
def ax(qt, s): return ar(AX + (qt*4 + s)*4, 4)
def vr(b, n): return f'v[{b}:{b+n-1}]' if n > 1 else f'v{b}'
R_FLG = 4
S_FG = {1: 8, 2: 9}
S_ISA = {1: 10, 2: 11}
STAMP0 = 12
SRD = {1: dict(K=28, V=32, WQ=36, X=40, WO=44, PT=48), 2: dict(K=52, V=56, WQ=60, X=64, WO=68, PT=72)}
S_W, S_LB, S_OFF, S_T = 76, 77, 78, 79
S_CNT, S_THR, S_FLOOR, S_C, S_RET = 86, 87, 88, 89, 90
S_WQO, S_XO, S_T2, S_T3, S_STEP, S_ROT, S_T4, S_W8 = 92, 93, 94, 95, 96, 97, 98, 99
S_HH = 3
S_KD = 48
S_RWP = 49
R_DBGK = 50
S_RW = 2
S_WB = 85
AUX = 131072
FLG_OFF = 0x2000000
QFLG = 4096
QIMG_OFF = 0x2100000
R_QI = 64
S_QF = 8

class Cfg:
    afirst = 0x55
    flA = ''
    flBK = ' nt'; flBV = ' nt'
    rotA = True
    rotW = True
    nt_w = False
    thr = 8.0
    st_flags = ' sc1'
    stamps = False
    fine = None
    dynflags = True
    late_st = True
    st_in_exch = True
    kv0_late = True
    fastpoll = True
    out_flags = ''
    rw_mode = 0

def f32bits(x): return struct.unpack('<I', struct.pack('<f', x))[0]

def gen(cfg=Cfg()):
    a = Asm()
    a.e(f'; @launch grid=(256,1,1) block=(256,1,1) lds=163840')
    a.e('.amdgcn_target "amdgcn-amd-amdhsa--gfx950"')
    a.e('.text')
    a.e(f'.globl {KN}'); a.e('.p2align 8'); a.e(f'.type {KN},@function'); a.label(KN)
    a.e('s_cmp_ge_u32 s2, 256'); a.e('s_cbranch_scc1 L_end')
    nst = [0]
    fon = [False]
    def fs():
        if not (cfg.fine and fon[0]): return
        a.e('s_memrealtime s[100:101]'); a.e('s_waitcnt lgkmcnt(0)'); a.e(f's_mov_b32 s{STAMP0+nst[0]}, s100'); nst[0] += 1
        assert nst[0] <= 16
    def stamp():
        if cfg.fine or not cfg.stamps: return
        a.e('s_memrealtime s[100:101]'); a.e('s_waitcnt lgkmcnt(0)'); a.e(f's_mov_b32 s{STAMP0+nst[0]}, s100'); nst[0] += 1
        assert nst[0] <= 16
    if cfg.stamps:
        a.e('s_memrealtime s[100:101]'); a.e('s_waitcnt lgkmcnt(0)'); a.e('v_mov_b32 v255, s100')
        a.e('s_memtime s[100:101]'); a.e('s_waitcnt lgkmcnt(0)'); a.e('v_mov_b32 v254, s100')
        a.e('v_mov_b32 v251, s2')
    a.e('s_load_dwordx16 s[12:27], s[0:1], 0')
    a.e('s_load_dwordx4 s[84:87], s[0:1], 64')
    a.e('s_load_dwordx4 s[88:91], s[0:1], 88')
    a.e(f'v_lshrrev_b32 v1, 6, v0')
    a.e(f'v_and_b32 v{V_LANE}, 63, v0')
    a.e(f'v_readfirstlane_b32 s{S_W}, v1')
    a.e(f'v_and_b32 v2, 15, v{V_LANE}'); a.e(f'v_lshrrev_b32 v3, 4, v{V_LANE}')
    a.e(f'v_lshlrev_b32 v{V_L16}, 4, v{V_LANE}')
    a.e(f's_lshl_b32 s{S_LB}, s{S_W}, 15')
    a.e('v_lshlrev_b32 v4, 1, v3'); a.e('v_xor_b32 v4, v2, v4'); a.e('v_lshlrev_b32 v4, 4, v4')
    a.e(f'v_lshl_add_u32 v{DE}, v3, 8, v4'); a.e(f'v_xor_b32 v{DO}, 0x80, v{DE}')
    a.e(f'v_lshl_add_u32 v{QE}, v3, 13, v4'); a.e(f'v_xor_b32 v{QO}, 0x80, v{QE}')
    a.e(f'v_lshl_add_u32 v{OE}, v3, 10, v4'); a.e(f'v_xor_b32 v{OO}, 0x80, v{OE}')
    a.e('v_and_b32 v5, 7, v2'); a.e('v_lshlrev_b32 v5, 1, v5')
    a.e('v_xor_b32 v6, v3, v5'); a.e('v_lshlrev_b32 v6, 4, v6')
    a.e('v_lshl_add_u32 v6, v2, 8, v6'); a.e(f'v_add_u32 v{KA}, s{S_LB}, v6')
    for s in range(1, 4): a.e(f'v_xor_b32 v{KA+s}, {s<<6}, v{KA}')
    a.e('v_lshrrev_b32 v6, 1, v3'); a.e('v_xor_b32 v6, v6, v5'); a.e('v_lshlrev_b32 v6, 4, v6')
    a.e('v_and_b32 v7, 1, v3'); a.e('v_lshl_add_u32 v6, v7, 3, v6')
    a.e('v_lshl_add_u32 v6, v2, 8, v6'); a.e(f'v_add_u32 v{V_XB}, s{S_LB}, v6')
    a.e('v_lshrrev_b32 v6, 2, v2'); a.e('v_lshl_add_u32 v6, v3, 2, v6')
    a.e('v_and_b32 v7, 7, v6'); a.e('v_lshlrev_b32 v7, 1, v7')
    a.e('v_bfe_u32 v8, v2, 1, 1'); a.e('v_xor_b32 v7, v8, v7'); a.e('v_lshlrev_b32 v7, 4, v7')
    a.e('v_and_b32 v8, 1, v2'); a.e('v_lshl_add_u32 v7, v8, 3, v7')
    a.e('v_lshl_add_u32 v7, v6, 8, v7'); a.e(f'v_add_u32 v7, s{S_LB}, v7')
    a.e(f's_lshl_b32 s{S_T}, s{S_W}, 1')
    for tau in range(8):
        a.e(f's_add_u32 s{S_T+1}, s{S_T}, {tau}'); a.e(f's_and_b32 s{S_T+1}, s{S_T+1}, 7'); a.e(f's_lshl_b32 s{S_T+1}, s{S_T+1}, 5')
        a.e(f'v_xor_b32 v{TRA+tau}, s{S_T+1}, v7')
    a.e(f's_mul_i32 s{S_T}, s{S_W}, 12288'); a.e(f'v_add_u32 v{V_ST}, s{S_T}, v{V_L16}')
    a.e(f's_lshl_b32 s{S_W8}, s{S_W}, 13')
    a.e('s_and_b32 s79, s2, 7'); a.e('s_lshr_b32 s80, s2, 3')
    a.e('s_and_b32 s94, s80, 15'); a.e('s_lshl_b32 s95, s79, 4'); a.e('s_add_u32 s95, s95, s94')
    a.e('s_lshr_b32 s92, s94, 1'); a.e('s_and_b32 s93, s94, 1'); a.e('s_lshl_b32 s96, s79, 1'); a.e('s_add_u32 s93, s93, s96')
    a.e('s_cmp_lt_u32 s80, 16'); a.e(f's_cselect_b32 s{S_ISA[1]}, 1, 0'); a.e(f's_mov_b32 s{S_ISA[2]}, s{S_ISA[1]}')
    a.e('s_cbranch_scc0 L_idB')
    a.e('s_lshr_b32 s96, s79, 1'); a.e('s_and_b32 s81, s79, 1'); a.e('s_lshl_b32 s81, s81, 2'); a.e('s_lshr_b32 s97, s80, 2'); a.e('s_add_u32 s81, s81, s97')
    a.e(f's_and_b32 s{S_HH}, s80, 3'); a.e('s_lshl_b32 s83, s96, 2'); a.e(f's_add_u32 s83, s83, s{S_HH}')
    a.e('s_lshl_b32 s79, s81, 3'); a.e('s_add_u32 s79, s79, s96')
    a.e('s_branch L_iddone')
    a.label('L_idB')
    a.e('s_mov_b32 s81, s92'); a.e('s_mov_b32 s83, s93'); a.e(f's_mov_b32 s{S_HH}, 0')
    a.e('s_lshl_b32 s79, s81, 5'); a.e('s_add_u32 s79, s79, s83')
    a.label('L_iddone')
    if cfg.rotW: a.e(f's_and_b32 s{S_RW}, s81, 3')
    else: a.e(f's_mov_b32 s{S_RW}, 0')
    a.e('s_waitcnt lgkmcnt(0)')
    R = SRD[1]; R2 = SRD[2]
    a.e(f's_cmp_eq_u32 s{S_ISA[1]}, 1')
    for name, pa, pb in (('X', 12, 22), ('K', 14, 24), ('V', 16, 26), ('WQ', 18, 84), ('WO', 20, 86)):
        r = R[name]
        a.e(f's_cselect_b32 s{r}, s{pa}, s{pb}'); a.e(f's_cselect_b32 s{r+1}, s{pa+1}, s{pb+1}')
    a.e('s_mov_b32 s80, 0x800000'); a.e('s_cselect_b32 s80, 0x200000, s80')
    a.e('s_lshl_b32 s96, s79, 19'); a.e('s_lshr_b32 s97, s79, 13')
    for name in ('K', 'V'):
        r = R[name]
        a.e(f's_add_u32 s{r}, s{r}, s96'); a.e(f's_addc_u32 s{r+1}, s{r+1}, s97')
        a.e(f's_mov_b32 s{r+2}, 0x80000'); a.e(f's_mov_b32 s{r+3}, 0x20000')
    r = R['X']; a.e('s_mul_i32 s96, s81, 49152')
    a.e(f's_add_u32 s{r}, s{r}, s96'); a.e(f's_addc_u32 s{r+1}, s{r+1}, 0'); a.e(f's_mov_b32 s{r+2}, 49152'); a.e(f's_mov_b32 s{r+3}, 0x20000')
    r = R['WQ']; a.e('s_lshl_b32 s96, s83, 8')
    a.e(f's_add_u32 s{r}, s{r}, s96'); a.e(f's_addc_u32 s{r+1}, s{r+1}, 0'); a.e(f's_sub_u32 s{r+2}, 0x400000, s96'); a.e(f's_mov_b32 s{r+3}, 0x20000')
    r = R['WO']; a.e('s_lshl_b32 s96, s83, 17')
    a.e(f's_add_u32 s{r}, s{r}, s96'); a.e(f's_addc_u32 s{r+1}, s{r+1}, 0'); a.e(f's_mov_b32 s{r+2}, 0x20000'); a.e(f's_mov_b32 s{r+3}, 0x20000')
    r = R2['V']; r1 = R['V']
    a.e(f's_add_u32 s{r}, s{r1}, s80'); a.e(f's_addc_u32 s{r+1}, s{r1+1}, 0'); a.e(f's_mov_b32 s{r+2}, 0x80000'); a.e(f's_mov_b32 s{r+3}, 0x20000')
    r = R2['WO']; r1 = R['WO']
    a.e(f's_add_u32 s{r}, s{r1}, 0x200000'); a.e(f's_addc_u32 s{r+1}, s{r1+1}, 0'); a.e(f's_mov_b32 s{r+2}, 0x20000'); a.e(f's_mov_b32 s{r+3}, 0x20000')
    a.e(f's_mov_b32 s{S_KD}, s80')
    r = R2['K']; a.e('s_mul_i32 s96, s92, 49152')
    a.e(f's_add_u32 s{r}, s22, s96'); a.e(f's_addc_u32 s{r+1}, s23, 0'); a.e(f's_mov_b32 s{r+2}, 49152'); a.e(f's_mov_b32 s{r+3}, 0x20000')
    r = R2['WQ']; a.e('s_add_u32 s96, s93, 16'); a.e('s_lshl_b32 s96, s96, 8')
    a.e(f's_add_u32 s{r}, s84, s96'); a.e(f's_addc_u32 s{r+1}, s85, 0'); a.e(f's_sub_u32 s{r+2}, 0x400000, s96'); a.e(f's_mov_b32 s{r+3}, 0x20000')
    a.e(f's_and_b32 s{S_RWP}, s92, 3')
    a.e('s_mul_i32 s96, s95, 12288'); a.e(f's_add_u32 s96, s96, {QIMG_OFF:#x}')
    a.e(f's_add_u32 s{R_QI}, s90, s96'); a.e(f's_addc_u32 s{R_QI+1}, s91, 0'); a.e(f's_mov_b32 s{R_QI+2}, 12288'); a.e(f's_mov_b32 s{R_QI+3}, 0x20000')
    a.e(f's_lshl_b32 s96, s95, 7'); a.e(f's_add_u32 s{S_QF}, s96, {QFLG}')
    a.e(f's_cmp_eq_u32 s{S_ISA[1]}, 1'); a.e('s_cselect_b32 s94, 0, 8'); a.e('s_add_u32 s94, s94, s81')
    r = SRD[2]['PT']; a.e('s_lshl_b32 s93, s94, 4'); a.e('s_add_u32 s93, s93, s83'); a.e('s_mul_i32 s96, s93, 49152')
    a.e(f's_add_u32 s{r}, s90, s96'); a.e(f's_addc_u32 s{r+1}, s91, 0'); a.e(f's_mov_b32 s{r+2}, 49152'); a.e(f's_mov_b32 s{r+3}, 0x20000')
    a.e('s_lshl_b32 s94, s94, 7'); a.e('s_lshl_b32 s96, s83, 2'); a.e(f's_add_u32 s{S_FG[2]}, s94, s96')
    a.e(f's_add_u32 s{R_FLG}, s90, {FLG_OFF:#x}'); a.e(f's_addc_u32 s{R_FLG+1}, s91, 0'); a.e(f's_mov_b32 s{R_FLG+2}, 20480'); a.e(f's_mov_b32 s{R_FLG+3}, 0x20000')
    a.e(f's_lshl_b32 s{S_WQO}, s{S_W}, 20'); a.e(f's_lshl_b32 s{S_XO}, s{S_W}, 8')
    a.e('s_mov_b32 s80, s88'); a.e('s_mov_b32 s81, s89'); a.e('s_mov_b32 s82, 256'); a.e('s_mov_b32 s83, 0x20000')
    a.e(f's_mov_b32 s{R_DBGK}, s88'); a.e(f's_mov_b32 s{R_DBGK+1}, s89')
    a.e(f's_mov_b32 s{S_C}, {f32bits(math.log2(math.e) / math.sqrt(128.0)):#x}')
    a.e(f's_cmp_lg_u32 s{S_W}, 0'); a.e('s_cbranch_scc1 L_noclear')
    a.e('s_mov_b64 exec, 1'); a.e('v_mov_b32 v1, 0')
    a.e(f'buffer_store_dword v1, v1, s[{R_FLG}:{R_FLG+3}], s{S_FG[2]} offen sc1')
    a.e(f's_cmp_eq_u32 s{S_ISA[1]}, 0'); a.e('s_cbranch_scc1 L_noclear2')
    a.e(f'buffer_store_dword v1, v1, s[{R_FLG}:{R_FLG+3}], s{S_QF} offen sc1')
    a.label('L_noclear2')
    a.e('s_mov_b64 exec, -1')
    a.label('L_noclear')

    ntw = ' nt' if cfg.nt_w else ''
    pend = []
    def pump(n=1):
        for _ in range(n):
            if not pend: return
            tag, th = pend.pop(0); th()
    def flush(): pump(len(pend))
    def wait_vm(tag):
        while any(t == tag for t, _ in pend): pump()
        a.wait_vm(tag)
    DYN = 'DYN'
    dynid = [0]
    def dma(tag, srd, slot, vE, vO, RS, sbase, const, npieces=8, flags='', pre=None, dyn=None):
        for p in range(npieces):
            def th(p=p):
                if p == 0 and pre: pre()
                if p % 4 == 0: a.e(f's_add_u32 m0, s{S_LB}, {slot*8192 + (p//4)*4096}')
                off = const + p*4*RS - (p & 3)*1024
                if RS == 256:
                    if p % 4 == 0: a.e(f's_add_u32 s{S_T2}, s{sbase}, {off}')
                else:
                    a.e(f's_add_u32 s{S_T2}, s{sbase}, {off}')
                v = vE if p % 2 == 0 else vO
                if dyn is None:
                    a.vmop(tag, f'buffer_load_dwordx4 v{v}, s[{srd}:{srd+3}], s{S_T2} offen offset:{(p&3)*1024}{flags} lds')
                else:
                    isa, fa, fb = dyn
                    k = dynid[0]; dynid[0] += 1
                    a.e(f's_cmp_eq_u32 s{isa}, 0'); a.e(f's_cbranch_scc1 L_dyb{k}')
                    a.e(f'buffer_load_dwordx4 v{v}, s[{srd}:{srd+3}], s{S_T2} offen offset:{(p&3)*1024}{fa} lds')
                    a.e(f's_branch L_dye{k}'); a.label(f'L_dyb{k}')
                    a.vmop(tag, f'buffer_load_dwordx4 v{v}, s[{srd}:{srd+3}], s{S_T2} offen offset:{(p&3)*1024}{fb} lds')
                    a.label(f'L_dye{k}')
            pend.append((tag, th))
    def dma_kv(n, u, which, slot, fl):
        pre = None
        if which == 'K':
            def pre():
                a.e(f's_add_u32 s{S_T4}, s{S_STEP}, s{S_ROT}'); a.e(f's_and_b32 s{S_T4}, s{S_T4}, 3')
                a.e(f's_and_b32 s{S_OFF}, s{S_STEP}, -4'); a.e(f's_or_b32 s{S_OFF}, s{S_OFF}, s{S_T4}')
                a.e(f's_lshl_b32 s{S_OFF}, s{S_OFF}, 15'); a.e(f's_add_u32 s{S_OFF}, s{S_OFF}, s{S_W8}')
                a.e(f's_add_u32 s{S_STEP}, s{S_STEP}, 1')
            dyn = None
            if fl == DYN:
                fl = ''
                if cfg.dynflags and cfg.flA != cfg.flBK: dyn = (S_ISA[u], cfg.flA, cfg.flBK)
            dma(f'K{n&1}', SRD[u]['K'], slot, DE, DO, 256, S_OFF, 0, flags=fl, pre=pre, dyn=dyn)
        else:
            def pre():
                a.e(f's_add_u32 s{S_T4}, s{S_VSTEP}, s{S_ROT}'); a.e(f's_and_b32 s{S_T4}, s{S_T4}, 3')
                a.e(f's_and_b32 s{S_OFFV}, s{S_VSTEP}, -4'); a.e(f's_or_b32 s{S_OFFV}, s{S_OFFV}, s{S_T4}')
                a.e(f's_lshl_b32 s{S_OFFV}, s{S_OFFV}, 15'); a.e(f's_add_u32 s{S_OFFV}, s{S_OFFV}, s{S_W8}')
                a.e(f's_add_u32 s{S_VSTEP}, s{S_VSTEP}, 1')
            dyn = None
            if fl == DYN:
                fl = ''
                if cfg.dynflags and cfg.flA != cfg.flBV: dyn = (S_ISA[u], cfg.flA, cfg.flBV)
            dma(f'V{n&1}', SRD[u]['V'], slot, DE, DO, 256, S_OFFV, 0, flags=fl, pre=pre, dyn=dyn)
    S_VSTEP, S_OFFV = 84, 83
    def rot_pre(j, base_sgpr, shift, rw=S_RW):
        def pre():
            a.e(f's_add_u32 s{S_WB}, s{rw}, {j}'); a.e(f's_and_b32 s{S_WB}, s{S_WB}, 3'); a.e(f's_lshl_b32 s{S_WB}, s{S_WB}, {shift}')
            a.e(f's_add_u32 s{S_WB}, s{S_WB}, s{base_sgpr}')
        return pre
    def dma_x(srd, part, slot, pfx=''): dma(f'{pfx}X{part}', srd, slot, OE, OO, 1024, S_XO, part*32*1024, npieces=8 if part == 0 else 4, flags=ntw)
    def dma_wq(srd, j, slot, rw=S_RW, pfx=''): dma(f'{pfx}W{j}', srd, slot, QE, QO, 8192, S_WB, 0, flags=ntw, pre=rot_pre(j, S_WQO, 18, rw))
    def dma_wo(u, s, slot): dma(f'WO{s}', SRD[u]['WO'], slot, OE, OO, 1024, S_WB, 0, flags=ntw, pre=rot_pre(s, S_XO, 15))

    def tr_reads(slot):
        for tau in range(8):
            a.e(f'ds_read_b64_tr_b16 {ar(AV+4*tau, 2)}, v{TRA+tau} offset:{slot*8192}')
            a.e(f'ds_read_b64_tr_b16 {ar(AV+4*tau+2, 2)}, v{TRA+tau} offset:{slot*8192+4096}')
    def k_reads(slot):
        for s in range(4):
            for kt in range(2):
                a.e(f'ds_read_b128 {ar(AK+(s*2+kt)*4, 4)}, v{KA+s} offset:{slot*8192+kt*4096}')
    def pv_mfmas(bfrag, first):
        out = []
        for tau in range(8):
            for qt in range(3):
                d = vr(Oreg(tau, qt), 4)
                out.append(f'v_mfma_f32_16x16x32_bf16 {d}, {ar(AV+4*tau, 4)}, {bfrag(qt)}, {"0" if first else d}')
        return out
    def qk_mfmas(buf):
        out = []
        for s in range(4):
            for kt in range(2):
                for qt in range(3):
                    d = vr(Sreg(buf, kt, qt), 4)
                    out.append(f'v_mfma_f32_16x16x32_bf16 {d}, {ar(AK+(s*2+kt)*4, 4)}, {aq(qt, s)}, {"0" if s == 0 else d}')
        return out
    def pvw(slot, bfrag, first, after_reads):
        tr_reads(slot)
        a.e('s_waitcnt lgkmcnt(0)')
        if after_reads: after_reads()
        for i, m in enumerate(pv_mfmas(bfrag, first)):
            a.e(m)
            if i % 3 == 2: pump()
    def interleave(mf, va, extras):
        tot = sum(c for c, _ in va)
        n = len(mf); done = 0; vi = 0
        if n == 0:
            for c, s_ in va: a.e(s_)
            for k in sorted(extras): extras[k]()
            return
        for i, m in enumerate(mf):
            a.e(m)
            target = tot * (i + 1) / n
            while vi < len(va) and done + va[vi][0] / 2 <= target:
                a.e(va[vi][1]); done += va[vi][0]; vi += 1
            if i in extras: extras[i]()
        while vi < len(va): a.e(va[vi][1]); vi += 1
    def sm_exp_cvt(buf):
        va = []
        def exps(qt):
            for kt in range(2):
                for r in range(4):
                    x = Sreg(buf, kt, qt) + r; va.append((8, f'v_exp_f32 v{x}, v{x}'))
        def cvts(qt):
            for kt in range(2):
                x = Sreg(buf, kt, qt)
                va.append((4, f'v_cvt_pk_bf16_f32 v{P+qt*4+kt*2}, v{x}, v{x+1}'))
                va.append((4, f'v_cvt_pk_bf16_f32 v{P+qt*4+kt*2+1}, v{x+2}, v{x+3}'))
        exps(0); exps(1); cvts(0); exps(2); cvts(1); cvts(2)
        return va
    def sm_adds(buf):
        va = []
        for kt in range(2):
            for r in range(4):
                for qt in range(3):
                    va.append((4, f'v_add_f32 v{L_(qt)}, v{L_(qt)}, v{Sreg(buf, kt, qt)+r}'))
        return va
    def sm_first(buf):
        va = []
        for kt in range(2):
            for qt in range(3):
                for r in range(4):
                    x = Sreg(buf, kt, qt) + r
                    va.append((4, f'v_fma_f32 v{x}, v{x}, s{S_C}, -v{M_(qt)}'))
        for qt in range(3):
            r0 = Sreg(buf, 0, qt); va.append((4, f'v_max3_f32 v{TMP+qt}, v{r0}, v{r0+1}, v{r0+2}'))
        for qt in range(3):
            r0 = Sreg(buf, 0, qt); r1 = Sreg(buf, 1, qt); va.append((4, f'v_max3_f32 v{TMP+qt}, v{TMP+qt}, v{r0+3}, v{r1}'))
        for qt in range(3):
            r1 = Sreg(buf, 1, qt); va.append((4, f'v_max3_f32 v{TMP+qt}, v{TMP+qt}, v{r1+1}, v{r1+2}'))
        for qt in range(3):
            r1 = Sreg(buf, 1, qt); va.append((4, f'v_max_f32 v{TMP+qt}, v{TMP+qt}, v{r1+3}'))
        va.append((4, f'v_max3_f32 v{TMP+3}, v{TMP}, v{TMP+1}, v{TMP+2}'))
        return va
    site = [0]
    def sm_check(buf):
        a.e(f'v_cmp_lt_f32 vcc, s{S_THR}, v{TMP+3}')
        k = site[0]; site[0] += 1
        a.e(f's_cbranch_vccz L_fast{k}')
        a.e(f's_call_b64 s[{S_RET}:{S_RET+1}], L_rescale{buf}')
        a.label(f'L_fast{k}')
    def kslot(sl, n): return sl(2) if n % 2 == 0 else sl(0)
    def vslot(sl, n): return sl(3) if n % 2 == 0 else sl(1)

    def stage1(i, sl, do_qk, enq):
        a.e('s_waitcnt lgkmcnt(0)')
        if enq: enq()
        mf = qk_mfmas((i+1) & 1) if do_qk else []
        def vread():
            wait_vm(f'V{i&1}'); tr_reads(vslot(sl, i))
        ex = {}
        if do_qk:
            for k in (1, 4, 7, 13, 16, 19, 21, 23): ex[k] = pump
            ex[10] = vread
        else:
            vread()
        interleave(mf, sm_exp_cvt(i & 1), ex)
        flush()
    def stage2(i, sl, do_next, enq, kread_next):
        a.e('s_waitcnt lgkmcnt(0)')
        if enq: enq()
        mf = pv_mfmas(lambda qt: vr(P+qt*4, 4), False)
        va = sm_adds(i & 1) + (sm_first((i+1) & 1) if do_next else [])
        ex = {}
        for k in (1, 4, 7, 13, 16, 19, 21, 23): ex[k] = pump
        if kread_next:
            def kread():
                wait_vm(f'K{i&1}'); k_reads(kslot(sl, i+2))
            ex[10] = kread
        interleave(mf, va, ex)
        flush()
        if do_next: sm_check((i+1) & 1)

    def allreduce(reg, op):
        t = TMP + 10
        a.e(f'v_mov_b32 v{t}, v{reg}'); a.nop(2)
        a.e(f'v_permlane32_swap_b32 v{reg}, v{t}'); a.nop(1)
        a.e(f'{op} v{reg}, v{reg}, v{t}')
        a.e(f'v_mov_b32 v{t}, v{reg}'); a.nop(2)
        a.e(f'v_permlane16_swap_b32 v{reg}, v{t}'); a.nop(1)
        a.e(f'{op} v{reg}, v{reg}, v{t}')

    def allreduce3(regs, op):
        t = TMP + 8
        for stage in ('v_permlane32_swap_b32', 'v_permlane16_swap_b32'):
            for i, r in enumerate(regs): a.e(f'v_mov_b32 v{t+i}, v{r}')
            a.nop(1)
            for i, r in enumerate(regs): a.e(f'{stage} v{r}, v{t+i}')
            a.nop(1)
            for i, r in enumerate(regs): a.e(f'{op} v{r}, v{r}, v{t+i}')
    def exchange(kind, slotA, slotB, after_in, inter=None):
        a.c(f'--- exchange {kind}')
        t = TMP
        FA = 1
        if kind == 'O':
            a.e(f'v_and_b32 v{t}, 15, v{V_LANE}'); a.e(f'v_lshlrev_b32 v{t}, 3, v{t}')
            for rho in range(4):
                a.e(f's_sub_u32 s{S_T}, s{S_W}, {rho}'); a.e(f's_and_b32 s{S_T}, s{S_T}, 3'); a.e(f's_lshl_b32 s{S_T}, s{S_T}, 13')
                a.e(f's_add_u32 s{S_T}, s{S_T}, {AUX+6144}'); a.e(f'v_add_u32 v{t+1+rho}, s{S_T}, v{t}')
            for rho in range(4):
                for qt in range(3):
                    a.e(f'ds_read_b64 {vr(IN+(rho*3+qt)*2, 2)}, v{t+1+rho} offset:{qt*128}')
        for rho in (1, 2, 3):
            a.e(f's_add_u32 s{S_T}, s{S_W}, {rho}'); a.e(f's_and_b32 s{S_T}, s{S_T}, 3')
            if rho < 3: a.e(f's_lshl_b32 s{S_T}, s{S_T}, 15')
            else: a.e(f's_lshl_b32 s{S_T}, s{S_T}, 13'); a.e(f's_add_u32 s{S_T}, s{S_T}, {AUX}')
            a.e(f'v_add_u32 v{t+5+rho}, s{S_T}, v{V_L16}')
        inter = list(inter or [])
        for rho in (1, 2, 3):
            base = {1: slotA*8192, 2: slotB*8192, 3: 0}[rho]
            for i in range(6):
                a.e(f'ds_write_b128 v{t+5+rho}, {vr(O+24*rho+4*i, 4)} offset:{base+i*1024}')
                if inter: inter.pop(0)()
        while inter: inter.pop(0)()
        if kind == 'O':
            a.e('s_waitcnt lgkmcnt(15)')
            for qt in range(3):
                m = lambda rho: IN + (rho*3+qt)*2
                mm = t
                a.e(f'v_max3_f32 v{mm}, v{m(0)}, v{m(1)}, v{m(2)}'); a.e(f'v_max_f32 v{mm}, v{mm}, v{m(3)}')
                for rho in range(4): a.e(f'v_sub_f32 v{m(rho)}, v{m(rho)}, v{mm}')
                for rho in range(4): a.e(f'v_exp_f32 v{m(rho)}, v{m(rho)}')
                a.nop(1)
                a.e(f'v_mul_f32 v{t+1}, v{m(0)}, v{m(0)+1}')
                for rho in range(1, 4): a.e(f'v_fma_f32 v{t+1}, v{m(rho)}, v{m(rho)+1}, v{t+1}')
                a.e(f'v_rcp_f32 v{t+1}, v{t+1}'); a.nop(1)
                for rho in range(4): a.e(f'v_mul_f32 v{FA+rho*3+qt}, v{m(rho)}, v{t+1}')
        a.e(f'v_add_u32 v{t+2}, s{S_LB}, v{V_L16}')
        a.e(f's_lshl_b32 s{S_T}, s{S_W}, 13'); a.e(f's_add_u32 s{S_T}, s{S_T}, {AUX}')
        a.e(f'v_add_u32 v{t+3}, s{S_T}, v{V_L16}')
        a.e('s_waitcnt lgkmcnt(0)'); a.e('s_barrier')
        for rho in (1, 2, 3):
            for i in range(6):
                if rho < 3: a.e(f'ds_read_b128 {vr(IN+24*(rho-1)+4*i, 4)}, v{t+2} offset:{ {1: slotA*8192, 2: slotB*8192}[rho] + i*1024}')
                else: a.e(f'ds_read_b128 {vr(IN+24*(rho-1)+4*i, 4)}, v{t+3} offset:{i*1024}')
        if kind == 'Q':
            a.e(f'v_lshrrev_b32 v{t+4}, 5, v{V_LANE}'); a.e(f'v_lshlrev_b32 v{t+4}, 8, v{t+4}')
            a.e(f'v_and_b32 v{t+5}, 15, v{V_LANE}'); a.e(f'v_lshl_add_u32 v{t+4}, v{t+5}, 4, v{t+4}')
            a.e(f'v_bfe_u32 v{t+5}, v{V_LANE}, 4, 1'); a.e(f'v_lshl_add_u32 v{t+4}, v{t+5}, 3, v{t+4}')
            a.e(f'v_add_u32 v{t+4}, s{S_T}, v{t+4}')
            uoff = 512
        else:
            a.e(f'v_add_u32 v{t+4}, s{S_T}, v{V_L16}')
            uoff = 8
            for i in range(6):
                for r in range(4): a.e(f'v_mul_f32 v{O+4*i+r}, v{O+4*i+r}, v{FA+(i%3)}')
        a.e('s_waitcnt lgkmcnt(12)')
        for rho in (1, 2, 3):
            if rho == 2: a.e('s_waitcnt lgkmcnt(6)')
            if rho == 3:
                a.e('s_waitcnt lgkmcnt(0)')
                if after_in: after_in()
            for i in range(6):
                for r in range(4):
                    x = O + 4*i + r; y = IN + 24*(rho-1) + 4*i + r
                    if kind == 'O': a.e(f'v_fmac_f32 v{x}, v{y}, v{FA+rho*3+(i%3)}')
                    else: a.e(f'v_add_f32 v{x}, v{x}, v{y}')
        for tau in range(2):
            for qt in range(3):
                x = Oreg(tau, qt); d = IN + (tau*3+qt)*2
                a.e(f'v_cvt_pk_bf16_f32 v{d}, v{x}, v{x+1}'); a.e(f'v_cvt_pk_bf16_f32 v{d+1}, v{x+2}, v{x+3}')
        for tau in range(2):
            for qt in range(3):
                d = IN + (tau*3+qt)*2
                a.e(f'ds_write_b64 v{t+4}, {vr(d, 2)} offset:{qt*1024 + tau*uoff}')
        pump(4)
        if kind == 'O':
            for s in range(4):
                a.e(f's_add_u32 s{S_T}, s{S_RW}, {s}'); a.e(f's_and_b32 s{S_T}, s{S_T}, 3'); a.e(f's_lshl_b32 s{S_T}, s{S_T}, 13')
                a.e(f's_add_u32 s{S_T}, s{S_T}, {AUX}'); a.e(f'v_add_u32 v{t+5+s}, s{S_T}, v{V_L16}')
        else:
            a.e(f'v_add_u32 v{t+5}, {AUX}, v{V_L16}')
        a.e('s_waitcnt lgkmcnt(0)'); a.e('s_barrier')
        for s in range(4):
            for qt in range(3):
                if kind == 'Q': a.e(f'ds_read_b128 {aq(qt, s)}, v{t+5} offset:{s*8192 + qt*1024}')
                else: a.e(f'ds_read_b128 {ax(qt, s)}, v{t+5+s} offset:{qt*1024}')
        pump(4)
        a.e('s_waitcnt lgkmcnt(0)')

    def set_flag(u, lbl):
        a.e(f's_cmp_lg_u32 s{S_W}, 0'); a.e(f's_cbranch_scc1 {lbl}')
        a.e('s_mov_b64 exec, 1'); a.e(f'v_mov_b32 v{TMP}, 0'); a.e(f'v_mov_b32 v{TMP+1}, 1')
        a.e(f'buffer_store_dword v{TMP+1}, v{TMP}, s[{R_FLG}:{R_FLG+3}], s{S_FG[u]} offen sc1')
        a.e('s_mov_b64 exec, -1')
        a.label(lbl)
        a.nop(2)

    def store_thunks(u):
        r = SRD[u]['PT']
        out = []
        for qt in range(3):
            for pi in range(4):
                def th(qt=qt, pi=pi):
                    d = IN + (qt*4+pi)*4
                    if pi == 0: a.e(f's_mov_b32 s{S_T3}, {qt*4096}')
                    a.vmop('ST', f'buffer_store_dwordx4 {vr(d, 4)}, v{V_ST}, s[{r}:{r+3}], s{S_T3} offen offset:{pi*1024}{cfg.st_flags}')
                out.append(th)
        return out
    def stores(u):
        for i, th in enumerate(store_thunks(u)):
            th()
            if i % 4 == 3: pump()
    loops = []
    def qphase(srdWQ, rw, sl, after_step, after_in, pfx='', count=False):
        for j in range(4):
            a.e(f's_add_u32 s{S_T}, s{rw}, {j}'); a.e(f's_and_b32 s{S_T}, s{S_T}, 3'); a.e(f's_lshl_b32 s{S_T}, s{S_T}, 6')
            a.e(f'v_xor_b32 v{TMP+2*j}, s{S_T}, v{V_XB}'); a.e(f'v_xor_b32 v{TMP+2*j+1}, 32, v{TMP+2*j}')
        wait_vm(f'{pfx}X1')
        if count:
            a.e(f's_cmp_lg_u32 s{S_W}, 0'); a.e(f's_cbranch_scc1 L_nocount{count}')
            a.e('s_mov_b64 exec, 1'); a.e('v_mov_b32 v1, 0'); a.e('v_mov_b32 v2, 1')
            a.e('buffer_atomic_add v2, v1, s[80:83], 0 offen sc1')
            a.e('s_mov_b64 exec, -1')
            a.label(f'L_nocount{count}')
        for qt in range(3):
            for j in range(4):
                for uu in range(2):
                    r = AX + (qt*4 + j)*4 + uu*2
                    off = (sl(0)*8192 + qt*4096) if qt < 2 else sl(1)*8192
                    a.e(f'ds_read_b64 a[{r}:{r+1}], v{TMP+2*j+uu} offset:{off}')
        a.e('s_waitcnt lgkmcnt(0)')
        dma_wq(srdWQ, 2, sl(0), rw, pfx); dma_wq(srdWQ, 3, sl(1), rw, pfx); flush()
        wslot = [sl(2), sl(3), sl(0), sl(1)]
        for j in range(4):
            wait_vm(f'{pfx}W{j}')
            pvw(wslot[j], lambda qt, j=j: ax(qt, j), j == 0, after_step[j])
        flush()
        a.nop(8)
        a.e('s_barrier')
        exchange('Q', sl(0), sl(1), after_in)
        flush()

    def unit(u, br):
        isA = br == 'A'
        sg = 2 if (u == 2 and isA) else 0
        sl = lambda n: (n + sg) & 3
        fk, fv = (cfg.flA, cfg.flA) if isA else (cfg.flBK, cfg.flBV)
        a.c(f'================ {br}{br} unit {u}')
        if not (u == 2 and not isA):
            a.e(f's_mov_b32 s{S_STEP}, 0'); a.e(f's_mov_b32 s{S_VSTEP}, 0')
            j0 = 2
            steps = [None]*4
            steps[j0] = lambda: dma_kv(0, u, 'K', sl(2), fk)
            steps[j0+1] = lambda: dma_kv(0, u, 'V', sl(3), fv)
            qphase(SRD[u]['WQ'], S_RW, sl, steps, lambda: dma_kv(1, u, 'K', sl(0), fk), count=('B' if (u == 1 and not isA) else False))
        else:
            wait_vm('QF')
        stamp()
        wait_vm('K0'); k_reads(sl(2))
        for i in range(96): a.e(f'v_mov_b32 v{O+i}, 0')
        for qt in range(3):
            a.e(f'v_mov_b32 v{M_(qt)}, 0'); a.e(f'v_mov_b32 v{L_(qt)}, 0')
        a.e(f's_mov_b32 s{S_THR}, 0xff800000'); a.e(f's_mov_b32 s{S_FLOOR}, 0xff800000')
        a.e('s_waitcnt lgkmcnt(0)')
        dma_kv(2, u, 'K', sl(2), fk); dma_kv(1, u, 'V', sl(1), fv)
        for i, m in enumerate(qk_mfmas(0)):
            a.e(m)
            if i % 3 == 2: pump()
        wait_vm('K1'); k_reads(sl(0))
        flush()
        a.nop(4)
        for c, s_ in sm_first(0): a.e(s_)
        sm_check(0)
        assert a.vm[-16:] == ['K0']*8 + ['V1']*8, a.vm
        steady = ['V0']*8 + ['K0']*8 + ['V1']*8
        a.e(f's_mov_b32 s{S_CNT}, 6')
        a.vm = list(steady)
        a.label(f'L_loop{br}{u}')
        start = len(a.L)
        for i in (0, 1):
            stage1(i, sl, True, lambda i=i: dma_kv(i+3, u, 'K', kslot(sl, i+3), fk))
            stage2(i, sl, True, lambda i=i: dma_kv(i+2, u, 'V', vslot(sl, i+2), fv), True)
        a.e(f's_sub_u32 s{S_CNT}, s{S_CNT}, 1'); a.e(f's_cmp_lg_u32 s{S_CNT}, 0'); a.e(f's_cbranch_scc1 L_loop{br}{u}')
        assert not pend and a.vm[-24:] == steady, a.vm
        loops.append((start, len(a.L)))
        stamp()
        getq = (u == 1 and not isA)
        def qflag_loads():
            a.e(f's_mov_b32 s80, s{R_DBGK}'); a.e(f's_mov_b32 s81, s{R_DBGK+1}'); a.e('s_mov_b32 s82, 256'); a.e('s_mov_b32 s83, 0x20000')
            a.e('v_mov_b32 v15, 0')
            a.vmop('QC', f'buffer_load_dword v13, v15, s[{R_FLG}:{R_FLG+3}], s{S_QF} offen sc1')
            a.vmop('QC', 'buffer_load_dword v14, v15, s[80:83], 0 offen sc1')
        stage1(12, sl, True, lambda: dma_kv(15, u, 'K', kslot(sl, 15), fk))
        stage2(12, sl, True, lambda: dma_kv(14, u, 'V', vslot(sl, 14), fv), True)
        stage1(13, sl, True, lambda: dma_wo(u, 0, sl(2)))
        stage2(13, sl, True, lambda: dma_kv(15, u, 'V', vslot(sl, 15), fv), True)
        stage1(14, sl, True, qflag_loads if getq else None)
        stage2(14, sl, True, lambda: dma_wo(u, 1, sl(3)), False)
        stage1(15, sl, False, None)
        stage2(15, sl, False, None, False)
        stamp()
        if getq:
            wait_vm('QC')
            a.e(f's_mov_b32 s{S_T}, 20000')
            a.label('L_qchk')
            a.e('v_readfirstlane_b32 s84, v13'); a.e('v_readfirstlane_b32 s85, v14')
            a.e('s_nop 3')
            a.e('s_cmp_eq_u32 s84, 1'); a.e('s_cselect_b32 s84, 256, 0'); a.e('s_cmp_eq_u32 s84, s85'); a.e('s_cbranch_scc1 L_qok')
            a.e('s_sleep 2')
            a.e(f'buffer_load_dword v13, v15, s[{R_FLG}:{R_FLG+3}], s{S_QF} offen sc1')
            a.e('buffer_load_dword v14, v15, s[80:83], 0 offen sc1')
            a.e('s_waitcnt vmcnt(0)')
            a.e(f's_sub_u32 s{S_T}, s{S_T}, 1'); a.e(f's_cmp_lg_u32 s{S_T}, 0'); a.e('s_cbranch_scc1 L_qchk')
            a.label('L_qok')
            for s_ in range(4):
                for qt in range(3):
                    idx = s_*3 + qt
                    if idx % 4 == 0: a.e(f's_mov_b32 s{S_T3}, {(idx//4)*4096}')
                    a.vmop('QF', f'buffer_load_dwordx4 {aq(qt, s_)}, v{V_L16}, s[{R_QI}:{R_QI+3}], s{S_T3} offen offset:{(idx%4)*1024} sc1')
            a.e(f's_mov_b32 s{S_STEP}, 0'); a.e(f's_mov_b32 s{S_VSTEP}, 0')
        a.c('--- stats')
        allreduce3([L_(qt) for qt in range(3)], 'v_add_f32')
        t = TMP
        a.e(f'v_and_b32 v{t}, 15, v{V_LANE}'); a.e(f'v_lshlrev_b32 v{t}, 3, v{t}')
        a.e(f's_lshl_b32 s{S_T}, s{S_W}, 13'); a.e(f's_add_u32 s{S_T}, s{S_T}, {AUX+6144}'); a.e(f'v_add_u32 v{t+1}, s{S_T}, v{t}')
        for qt in range(3): a.e(f'ds_write_b64 v{t+1}, {vr(M_(qt), 2)} offset:{qt*128}')
        a.e('s_waitcnt lgkmcnt(0)'); a.e('s_barrier')
        exchange('O', sl(0), sl(1), lambda: (dma_wo(u, 2, sl(0)), dma_wo(u, 3, sl(1))))
        stamp()
        oslot = [sl(2), sl(3), sl(0), sl(1)]
        if u == 2:
            for i in range(96): a.e(f'v_accvgpr_read_b32 v{O+i}, a{ASAVE+i}')
        for s_ in range(4):
            wait_vm(f'WO{s_}')
            after = None
            if u == 1 and isA:
                after = [lambda: dma_x(SRD[1]['X'], 0, oslot[0]), lambda: dma_x(SRD[1]['X'], 1, oslot[1]), lambda: dma_wq(SRD[2]['WQ'], 0, oslot[2]), lambda: dma_wq(SRD[2]['WQ'], 1, oslot[3])][s_]
            if u == 1 and not isA:
                after = [lambda: dma_kv(0, 2, 'K', 2, fk), lambda: dma_kv(0, 2, 'V', 3, fv), lambda: dma_kv(1, 2, 'K', 0, fk), None][s_]
            pvw(oslot[s_], lambda qt, s_=s_: ax(qt, s_), s_ == 0 and u == 1, after)
        a.nop(8)
        stamp()
        if u == 1:
            for i in range(96):
                a.e(f'v_accvgpr_write_b32 a{ASAVE+i}, v{O+i}')
                if i % 12 == 11: pump()
            if not isA: flush()
            return
        for qt in range(3):
            for pi in range(4):
                d = IN + (qt*4+pi)*4
                for h2 in range(2):
                    x = Oreg(2*pi+h2, qt)
                    a.e(f'v_cvt_pk_bf16_f32 v{d+2*h2}, v{x}, v{x+1}'); a.e(f'v_cvt_pk_bf16_f32 v{d+2*h2+1}, v{x+2}, v{x+3}')
        stores(u)

    def build_u2():
        r = SRD[2]['K']; r1 = SRD[1]['K']
        a.e(f's_add_u32 s{r}, s{r1}, s{S_KD}'); a.e(f's_addc_u32 s{r+1}, s{r1+1}, 0'); a.e(f's_mov_b32 s{r+2}, 0x80000'); a.e(f's_mov_b32 s{r+3}, 0x20000')
        r = SRD[2]['WQ']; r1 = SRD[1]['WQ']
        a.e(f's_add_u32 s{r}, s{r1}, 4096'); a.e(f's_addc_u32 s{r+1}, s{r1+1}, 0'); a.e(f's_sub_u32 s{r+2}, s{r1+2}, 4096'); a.e(f's_mov_b32 s{r+3}, 0x20000')

    n0 = nst[0]
    a.e(f's_cmp_eq_u32 s{S_ISA[1]}, 0'); a.e('s_cbranch_scc1 L_progB')
    a.vm = []
    sl0 = lambda n: n & 3
    PX, PWQ = SRD[2]['K'], SRD[2]['WQ']
    dma_x(PX, 0, 0, 'p'); dma_x(PX, 1, 1, 'p'); dma_wq(PWQ, 0, 2, S_RWP, 'p'); dma_wq(PWQ, 1, 3, S_RWP, 'p'); flush()
    qphase(PWQ, S_RWP, sl0,
           [lambda: dma_wq(SRD[1]['WQ'], 0, 2), lambda: dma_wq(SRD[1]['WQ'], 1, 3), None, None],
           lambda: (dma_x(SRD[1]['X'], 0, 0), dma_x(SRD[1]['X'], 1, 1)), pfx='p', count='A')
    build_u2()
    a.e(f's_cmp_lg_u32 s{S_W}, 0'); a.e('s_cbranch_scc1 L_nopub')
    for s_ in range(4):
        for qt in range(3):
            idx = s_*3 + qt
            if idx % 4 == 0: a.e(f's_mov_b32 s{S_T3}, {(idx//4)*4096}')
            a.e(f'buffer_store_dwordx4 {aq(qt, s_)}, v{V_L16}, s[{R_QI}:{R_QI+3}], s{S_T3} offen offset:{(idx%4)*1024} sc1')
    a.e('s_waitcnt vmcnt(0)')
    a.e('s_mov_b64 exec, 1'); a.e('v_mov_b32 v1, 0'); a.e('v_mov_b32 v2, 1')
    a.e(f'buffer_store_dword v2, v1, s[{R_FLG}:{R_FLG+3}], s{S_QF} offen sc1')
    a.e('s_mov_b64 exec, -1')
    a.label('L_nopub')
    stamp()
    if cfg.rotA: a.e(f's_mov_b32 s{S_ROT}, s{S_HH}')
    else: a.e(f's_mov_b32 s{S_ROT}, 0')
    unit(1, 'A')
    unit(2, 'A')
    a.e('s_branch L_final')
    a.label('L_progB')
    nst[0] = n0
    a.vm = []; assert not pend
    build_u2()
    a.e(f's_mov_b32 s{S_ROT}, 0')
    dma_x(SRD[1]['X'], 0, 0); dma_x(SRD[1]['X'], 1, 1); dma_wq(SRD[1]['WQ'], 0, 2); dma_wq(SRD[1]['WQ'], 1, 3); flush()
    stamp()
    unit(1, 'B')
    unit(2, 'B')
    a.label('L_final')
    a.c('================ final reduce')
    a.e('s_load_dwordx4 s[28:31], s[0:1], 80')
    a.e('s_load_dwordx2 s[32:33], s[0:1], 96')
    a.e(f's_lshl_b32 s{S_T}, s{S_W}, 6'); a.e(f'v_add_u32 v1, s{S_T}, v{V_LANE}')
    a.e(f's_bfe_u32 s{S_T+1}, s{S_FG[2]}, 0x50002'); a.e(f's_mul_i32 s{S_T+1}, s{S_T+1}, 192')
    a.e(f'v_add_u32 v3, s{S_T+1}, v1')
    a.e('v_lshlrev_b32 v2, 4, v3')
    a.e('v_lshrrev_b32 v5, 8, v3'); a.e('v_mul_u32_u24 v5, 21846, v5'); a.e('v_lshrrev_b32 v5, 16, v5')
    a.e('v_mul_u32_u24 v6, 768, v5'); a.e('v_sub_u32 v6, v3, v6')
    a.e('v_lshrrev_b32 v7, 6, v6'); a.e('v_and_b32 v8, 63, v6')
    a.e('v_lshrrev_b32 v9, 2, v7'); a.e('v_and_b32 v10, 3, v7')
    a.e('v_add_u32 v11, v5, v10'); a.e('v_lshlrev_b32 v11, 1, v11')
    a.e('v_and_b32 v12, 15, v8'); a.e('v_lshl_add_u32 v12, v9, 4, v12'); a.e('v_lshlrev_b32 v12, 11, v12')
    a.e('v_lshl_add_u32 v12, v5, 8, v12'); a.e('v_lshrrev_b32 v13, 4, v8'); a.e('v_lshl_add_u32 v12, v13, 3, v12')
    a.e('v_and_b32 v13, 7, v11'); a.e('v_lshl_add_u32 v13, v13, 5, v12')
    a.e('v_add_u32 v11, 1, v11'); a.e('v_and_b32 v11, 7, v11'); a.e('v_lshl_add_u32 v14, v11, 5, v12')
    a.wait_vm_all()
    a.e('s_waitcnt lgkmcnt(0)')
    a.e('s_barrier')
    a.e('s_mov_b32 s36, s28'); a.e('s_mov_b32 s37, s29'); a.e('s_mov_b32 s38, 786432'); a.e('s_mov_b32 s39, 0x20000')
    a.e('s_mov_b32 s40, s30'); a.e('s_mov_b32 s41, s31'); a.e('s_mov_b32 s42, 256'); a.e('s_mov_b32 s43, 0x20000')
    a.e(f's_cmp_lg_u32 s{S_W}, 0'); a.e('s_cbranch_scc1 L_pd')
    a.e('s_mov_b64 exec, 1'); a.e('v_mov_b32 v15, 0'); a.e('v_mov_b32 v16, 1')
    a.e(f'buffer_store_dword v16, v15, s[{R_FLG}:{R_FLG+3}], s{S_FG[2]} offen sc1')
    a.e('s_mov_b64 exec, -1')
    stamp()
    a.e(f'v_and_b32 v17, 15, v{V_LANE}'); a.e('v_lshlrev_b32 v17, 2, v17')
    a.e(f's_and_b32 s{S_T+1}, s{S_FG[2]}, -128'); a.e(f's_mov_b32 s{S_T+2}, 8000')
    a.e('v_mov_b32 v18, 0'); a.e('v_mov_b32 v19, 0x100')
    a.label('L_poll')
    a.e(f'buffer_load_dword v20, v17, s[{R_FLG}:{R_FLG+3}], s{S_T+1} offen sc1')
    a.e('buffer_load_dword v21, v18, s[40:43], 0 offen sc1')
    a.e('s_waitcnt vmcnt(0)')
    a.e('v_cmp_eq_u32 vcc, 1, v20'); a.e('v_cmp_eq_u32 s[44:45], v19, v21')
    a.e('s_nop 1')
    a.e('s_and_b64 vcc, vcc, s[44:45]'); a.e('s_cmp_eq_u64 vcc, -1'); a.e('s_cbranch_scc1 L_pd')
    a.e('s_sleep 1')
    a.e(f's_sub_u32 s{S_T+2}, s{S_T+2}, 1'); a.e(f's_cmp_lg_u32 s{S_T+2}, 0'); a.e('s_cbranch_scc1 L_poll')
    a.label('L_pd')
    a.e('s_barrier')
    stamp()
    a.e(f's_cmp_eq_u32 s{S_W}, 3'); a.e('s_cbranch_scc1 L_rd')
    a.e(f's_lshr_b32 s{S_T}, s{S_FG[2]}, 7')
    a.e(f's_mul_i32 s{S_T+1}, s{S_T}, 786432')
    a.e(f's_add_u32 s44, s32, s{S_T+1}'); a.e('s_addc_u32 s45, s33, 0'); a.e('s_mov_b32 s46, 786432'); a.e('s_mov_b32 s47, 0x20000')
    for h in range(16):
        a.e(f's_mov_b32 s48, {h*49152}')
        a.e(f'buffer_load_dwordx4 v[{48+4*h}:{51+4*h}], v2, s[44:47], s48 offen sc1')
    a.e(f's_and_b32 s49, s{S_T}, 7'); a.e('s_mul_i32 s49, s49, 98304'); a.e(f's_lshr_b32 s50, s{S_T}, 3'); a.e('s_lshl_b32 s50, s50, 10'); a.e('s_add_u32 s49, s49, s50')
    for i in range(8): a.e(f'v_mov_b32 v{20+i}, 0')
    for h in range(16):
        a.e(f's_waitcnt vmcnt({15-h})')
        for d in range(4):
            r = 48 + 4*h + d
            a.e(f'v_lshlrev_b32 v28, 16, v{r}'); a.e(f'v_and_b32 v29, 0xffff0000, v{r}')
            a.e(f'v_add_f32 v{20+2*d}, v{20+2*d}, v28'); a.e(f'v_add_f32 v{21+2*d}, v{21+2*d}, v29')
    a.e('v_cvt_pk_bf16_f32 v30, v20, v21'); a.e('v_cvt_pk_bf16_f32 v31, v22, v23')
    a.e('v_cvt_pk_bf16_f32 v32, v24, v25'); a.e('v_cvt_pk_bf16_f32 v33, v26, v27')
    a.e(f'buffer_store_dwordx2 v[30:31], v13, s[36:39], s49 offen{cfg.out_flags}')
    a.e(f'buffer_store_dwordx2 v[32:33], v14, s[36:39], s49 offen{cfg.out_flags}')
    a.label('L_rd')
    a.e('s_waitcnt vmcnt(0)')
    if cfg.stamps:
        stamp()
        a.e('s_memtime s[98:99]'); a.e('s_memrealtime s[100:101]'); a.e('s_waitcnt lgkmcnt(0)')
        a.e('v_mov_b32 v252, s98'); a.e('v_mov_b32 v253, s100')
        a.e('v_readfirstlane_b32 s2, v251')
        a.e('s_add_u32 s32, s32, 0x4000000'); a.e('s_addc_u32 s33, s33, 0'); a.e('s_mov_b32 s34, 0x100000'); a.e('s_mov_b32 s35, 0x20000')
        a.e('s_nop 3')
        a.e(f's_lshl_b32 s94, s2, 2'); a.e(f's_add_u32 s94, s94, s{S_W}'); a.e('s_lshl_b32 s94, s94, 7')
        a.e('v_mov_b32 v1, 0')
        a.e(f'buffer_store_dword v255, v1, s[32:35], s94 offen')
        a.e(f'buffer_store_dwordx4 v[252:255], v1, s[32:35], s94 offen offset:96')
        for i in range(nst[0]):
            a.e(f'v_mov_b32 v2, s{STAMP0+i}')
            a.e(f'buffer_store_dword v2, v1, s[32:35], s94 offen offset:{4*i+4}')
            a.e('s_nop 1')
        a.e('s_waitcnt vmcnt(0)')
    a.label('L_end')
    a.e('s_endpgm')
    for buf in (0, 1):
        a.label(f'L_rescale{buf}')
        t = TMP
        allreduce3([TMP+qt for qt in range(3)], 'v_max_f32')
        for qt in range(3): a.e(f'v_max_f32 v{t+qt}, s{S_FLOOR}, v{t+qt}')
        for qt in range(3):
            a.e(f'v_add_f32 v{M_(qt)}, v{M_(qt)}, v{t+qt}')
            a.e(f'v_max_f32 v{t+4+qt}, 0, v{t+qt}')
            a.e(f'v_sub_f32 v{t+4+qt}, 0, v{t+4+qt}')
        for qt in range(3): a.e(f'v_exp_f32 v{t+4+qt}, v{t+4+qt}')
        for kt in range(2):
            for qt in range(3):
                for r in range(4):
                    x = Sreg(buf, kt, qt) + r
                    a.e(f'v_sub_f32 v{x}, v{x}, v{t+qt}')
        for qt in range(3): a.e(f'v_mul_f32 v{L_(qt)}, v{L_(qt)}, v{t+4+qt}')
        for tau in range(8):
            for qt in range(3):
                for r in range(4):
                    x = Oreg(tau, qt) + r
                    a.e(f'v_mul_f32 v{x}, v{x}, v{t+4+qt}')
        a.e(f's_mov_b32 s{S_THR}, {f32bits(cfg.thr):#x}'); a.e(f's_mov_b32 s{S_FLOOR}, 0')
        a.e(f's_setpc_b64 s[{S_RET}:{S_RET+1}]')

    a.e('.section .rodata,"a"')
    a.e('.p2align 6'); a.e(f'.amdhsa_kernel {KN}')
    a.e('  .amdhsa_next_free_vgpr 512'); a.e('  .amdhsa_next_free_sgpr 102'); a.e('  .amdhsa_accum_offset 256')
    a.e('  .amdhsa_group_segment_fixed_size 0'); a.e('  .amdhsa_kernarg_size 104'); a.e('  .amdhsa_user_sgpr_count 2')
    a.e('  .amdhsa_user_sgpr_kernarg_segment_ptr 1'); a.e('  .amdhsa_system_sgpr_workgroup_id_x 1')
    a.e('  .amdhsa_float_denorm_mode_32 3'); a.e('  .amdhsa_float_denorm_mode_16_64 3')
    a.e('.end_amdhsa_kernel')
    probs = check(a.L)
    for (s0, s1) in loops: probs += check(a.L[s0:s1] + a.L[s0:s1])
    return a.text(), probs, nst[0]

if __name__ == '__main__':
    cfg = Cfg()
    for kv in sys.argv[2:]:
        k, v = kv.split('=', 1); setattr(cfg, k, eval(v))
    txt, probs, n = gen(cfg)
    for p in probs: print('HAZARD', p)
    open(sys.argv[1], 'w').write(txt)
    print('written', sys.argv[1], len(txt), 'stamps', n)
```

```python
import sys, struct, math
from asmlib import Asm, check

KN = 'concat_heads__gqa_block_cached__mha_block_cached__near_ridge_kernel'

V_LANE = 0
TRA = 16; KA = 24; DE, DO = 28, 29; ML = 30
def M_(qt): return ML + 2*qt
def L_(qt): return ML + 2*qt + 1
TMP = 36; S0 = 48; S1 = 72; P = 96; XT = 108; O = 120
IN = 48
QE, QO, OE, OO = 216, 217, 218, 219
V_L16, V_XB, V_ST = 220, 221, 222
def Oreg(tau, qt): return O + (tau*3 + qt)*4
def Sreg(buf, kt, qt): return (S0 if buf == 0 else S1) + (kt*3 + qt)*4
AQ, AX, AK, AV, ASAVE = 0, 48, 96, 128, 160
def ar(b, n): return f'a[{b}:{b+n-1}]'
def aq(qt, s): return ar(AQ + (qt*4 + s)*4, 4)
def ax(qt, s): return ar(AX + (qt*4 + s)*4, 4)
def vr(b, n): return f'v[{b}:{b+n-1}]' if n > 1 else f'v{b}'
R_FLG = 4
S_FG = {1: 8, 2: 9}
S_ISA = {1: 10, 2: 11}
STAMP0 = 12
SRD = {1: dict(K=28, V=32, WQ=36, X=40, WO=44, PT=48), 2: dict(K=52, V=56, WQ=60, X=64, WO=68, PT=72)}
S_W, S_LB, S_OFF, S_T = 76, 77, 78, 79
S_CNT, S_THR, S_FLOOR, S_C, S_RET = 86, 87, 88, 89, 90
S_WQO, S_XO, S_T2, S_T3, S_STEP, S_ROT, S_T4, S_W8 = 92, 93, 94, 95, 96, 97, 98, 99
S_HH = 3
S_KD = 48
S_RWP = 49
R_DBGK = 50
S_RW = 2
S_WB = 85
AUX = 131072
FLG_OFF = 0x2000000
QFLG = 4096
QIMG_OFF = 0x2100000
R_QI = 64
S_QF = 8

class Cfg:
    afirst = 0x55
    flA = ''
    flBK = ' nt'; flBV = ' nt'
    rotA = True
    rotW = True
    nt_w = False
    thr = 8.0
    st_flags = ' sc1'
    stamps = False
    fine = None
    dynflags = True
    late_st = True
    st_in_exch = True
    kv0_late = True
    fastpoll = True
    out_flags = ''
    rw_mode = 0
    pf_blocks = 0
    pf_flags = ''
    fake_joint = 0
    setup_stamp = False
    pf_keep = 16
    pf_first = 0

def f32bits(x): return struct.unpack('<I', struct.pack('<f', x))[0]

def gen(cfg=Cfg()):
    a = Asm()
    a.e(f'; @launch grid=(256,1,1) block=(256,1,1) lds=163840')
    a.e('.amdgcn_target "amdgcn-amd-amdhsa--gfx950"')
    a.e('.text')
    a.e(f'.globl {KN}'); a.e('.p2align 8'); a.e(f'.type {KN},@function'); a.label(KN)
    a.e('s_cmp_ge_u32 s2, 256'); a.e('s_cbranch_scc1 L_end')
    nst = [0]
    fon = [False]
    def fs():
        if not (cfg.fine and fon[0]): return
        a.e('s_memrealtime s[100:101]'); a.e('s_waitcnt lgkmcnt(0)'); a.e(f's_mov_b32 s{STAMP0+nst[0]}, s100'); nst[0] += 1
        assert nst[0] <= 16
    def stamp():
        if cfg.fine or not cfg.stamps: return
        a.e('s_memrealtime s[100:101]'); a.e('s_waitcnt lgkmcnt(0)'); a.e(f's_mov_b32 s{STAMP0+nst[0]}, s100'); nst[0] += 1
        assert nst[0] <= 16
    if cfg.stamps:
        a.e('s_memrealtime s[100:101]'); a.e('s_waitcnt lgkmcnt(0)'); a.e('v_mov_b32 v255, s100')
        a.e('s_memtime s[100:101]'); a.e('s_waitcnt lgkmcnt(0)'); a.e('v_mov_b32 v254, s100')
        a.e('v_mov_b32 v251, s2')
    a.e('s_load_dwordx16 s[12:27], s[0:1], 0')
    a.e('s_load_dwordx4 s[84:87], s[0:1], 64')
    a.e('s_load_dwordx4 s[88:91], s[0:1], 88')
    a.e(f'v_lshrrev_b32 v1, 6, v0')
    a.e(f'v_and_b32 v{V_LANE}, 63, v0')
    a.e(f'v_readfirstlane_b32 s{S_W}, v1')
    a.e(f'v_and_b32 v2, 15, v{V_LANE}'); a.e(f'v_lshrrev_b32 v3, 4, v{V_LANE}')
    a.e(f'v_lshlrev_b32 v{V_L16}, 4, v{V_LANE}')
    a.e(f's_lshl_b32 s{S_LB}, s{S_W}, 15')
    a.e('v_lshlrev_b32 v4, 1, v3'); a.e('v_xor_b32 v4, v2, v4'); a.e('v_lshlrev_b32 v4, 4, v4')
    a.e(f'v_lshl_add_u32 v{DE}, v3, 8, v4'); a.e(f'v_xor_b32 v{DO}, 0x80, v{DE}')
    a.e(f'v_lshl_add_u32 v{QE}, v3, 13, v4'); a.e(f'v_xor_b32 v{QO}, 0x80, v{QE}')
    a.e(f'v_lshl_add_u32 v{OE}, v3, 10, v4'); a.e(f'v_xor_b32 v{OO}, 0x80, v{OE}')
    a.e('v_and_b32 v5, 7, v2'); a.e('v_lshlrev_b32 v5, 1, v5')
    a.e('v_xor_b32 v6, v3, v5'); a.e('v_lshlrev_b32 v6, 4, v6')
    a.e('v_lshl_add_u32 v6, v2, 8, v6'); a.e(f'v_add_u32 v{KA}, s{S_LB}, v6')
    for s in range(1, 4): a.e(f'v_xor_b32 v{KA+s}, {s<<6}, v{KA}')
    a.e('v_lshrrev_b32 v6, 1, v3'); a.e('v_xor_b32 v6, v6, v5'); a.e('v_lshlrev_b32 v6, 4, v6')
    a.e('v_and_b32 v7, 1, v3'); a.e('v_lshl_add_u32 v6, v7, 3, v6')
    a.e('v_lshl_add_u32 v6, v2, 8, v6'); a.e(f'v_add_u32 v{V_XB}, s{S_LB}, v6')
    a.e('v_lshrrev_b32 v6, 2, v2'); a.e('v_lshl_add_u32 v6, v3, 2, v6')
    a.e('v_and_b32 v7, 7, v6'); a.e('v_lshlrev_b32 v7, 1, v7')
    a.e('v_bfe_u32 v8, v2, 1, 1'); a.e('v_xor_b32 v7, v8, v7'); a.e('v_lshlrev_b32 v7, 4, v7')
    a.e('v_and_b32 v8, 1, v2'); a.e('v_lshl_add_u32 v7, v8, 3, v7')
    a.e('v_lshl_add_u32 v7, v6, 8, v7'); a.e(f'v_add_u32 v7, s{S_LB}, v7')
    a.e(f's_lshl_b32 s{S_T}, s{S_W}, 1')
    for tau in range(8):
        a.e(f's_add_u32 s{S_T+1}, s{S_T}, {tau}'); a.e(f's_and_b32 s{S_T+1}, s{S_T+1}, 7'); a.e(f's_lshl_b32 s{S_T+1}, s{S_T+1}, 5')
        a.e(f'v_xor_b32 v{TRA+tau}, s{S_T+1}, v7')
    a.e(f's_mul_i32 s{S_T}, s{S_W}, 12288'); a.e(f'v_add_u32 v{V_ST}, s{S_T}, v{V_L16}')
    a.e(f's_lshl_b32 s{S_W8}, s{S_W}, 13')
    a.e('s_and_b32 s79, s2, 7'); a.e('s_lshr_b32 s80, s2, 3')
    a.e('s_and_b32 s94, s80, 15'); a.e('s_lshl_b32 s95, s79, 4'); a.e('s_add_u32 s95, s95, s94')
    a.e('s_lshr_b32 s92, s94, 1'); a.e('s_and_b32 s93, s94, 1'); a.e('s_lshl_b32 s96, s79, 1'); a.e('s_add_u32 s93, s93, s96')
    a.e('s_cmp_lt_u32 s80, 16'); a.e(f's_cselect_b32 s{S_ISA[1]}, 1, 0'); a.e(f's_mov_b32 s{S_ISA[2]}, s{S_ISA[1]}')
    a.e('s_cbranch_scc0 L_idB')
    a.e('s_lshr_b32 s96, s79, 1'); a.e('s_and_b32 s81, s79, 1'); a.e('s_lshl_b32 s81, s81, 2'); a.e('s_lshr_b32 s97, s80, 2'); a.e('s_add_u32 s81, s81, s97')
    a.e(f's_and_b32 s{S_HH}, s80, 3'); a.e('s_lshl_b32 s83, s96, 2'); a.e(f's_add_u32 s83, s83, s{S_HH}')
    a.e('s_lshl_b32 s79, s81, 3'); a.e('s_add_u32 s79, s79, s96')
    if cfg.fake_joint:
        a.e(f's_lshr_b32 s97, s{S_HH}, 1'); a.e('s_lshl_b32 s97, s97, 2'); a.e('s_add_u32 s79, s79, s97')
        a.e(f's_and_b32 s{S_HH}, s{S_HH}, 1'); a.e(f's_lshl_b32 s{S_HH}, s{S_HH}, 1')
    a.e('s_branch L_iddone')
    a.label('L_idB')
    a.e('s_mov_b32 s81, s92'); a.e('s_mov_b32 s83, s93'); a.e(f's_mov_b32 s{S_HH}, 0')
    a.e('s_lshl_b32 s79, s81, 5'); a.e('s_add_u32 s79, s79, s83')
    a.label('L_iddone')
    if cfg.rotW: a.e(f's_and_b32 s{S_RW}, s81, 3')
    else: a.e(f's_mov_b32 s{S_RW}, 0')
    a.e('s_waitcnt lgkmcnt(0)')
    R = SRD[1]; R2 = SRD[2]
    a.e(f's_cmp_eq_u32 s{S_ISA[1]}, 1')
    for name, pa, pb in (('X', 12, 22), ('K', 14, 24), ('V', 16, 26), ('WQ', 18, 84), ('WO', 20, 86)):
        r = R[name]
        a.e(f's_cselect_b32 s{r}, s{pa}, s{pb}'); a.e(f's_cselect_b32 s{r+1}, s{pa+1}, s{pb+1}')
    a.e('s_mov_b32 s80, 0x800000'); a.e(f's_cselect_b32 s80, {0 if cfg.fake_joint else 0x200000}, s80')
    a.e('s_lshl_b32 s96, s79, 19'); a.e('s_lshr_b32 s97, s79, 13')
    for name in ('K', 'V'):
        r = R[name]
        a.e(f's_add_u32 s{r}, s{r}, s96'); a.e(f's_addc_u32 s{r+1}, s{r+1}, s97')
        a.e(f's_mov_b32 s{r+2}, 0x80000'); a.e(f's_mov_b32 s{r+3}, 0x20000')
    r = R['X']; a.e('s_mul_i32 s96, s81, 49152')
    a.e(f's_add_u32 s{r}, s{r}, s96'); a.e(f's_addc_u32 s{r+1}, s{r+1}, 0'); a.e(f's_mov_b32 s{r+2}, 49152'); a.e(f's_mov_b32 s{r+3}, 0x20000')
    r = R['WQ']; a.e('s_lshl_b32 s96, s83, 8')
    a.e(f's_add_u32 s{r}, s{r}, s96'); a.e(f's_addc_u32 s{r+1}, s{r+1}, 0'); a.e(f's_sub_u32 s{r+2}, 0x400000, s96'); a.e(f's_mov_b32 s{r+3}, 0x20000')
    r = R['WO']; a.e('s_lshl_b32 s96, s83, 17')
    a.e(f's_add_u32 s{r}, s{r}, s96'); a.e(f's_addc_u32 s{r+1}, s{r+1}, 0'); a.e(f's_mov_b32 s{r+2}, 0x20000'); a.e(f's_mov_b32 s{r+3}, 0x20000')
    r = R2['V']; r1 = R['V']
    a.e(f's_add_u32 s{r}, s{r1}, s80'); a.e(f's_addc_u32 s{r+1}, s{r1+1}, 0'); a.e(f's_mov_b32 s{r+2}, 0x80000'); a.e(f's_mov_b32 s{r+3}, 0x20000')
    r = R2['WO']; r1 = R['WO']
    a.e(f's_add_u32 s{r}, s{r1}, 0x200000'); a.e(f's_addc_u32 s{r+1}, s{r1+1}, 0'); a.e(f's_mov_b32 s{r+2}, 0x20000'); a.e(f's_mov_b32 s{r+3}, 0x20000')
    a.e(f's_mov_b32 s{S_KD}, s80')
    r = R2['K']; a.e('s_mul_i32 s96, s92, 49152')
    a.e(f's_add_u32 s{r}, s22, s96'); a.e(f's_addc_u32 s{r+1}, s23, 0'); a.e(f's_mov_b32 s{r+2}, 49152'); a.e(f's_mov_b32 s{r+3}, 0x20000')
    r = R2['WQ']; a.e('s_add_u32 s96, s93, 16'); a.e('s_lshl_b32 s96, s96, 8')
    a.e(f's_add_u32 s{r}, s84, s96'); a.e(f's_addc_u32 s{r+1}, s85, 0'); a.e(f's_sub_u32 s{r+2}, 0x400000, s96'); a.e(f's_mov_b32 s{r+3}, 0x20000')
    a.e(f's_and_b32 s{S_RWP}, s92, 3')
    a.e('s_mul_i32 s96, s95, 12288'); a.e(f's_add_u32 s96, s96, {QIMG_OFF:#x}')
    a.e(f's_add_u32 s{R_QI}, s90, s96'); a.e(f's_addc_u32 s{R_QI+1}, s91, 0'); a.e(f's_mov_b32 s{R_QI+2}, 12288'); a.e(f's_mov_b32 s{R_QI+3}, 0x20000')
    a.e(f's_lshl_b32 s96, s95, 7'); a.e(f's_add_u32 s{S_QF}, s96, {QFLG}')
    a.e(f's_cmp_eq_u32 s{S_ISA[1]}, 1'); a.e('s_cselect_b32 s94, 0, 8'); a.e('s_add_u32 s94, s94, s81')
    r = SRD[2]['PT']; a.e('s_lshl_b32 s93, s94, 4'); a.e('s_add_u32 s93, s93, s83'); a.e('s_mul_i32 s96, s93, 49152')
    a.e(f's_add_u32 s{r}, s90, s96'); a.e(f's_addc_u32 s{r+1}, s91, 0'); a.e(f's_mov_b32 s{r+2}, 49152'); a.e(f's_mov_b32 s{r+3}, 0x20000')
    a.e('s_lshl_b32 s94, s94, 7'); a.e('s_lshl_b32 s96, s83, 2'); a.e(f's_add_u32 s{S_FG[2]}, s94, s96')
    a.e(f's_add_u32 s{R_FLG}, s90, {FLG_OFF:#x}'); a.e(f's_addc_u32 s{R_FLG+1}, s91, 0'); a.e(f's_mov_b32 s{R_FLG+2}, 20480'); a.e(f's_mov_b32 s{R_FLG+3}, 0x20000')
    a.e(f's_lshl_b32 s{S_WQO}, s{S_W}, 20'); a.e(f's_lshl_b32 s{S_XO}, s{S_W}, 8')
    a.e('s_mov_b32 s80, s88'); a.e('s_mov_b32 s81, s89'); a.e('s_mov_b32 s82, 256'); a.e('s_mov_b32 s83, 0x20000')
    a.e(f's_mov_b32 s{R_DBGK}, s88'); a.e(f's_mov_b32 s{R_DBGK+1}, s89')
    a.e(f's_mov_b32 s{S_C}, {f32bits(math.log2(math.e) / math.sqrt(128.0)):#x}')
    a.e(f's_cmp_lg_u32 s{S_W}, 0'); a.e('s_cbranch_scc1 L_noclear')
    a.e('s_mov_b64 exec, 1'); a.e('v_mov_b32 v1, 0')
    a.e(f'buffer_store_dword v1, v1, s[{R_FLG}:{R_FLG+3}], s{S_FG[2]} offen sc1')
    a.e(f's_cmp_eq_u32 s{S_ISA[1]}, 0'); a.e('s_cbranch_scc1 L_noclear2')
    a.e(f'buffer_store_dword v1, v1, s[{R_FLG}:{R_FLG+3}], s{S_QF} offen sc1')
    a.label('L_noclear2')
    a.e('s_mov_b64 exec, -1')
    a.label('L_noclear')

    ntw = ' nt' if cfg.nt_w else ''
    pend = []
    def pump(n=1):
        for _ in range(n):
            if not pend: return
            tag, th = pend.pop(0); th()
    def flush(): pump(len(pend))
    def wait_vm(tag):
        while any(t == tag for t, _ in pend): pump()
        a.wait_vm(tag)
    DYN = 'DYN'
    dynid = [0]
    def dma(tag, srd, slot, vE, vO, RS, sbase, const, npieces=8, flags='', pre=None, dyn=None):
        for p in range(npieces):
            def th(p=p):
                if p == 0 and pre: pre()
                if p % 4 == 0: a.e(f's_add_u32 m0, s{S_LB}, {slot*8192 + (p//4)*4096}')
                off = const + p*4*RS - (p & 3)*1024
                if RS == 256:
                    if p % 4 == 0: a.e(f's_add_u32 s{S_T2}, s{sbase}, {off}')
                else:
                    a.e(f's_add_u32 s{S_T2}, s{sbase}, {off}')
                v = vE if p % 2 == 0 else vO
                if dyn is None:
                    a.vmop(tag, f'buffer_load_dwordx4 v{v}, s[{srd}:{srd+3}], s{S_T2} offen offset:{(p&3)*1024}{flags} lds')
                else:
                    isa, fa, fb = dyn
                    k = dynid[0]; dynid[0] += 1
                    a.e(f's_cmp_eq_u32 s{isa}, 0'); a.e(f's_cbranch_scc1 L_dyb{k}')
                    a.e(f'buffer_load_dwordx4 v{v}, s[{srd}:{srd+3}], s{S_T2} offen offset:{(p&3)*1024}{fa} lds')
                    a.e(f's_branch L_dye{k}'); a.label(f'L_dyb{k}')
                    a.vmop(tag, f'buffer_load_dwordx4 v{v}, s[{srd}:{srd+3}], s{S_T2} offen offset:{(p&3)*1024}{fb} lds')
                    a.label(f'L_dye{k}')
            pend.append((tag, th))
    def dma_kv(n, u, which, slot, fl):
        pre = None
        if which == 'K':
            def pre():
                a.e(f's_add_u32 s{S_T4}, s{S_STEP}, s{S_ROT}'); a.e(f's_and_b32 s{S_T4}, s{S_T4}, 3')
                a.e(f's_and_b32 s{S_OFF}, s{S_STEP}, -4'); a.e(f's_or_b32 s{S_OFF}, s{S_OFF}, s{S_T4}')
                a.e(f's_lshl_b32 s{S_OFF}, s{S_OFF}, 15'); a.e(f's_add_u32 s{S_OFF}, s{S_OFF}, s{S_W8}')
                a.e(f's_add_u32 s{S_STEP}, s{S_STEP}, 1')
            dyn = None
            if fl == DYN:
                fl = ''
                if cfg.dynflags and cfg.flA != cfg.flBK: dyn = (S_ISA[u], cfg.flA, cfg.flBK)
            dma(f'K{n&1}', SRD[u]['K'], slot, DE, DO, 256, S_OFF, 0, flags=fl, pre=pre, dyn=dyn)
        else:
            def pre():
                a.e(f's_add_u32 s{S_T4}, s{S_VSTEP}, s{S_ROT}'); a.e(f's_and_b32 s{S_T4}, s{S_T4}, 3')
                a.e(f's_and_b32 s{S_OFFV}, s{S_VSTEP}, -4'); a.e(f's_or_b32 s{S_OFFV}, s{S_OFFV}, s{S_T4}')
                a.e(f's_lshl_b32 s{S_OFFV}, s{S_OFFV}, 15'); a.e(f's_add_u32 s{S_OFFV}, s{S_OFFV}, s{S_W8}')
                a.e(f's_add_u32 s{S_VSTEP}, s{S_VSTEP}, 1')
            dyn = None
            if fl == DYN:
                fl = ''
                if cfg.dynflags and cfg.flA != cfg.flBV: dyn = (S_ISA[u], cfg.flA, cfg.flBV)
            dma(f'V{n&1}', SRD[u]['V'], slot, DE, DO, 256, S_OFFV, 0, flags=fl, pre=pre, dyn=dyn)
    S_VSTEP, S_OFFV = 84, 83
    def rot_pre(j, base_sgpr, shift, rw=S_RW):
        def pre():
            a.e(f's_add_u32 s{S_WB}, s{rw}, {j}'); a.e(f's_and_b32 s{S_WB}, s{S_WB}, 3'); a.e(f's_lshl_b32 s{S_WB}, s{S_WB}, {shift}')
            a.e(f's_add_u32 s{S_WB}, s{S_WB}, s{base_sgpr}')
        return pre
    def dma_x(srd, part, slot, pfx=''): dma(f'{pfx}X{part}', srd, slot, OE, OO, 1024, S_XO, part*32*1024, npieces=8 if part == 0 else 4, flags=ntw)
    def dma_wq(srd, j, slot, rw=S_RW, pfx=''): dma(f'{pfx}W{j}', srd, slot, QE, QO, 8192, S_WB, 0, flags=ntw, pre=rot_pre(j, S_WQO, 18, rw))
    def dma_wo(u, s, slot): dma(f'WO{s}', SRD[u]['WO'], slot, OE, OO, 1024, S_WB, 0, flags=ntw, pre=rot_pre(s, S_XO, 15))

    def tr_reads(slot):
        for tau in range(8):
            a.e(f'ds_read_b64_tr_b16 {ar(AV+4*tau, 2)}, v{TRA+tau} offset:{slot*8192}')
            a.e(f'ds_read_b64_tr_b16 {ar(AV+4*tau+2, 2)}, v{TRA+tau} offset:{slot*8192+4096}')
    def k_reads(slot):
        for s in range(4):
            for kt in range(2):
                a.e(f'ds_read_b128 {ar(AK+(s*2+kt)*4, 4)}, v{KA+s} offset:{slot*8192+kt*4096}')
    def pv_mfmas(bfrag, first):
        out = []
        for tau in range(8):
            for qt in range(3):
                d = vr(Oreg(tau, qt), 4)
                out.append(f'v_mfma_f32_16x16x32_bf16 {d}, {ar(AV+4*tau, 4)}, {bfrag(qt)}, {"0" if first else d}')
        return out
    def qk_mfmas(buf):
        out = []
        for s in range(4):
            for kt in range(2):
                for qt in range(3):
                    d = vr(Sreg(buf, kt, qt), 4)
                    out.append(f'v_mfma_f32_16x16x32_bf16 {d}, {ar(AK+(s*2+kt)*4, 4)}, {aq(qt, s)}, {"0" if s == 0 else d}')
        return out
    def pvw(slot, bfrag, first, after_reads):
        tr_reads(slot)
        a.e('s_waitcnt lgkmcnt(0)')
        if after_reads: after_reads()
        for i, m in enumerate(pv_mfmas(bfrag, first)):
            a.e(m)
            if i % 3 == 2: pump()
    def interleave(mf, va, extras):
        tot = sum(c for c, _ in va)
        n = len(mf); done = 0; vi = 0
        if n == 0:
            for c, s_ in va: a.e(s_)
            for k in sorted(extras): extras[k]()
            return
        for i, m in enumerate(mf):
            a.e(m)
            target = tot * (i + 1) / n
            while vi < len(va) and done + va[vi][0] / 2 <= target:
                a.e(va[vi][1]); done += va[vi][0]; vi += 1
            if i in extras: extras[i]()
        while vi < len(va): a.e(va[vi][1]); vi += 1
    def sm_exp_cvt(buf):
        va = []
        def exps(qt):
            for kt in range(2):
                for r in range(4):
                    x = Sreg(buf, kt, qt) + r; va.append((8, f'v_exp_f32 v{x}, v{x}'))
        def cvts(qt):
            for kt in range(2):
                x = Sreg(buf, kt, qt)
                va.append((4, f'v_cvt_pk_bf16_f32 v{P+qt*4+kt*2}, v{x}, v{x+1}'))
                va.append((4, f'v_cvt_pk_bf16_f32 v{P+qt*4+kt*2+1}, v{x+2}, v{x+3}'))
        exps(0); exps(1); cvts(0); exps(2); cvts(1); cvts(2)
        return va
    def sm_adds(buf):
        va = []
        for kt in range(2):
            for r in range(4):
                for qt in range(3):
                    va.append((4, f'v_add_f32 v{L_(qt)}, v{L_(qt)}, v{Sreg(buf, kt, qt)+r}'))
        return va
    def sm_first(buf):
        va = []
        for kt in range(2):
            for qt in range(3):
                for r in range(4):
                    x = Sreg(buf, kt, qt) + r
                    va.append((4, f'v_fma_f32 v{x}, v{x}, s{S_C}, -v{M_(qt)}'))
        for qt in range(3):
            r0 = Sreg(buf, 0, qt); va.append((4, f'v_max3_f32 v{TMP+qt}, v{r0}, v{r0+1}, v{r0+2}'))
        for qt in range(3):
            r0 = Sreg(buf, 0, qt); r1 = Sreg(buf, 1, qt); va.append((4, f'v_max3_f32 v{TMP+qt}, v{TMP+qt}, v{r0+3}, v{r1}'))
        for qt in range(3):
            r1 = Sreg(buf, 1, qt); va.append((4, f'v_max3_f32 v{TMP+qt}, v{TMP+qt}, v{r1+1}, v{r1+2}'))
        for qt in range(3):
            r1 = Sreg(buf, 1, qt); va.append((4, f'v_max_f32 v{TMP+qt}, v{TMP+qt}, v{r1+3}'))
        va.append((4, f'v_max3_f32 v{TMP+3}, v{TMP}, v{TMP+1}, v{TMP+2}'))
        return va
    site = [0]
    def sm_check(buf):
        a.e(f'v_cmp_lt_f32 vcc, s{S_THR}, v{TMP+3}')
        k = site[0]; site[0] += 1
        a.e(f's_cbranch_vccz L_fast{k}')
        a.e(f's_call_b64 s[{S_RET}:{S_RET+1}], L_rescale{buf}')
        a.label(f'L_fast{k}')
    def kslot(sl, n): return sl(2) if n % 2 == 0 else sl(0)
    def vslot(sl, n): return sl(3) if n % 2 == 0 else sl(1)

    def stage1(i, sl, do_qk, enq):
        a.e('s_waitcnt lgkmcnt(0)')
        if enq: enq()
        mf = qk_mfmas((i+1) & 1) if do_qk else []
        def vread():
            wait_vm(f'V{i&1}'); tr_reads(vslot(sl, i))
        ex = {}
        if do_qk:
            for k in (1, 4, 7, 13, 16, 19, 21, 23): ex[k] = pump
            ex[10] = vread
        else:
            vread()
        interleave(mf, sm_exp_cvt(i & 1), ex)
        flush()
    def stage2(i, sl, do_next, enq, kread_next):
        a.e('s_waitcnt lgkmcnt(0)')
        if enq: enq()
        mf = pv_mfmas(lambda qt: vr(P+qt*4, 4), False)
        va = sm_adds(i & 1) + (sm_first((i+1) & 1) if do_next else [])
        ex = {}
        for k in (1, 4, 7, 13, 16, 19, 21, 23): ex[k] = pump
        if kread_next:
            def kread():
                wait_vm(f'K{i&1}'); k_reads(kslot(sl, i+2))
            ex[10] = kread
        interleave(mf, va, ex)
        flush()
        if do_next: sm_check((i+1) & 1)

    def allreduce(reg, op):
        t = TMP + 10
        a.e(f'v_mov_b32 v{t}, v{reg}'); a.nop(2)
        a.e(f'v_permlane32_swap_b32 v{reg}, v{t}'); a.nop(1)
        a.e(f'{op} v{reg}, v{reg}, v{t}')
        a.e(f'v_mov_b32 v{t}, v{reg}'); a.nop(2)
        a.e(f'v_permlane16_swap_b32 v{reg}, v{t}'); a.nop(1)
        a.e(f'{op} v{reg}, v{reg}, v{t}')

    def allreduce3(regs, op):
        t = TMP + 8
        for stage in ('v_permlane32_swap_b32', 'v_permlane16_swap_b32'):
            for i, r in enumerate(regs): a.e(f'v_mov_b32 v{t+i}, v{r}')
            a.nop(1)
            for i, r in enumerate(regs): a.e(f'{stage} v{r}, v{t+i}')
            a.nop(1)
            for i, r in enumerate(regs): a.e(f'{op} v{r}, v{r}, v{t+i}')
    def exchange(kind, slotA, slotB, after_in, inter=None):
        a.c(f'--- exchange {kind}')
        t = TMP
        FA = 1
        if kind == 'O':
            a.e(f'v_and_b32 v{t}, 15, v{V_LANE}'); a.e(f'v_lshlrev_b32 v{t}, 3, v{t}')
            for rho in range(4):
                a.e(f's_sub_u32 s{S_T}, s{S_W}, {rho}'); a.e(f's_and_b32 s{S_T}, s{S_T}, 3'); a.e(f's_lshl_b32 s{S_T}, s{S_T}, 13')
                a.e(f's_add_u32 s{S_T}, s{S_T}, {AUX+6144}'); a.e(f'v_add_u32 v{t+1+rho}, s{S_T}, v{t}')
            for rho in range(4):
                for qt in range(3):
                    a.e(f'ds_read_b64 {vr(IN+(rho*3+qt)*2, 2)}, v{t+1+rho} offset:{qt*128}')
        for rho in (1, 2, 3):
            a.e(f's_add_u32 s{S_T}, s{S_W}, {rho}'); a.e(f's_and_b32 s{S_T}, s{S_T}, 3')
            if rho < 3: a.e(f's_lshl_b32 s{S_T}, s{S_T}, 15')
            else: a.e(f's_lshl_b32 s{S_T}, s{S_T}, 13'); a.e(f's_add_u32 s{S_T}, s{S_T}, {AUX}')
            a.e(f'v_add_u32 v{t+5+rho}, s{S_T}, v{V_L16}')
        inter = list(inter or [])
        for rho in (1, 2, 3):
            base = {1: slotA*8192, 2: slotB*8192, 3: 0}[rho]
            for i in range(6):
                a.e(f'ds_write_b128 v{t+5+rho}, {vr(O+24*rho+4*i, 4)} offset:{base+i*1024}')
                if inter: inter.pop(0)()
        while inter: inter.pop(0)()
        if kind == 'O':
            a.e('s_waitcnt lgkmcnt(15)')
            for qt in range(3):
                m = lambda rho: IN + (rho*3+qt)*2
                mm = t
                a.e(f'v_max3_f32 v{mm}, v{m(0)}, v{m(1)}, v{m(2)}'); a.e(f'v_max_f32 v{mm}, v{mm}, v{m(3)}')
                for rho in range(4): a.e(f'v_sub_f32 v{m(rho)}, v{m(rho)}, v{mm}')
                for rho in range(4): a.e(f'v_exp_f32 v{m(rho)}, v{m(rho)}')
                a.nop(1)
                a.e(f'v_mul_f32 v{t+1}, v{m(0)}, v{m(0)+1}')
                for rho in range(1, 4): a.e(f'v_fma_f32 v{t+1}, v{m(rho)}, v{m(rho)+1}, v{t+1}')
                a.e(f'v_rcp_f32 v{t+1}, v{t+1}'); a.nop(1)
                for rho in range(4): a.e(f'v_mul_f32 v{FA+rho*3+qt}, v{m(rho)}, v{t+1}')
        a.e(f'v_add_u32 v{t+2}, s{S_LB}, v{V_L16}')
        a.e(f's_lshl_b32 s{S_T}, s{S_W}, 13'); a.e(f's_add_u32 s{S_T}, s{S_T}, {AUX}')
        a.e(f'v_add_u32 v{t+3}, s{S_T}, v{V_L16}')
        a.e('s_waitcnt lgkmcnt(0)'); a.e('s_barrier')
        for rho in (1, 2, 3):
            for i in range(6):
                if rho < 3: a.e(f'ds_read_b128 {vr(IN+24*(rho-1)+4*i, 4)}, v{t+2} offset:{ {1: slotA*8192, 2: slotB*8192}[rho] + i*1024}')
                else: a.e(f'ds_read_b128 {vr(IN+24*(rho-1)+4*i, 4)}, v{t+3} offset:{i*1024}')
        if kind == 'Q':
            a.e(f'v_lshrrev_b32 v{t+4}, 5, v{V_LANE}'); a.e(f'v_lshlrev_b32 v{t+4}, 8, v{t+4}')
            a.e(f'v_and_b32 v{t+5}, 15, v{V_LANE}'); a.e(f'v_lshl_add_u32 v{t+4}, v{t+5}, 4, v{t+4}')
            a.e(f'v_bfe_u32 v{t+5}, v{V_LANE}, 4, 1'); a.e(f'v_lshl_add_u32 v{t+4}, v{t+5}, 3, v{t+4}')
            a.e(f'v_add_u32 v{t+4}, s{S_T}, v{t+4}')
            uoff = 512
        else:
            a.e(f'v_add_u32 v{t+4}, s{S_T}, v{V_L16}')
            uoff = 8
            for i in range(6):
                for r in range(4): a.e(f'v_mul_f32 v{O+4*i+r}, v{O+4*i+r}, v{FA+(i%3)}')
        a.e('s_waitcnt lgkmcnt(12)')
        for rho in (1, 2, 3):
            if rho == 2: a.e('s_waitcnt lgkmcnt(6)')
            if rho == 3:
                a.e('s_waitcnt lgkmcnt(0)')
                if after_in: after_in()
            for i in range(6):
                for r in range(4):
                    x = O + 4*i + r; y = IN + 24*(rho-1) + 4*i + r
                    if kind == 'O': a.e(f'v_fmac_f32 v{x}, v{y}, v{FA+rho*3+(i%3)}')
                    else: a.e(f'v_add_f32 v{x}, v{x}, v{y}')
        for tau in range(2):
            for qt in range(3):
                x = Oreg(tau, qt); d = IN + (tau*3+qt)*2
                a.e(f'v_cvt_pk_bf16_f32 v{d}, v{x}, v{x+1}'); a.e(f'v_cvt_pk_bf16_f32 v{d+1}, v{x+2}, v{x+3}')
        for tau in range(2):
            for qt in range(3):
                d = IN + (tau*3+qt)*2
                a.e(f'ds_write_b64 v{t+4}, {vr(d, 2)} offset:{qt*1024 + tau*uoff}')
        pump(4)
        if kind == 'O':
            for s in range(4):
                a.e(f's_add_u32 s{S_T}, s{S_RW}, {s}'); a.e(f's_and_b32 s{S_T}, s{S_T}, 3'); a.e(f's_lshl_b32 s{S_T}, s{S_T}, 13')
                a.e(f's_add_u32 s{S_T}, s{S_T}, {AUX}'); a.e(f'v_add_u32 v{t+5+s}, s{S_T}, v{V_L16}')
        else:
            a.e(f'v_add_u32 v{t+5}, {AUX}, v{V_L16}')
        a.e('s_waitcnt lgkmcnt(0)'); a.e('s_barrier')
        for s in range(4):
            for qt in range(3):
                if kind == 'Q': a.e(f'ds_read_b128 {aq(qt, s)}, v{t+5} offset:{s*8192 + qt*1024}')
                else: a.e(f'ds_read_b128 {ax(qt, s)}, v{t+5+s} offset:{qt*1024}')
        pump(4)
        a.e('s_waitcnt lgkmcnt(0)')

    def set_flag(u, lbl):
        a.e(f's_cmp_lg_u32 s{S_W}, 0'); a.e(f's_cbranch_scc1 {lbl}')
        a.e('s_mov_b64 exec, 1'); a.e(f'v_mov_b32 v{TMP}, 0'); a.e(f'v_mov_b32 v{TMP+1}, 1')
        a.e(f'buffer_store_dword v{TMP+1}, v{TMP}, s[{R_FLG}:{R_FLG+3}], s{S_FG[u]} offen sc1')
        a.e('s_mov_b64 exec, -1')
        a.label(lbl)
        a.nop(2)

    def store_thunks(u):
        r = SRD[u]['PT']
        out = []
        for qt in range(3):
            for pi in range(4):
                def th(qt=qt, pi=pi):
                    d = IN + (qt*4+pi)*4
                    if pi == 0: a.e(f's_mov_b32 s{S_T3}, {qt*4096}')
                    a.vmop('ST', f'buffer_store_dwordx4 {vr(d, 4)}, v{V_ST}, s[{r}:{r+3}], s{S_T3} offen offset:{pi*1024}{cfg.st_flags}')
                out.append(th)
        return out
    def stores(u):
        for i, th in enumerate(store_thunks(u)):
            th()
            if i % 4 == 3: pump()
    loops = []
    PREF = [None]
    def qphase(srdWQ, rw, sl, after_step, after_in, pfx='', count=False):
        for j in range(4):
            a.e(f's_add_u32 s{S_T}, s{rw}, {j}'); a.e(f's_and_b32 s{S_T}, s{S_T}, 3'); a.e(f's_lshl_b32 s{S_T}, s{S_T}, 6')
            a.e(f'v_xor_b32 v{TMP+2*j}, s{S_T}, v{V_XB}'); a.e(f'v_xor_b32 v{TMP+2*j+1}, 32, v{TMP+2*j}')
        wait_vm(f'{pfx}X1')
        if count:
            a.e(f's_cmp_lg_u32 s{S_W}, 0'); a.e(f's_cbranch_scc1 L_nocount{count}')
            a.e('s_mov_b64 exec, 1'); a.e('v_mov_b32 v1, 0'); a.e('v_mov_b32 v2, 1')
            a.e('buffer_atomic_add v2, v1, s[80:83], 0 offen sc1')
            a.e('s_mov_b64 exec, -1')
            a.label(f'L_nocount{count}')
        for qt in range(3):
            for j in range(4):
                for uu in range(2):
                    r = AX + (qt*4 + j)*4 + uu*2
                    off = (sl(0)*8192 + qt*4096) if qt < 2 else sl(1)*8192
                    a.e(f'ds_read_b64 a[{r}:{r+1}], v{TMP+2*j+uu} offset:{off}')
        a.e('s_waitcnt lgkmcnt(0)')
        dma_wq(srdWQ, 2, sl(0), rw, pfx); dma_wq(srdWQ, 3, sl(1), rw, pfx); flush()
        wslot = [sl(2), sl(3), sl(0), sl(1)]
        for j in range(4):
            wait_vm(f'{pfx}W{j}')
            pvw(wslot[j], lambda qt, j=j: ax(qt, j), j == 0, after_step[j])
        flush()
        a.nop(8)
        a.e('s_barrier')
        exchange('Q', sl(0), sl(1), after_in)
        flush()

    def unit(u, br):
        isA = br == 'A'
        sg = 2 if (u == 2 and isA) else 0
        sl = lambda n: (n + sg) & 3
        fk, fv = (cfg.flA, cfg.flA) if isA else (cfg.flBK, cfg.flBV)
        a.c(f'================ {br}{br} unit {u}')
        if not (u == 2 and not isA):
            a.e(f's_mov_b32 s{S_STEP}, 0'); a.e(f's_mov_b32 s{S_VSTEP}, 0')
            j0 = 2 if cfg.kv0_late else 0
            steps = [None]*4
            steps[j0] = lambda: dma_kv(0, u, 'K', sl(2), fk)
            steps[j0+1] = lambda: dma_kv(0, u, 'V', sl(3), fv)
            qphase(SRD[u]['WQ'], S_RW, sl, steps, lambda: dma_kv(1, u, 'K', sl(0), fk), count=('B' if (u == 1 and not isA) else False))
        else:
            wait_vm('QF')
        stamp()
        if cfg.fake_joint and isA and u == 2:
            a.wait_vm_all()
            PREF[0]([(16, 16 - cfg.fake_joint, cfg.fake_joint)], 'b')
            a.wait_vm_all()
            stamp(); stamp()
            dma_wo(u, 0, sl(2)); dma_wo(u, 1, sl(3)); flush()
            a.e('s_barrier')
            exchange('O', sl(0), sl(1), lambda: (dma_wo(u, 2, sl(0)), dma_wo(u, 3, sl(1))))
            stamp()
            oslot = [sl(2), sl(3), sl(0), sl(1)]
            for s_ in range(4):
                wait_vm(f'WO{s_}')
                pvw(oslot[s_], lambda qt, s_=s_: ax(qt, s_), s_ == 0, None)
            a.nop(8)
            stamp()
            for qt in range(3):
                for pi in range(4):
                    d = IN + (qt*4+pi)*4
                    for h2 in range(2):
                        x = Oreg(2*pi+h2, qt)
                        a.e(f'v_cvt_pk_bf16_f32 v{d+2*h2}, v{x}, v{x+1}'); a.e(f'v_cvt_pk_bf16_f32 v{d+2*h2+1}, v{x+2}, v{x+3}')
            stores(u)
            return
        wait_vm('K0'); k_reads(sl(2))
        for i in range(96): a.e(f'v_mov_b32 v{O+i}, 0')
        for qt in range(3):
            a.e(f'v_mov_b32 v{M_(qt)}, 0'); a.e(f'v_mov_b32 v{L_(qt)}, 0')
        a.e(f's_mov_b32 s{S_THR}, 0xff800000'); a.e(f's_mov_b32 s{S_FLOOR}, 0xff800000')
        a.e('s_waitcnt lgkmcnt(0)')
        dma_kv(2, u, 'K', sl(2), fk); dma_kv(1, u, 'V', sl(1), fv)
        for i, m in enumerate(qk_mfmas(0)):
            a.e(m)
            if i % 3 == 2: pump()
        wait_vm('K1'); k_reads(sl(0))
        flush()
        a.nop(4)
        for c, s_ in sm_first(0): a.e(s_)
        sm_check(0)
        assert a.vm[-16:] == ['K0']*8 + ['V1']*8, a.vm
        steady = ['V0']*8 + ['K0']*8 + ['V1']*8
        a.e(f's_mov_b32 s{S_CNT}, 6')
        a.vm = list(steady)
        a.label(f'L_loop{br}{u}')
        start = len(a.L)
        for i in (0, 1):
            stage1(i, sl, True, lambda i=i: dma_kv(i+3, u, 'K', kslot(sl, i+3), fk))
            stage2(i, sl, True, lambda i=i: dma_kv(i+2, u, 'V', vslot(sl, i+2), fv), True)
        a.e(f's_sub_u32 s{S_CNT}, s{S_CNT}, 1'); a.e(f's_cmp_lg_u32 s{S_CNT}, 0'); a.e(f's_cbranch_scc1 L_loop{br}{u}')
        assert not pend and a.vm[-24:] == steady, a.vm
        loops.append((start, len(a.L)))
        stamp()
        getq = (u == 1 and not isA)
        def qcnt_load():
            a.e(f's_mov_b32 s36, s{R_DBGK}'); a.e(f's_mov_b32 s37, s{R_DBGK+1}'); a.e('s_mov_b32 s38, 256'); a.e('s_mov_b32 s39, 0x20000')
            a.e('v_mov_b32 v15, 0')
            a.vmop('QC1', 'buffer_load_dword v14, v15, s[36:39], 0 offen sc1')
        def qflag_loads():
            wait_vm('QC1')
            a.e(f's_mov_b32 s{S_T}, 20000')
            a.label('L_cchk')
            a.e(f'v_readfirstlane_b32 s{S_T3}, v14'); a.e('s_nop 3')
            a.e(f's_cmp_eq_u32 s{S_T3}, 256'); a.e('s_cbranch_scc1 L_cok')
            a.e('s_sleep 2')
            a.e('buffer_load_dword v14, v15, s[36:39], 0 offen sc1'); a.e('s_waitcnt vmcnt(0)')
            a.e(f's_sub_u32 s{S_T}, s{S_T}, 1'); a.e(f's_cmp_lg_u32 s{S_T}, 0'); a.e('s_cbranch_scc1 L_cchk')
            a.label('L_cok')
            a.vmop('QC', f'buffer_load_dword v13, v15, s[{R_FLG}:{R_FLG+3}], s{S_QF} offen sc1')
        stage1(12, sl, True, lambda: ((qcnt_load() if getq else None), dma_kv(15, u, 'K', kslot(sl, 15), fk)))
        stage2(12, sl, True, lambda: dma_kv(14, u, 'V', vslot(sl, 14), fv), True)
        stage1(13, sl, True, lambda: dma_wo(u, 0, sl(2)))
        stage2(13, sl, True, lambda: dma_kv(15, u, 'V', vslot(sl, 15), fv), True)
        stage1(14, sl, True, qflag_loads if getq else None)
        stage2(14, sl, True, lambda: dma_wo(u, 1, sl(3)), False)
        stage1(15, sl, False, None)
        stage2(15, sl, False, None, False)
        stamp()
        if getq:
            wait_vm('QC')
            a.e(f's_mov_b32 s{S_T}, 20000')
            a.label('L_qchk')
            a.e(f'v_readfirstlane_b32 s{S_T3}, v13'); a.e('s_nop 3')
            a.e(f's_cmp_eq_u32 s{S_T3}, 1'); a.e('s_cbranch_scc1 L_qok')
            a.e('s_sleep 2')
            a.e(f'buffer_load_dword v13, v15, s[{R_FLG}:{R_FLG+3}], s{S_QF} offen sc1'); a.e('s_waitcnt vmcnt(0)')
            a.e(f's_sub_u32 s{S_T}, s{S_T}, 1'); a.e(f's_cmp_lg_u32 s{S_T}, 0'); a.e('s_cbranch_scc1 L_qchk')
            a.label('L_qok')
            for s_ in range(4):
                for qt in range(3):
                    idx = s_*3 + qt
                    if idx % 4 == 0: a.e(f's_mov_b32 s{S_T3}, {(idx//4)*4096}')
                    a.vmop('QF', f'buffer_load_dwordx4 {aq(qt, s_)}, v{V_L16}, s[{R_QI}:{R_QI+3}], s{S_T3} offen offset:{(idx%4)*1024} sc1')
            a.e(f's_mov_b32 s{S_STEP}, 0'); a.e(f's_mov_b32 s{S_VSTEP}, 0')
        a.c('--- stats')
        allreduce3([L_(qt) for qt in range(3)], 'v_add_f32')
        t = TMP
        a.e(f'v_and_b32 v{t}, 15, v{V_LANE}'); a.e(f'v_lshlrev_b32 v{t}, 3, v{t}')
        a.e(f's_lshl_b32 s{S_T}, s{S_W}, 13'); a.e(f's_add_u32 s{S_T}, s{S_T}, {AUX+6144}'); a.e(f'v_add_u32 v{t+1}, s{S_T}, v{t}')
        for qt in range(3): a.e(f'ds_write_b64 v{t+1}, {vr(M_(qt), 2)} offset:{qt*128}')
        a.e('s_waitcnt lgkmcnt(0)'); a.e('s_barrier')
        exchange('O', sl(0), sl(1), lambda: (dma_wo(u, 2, sl(0)), dma_wo(u, 3, sl(1))))
        stamp()
        oslot = [sl(2), sl(3), sl(0), sl(1)]
        if u == 2:
            for i in range(96): a.e(f'v_accvgpr_read_b32 v{O+i}, a{ASAVE+i}')
        for s_ in range(4):
            wait_vm(f'WO{s_}')
            after = None
            if u == 1 and isA:
                after = [lambda: dma_x(SRD[1]['X'], 0, oslot[0]), lambda: dma_x(SRD[1]['X'], 1, oslot[1]), lambda: dma_wq(SRD[2]['WQ'], 0, oslot[2]), lambda: dma_wq(SRD[2]['WQ'], 1, oslot[3])][s_]
            if u == 1 and not isA:
                after = [lambda: dma_kv(0, 2, 'K', 2, fk), lambda: dma_kv(0, 2, 'V', 3, fv), lambda: dma_kv(1, 2, 'K', 0, fk), None][s_]
            pvw(oslot[s_], lambda qt, s_=s_: ax(qt, s_), s_ == 0 and u == 1, after)
        a.nop(8)
        stamp()
        if u == 1:
            for i in range(96):
                a.e(f'v_accvgpr_write_b32 a{ASAVE+i}, v{O+i}')
                if i % 12 == 11: pump()
            if not isA: flush()
            return
        for qt in range(3):
            for pi in range(4):
                d = IN + (qt*4+pi)*4
                for h2 in range(2):
                    x = Oreg(2*pi+h2, qt)
                    a.e(f'v_cvt_pk_bf16_f32 v{d+2*h2}, v{x}, v{x+1}'); a.e(f'v_cvt_pk_bf16_f32 v{d+2*h2+1}, v{x+2}, v{x+3}')
        stores(u)

    def build_u2():
        r = SRD[2]['K']; r1 = SRD[1]['K']
        a.e(f's_add_u32 s{r}, s{r1}, s{S_KD}'); a.e(f's_addc_u32 s{r+1}, s{r1+1}, 0'); a.e(f's_mov_b32 s{r+2}, 0x80000'); a.e(f's_mov_b32 s{r+3}, 0x20000')
        r = SRD[2]['WQ']; r1 = SRD[1]['WQ']
        a.e(f's_add_u32 s{r}, s{r1}, 4096'); a.e(f's_addc_u32 s{r+1}, s{r1+1}, 0'); a.e(f's_sub_u32 s{r+2}, s{r1+2}, 4096'); a.e(f's_mov_b32 s{r+3}, 0x20000')

    if cfg.setup_stamp: stamp()
    n0 = nst[0]
    a.e(f's_cmp_eq_u32 s{S_ISA[1]}, 0'); a.e('s_cbranch_scc1 L_progB')
    a.vm = []
    def prefetch(jobs, pfx):
        a.e('s_load_dwordx4 s[12:15], s[0:1], 48')
        a.e(f's_sub_u32 s16, s{S_QF}, {QFLG}'); a.e('s_lshr_b32 s16, s16, 7'); a.e('s_lshr_b32 s17, s16, 4'); a.e('s_and_b32 s16, s16, 15')
        a.e('s_lshr_b32 s18, s16, 1'); a.e('s_and_b32 s16, s16, 1'); a.e('s_lshl_b32 s17, s17, 1'); a.e('s_add_u32 s16, s16, s17')
        a.e('s_lshl_b32 s18, s18, 5'); a.e('s_add_u32 s16, s16, s18')
        a.e('s_waitcnt lgkmcnt(0)')
        for ji, (dk, blk0, nb) in enumerate(jobs):
            a.e(f's_add_u32 s17, s16, {dk}'); a.e('s_lshl_b32 s18, s17, 19'); a.e('s_lshr_b32 s19, s17, 13')
            for (dst, src) in ((20, 12), (24, 14)):
                a.e(f's_add_u32 s{dst}, s{src}, s18'); a.e(f's_addc_u32 s{dst+1}, s{src+1}, s19'); a.e(f's_mov_b32 s{dst+2}, 0x80000'); a.e(f's_mov_b32 s{dst+3}, 0x20000')
            a.e(f's_add_u32 s17, s{S_W8}, {blk0*32768}'); a.e(f's_mov_b32 s18, {nb}')
            a.label(f'L_pf{pfx}{ji}')
            a.e('s_add_u32 s19, s17, 4096')
            for srd in (20, 24):
                for so in (17, 19):
                    for i in range(4):
                        a.e(f'buffer_load_dwordx4 v[4:7], v{V_L16}, s[{srd}:{srd+3}], s{so} offen offset:{i*1024}{cfg.pf_flags}')
                    if cfg.pf_keep < 16: a.e(f's_waitcnt vmcnt({cfg.pf_keep})')
            a.e(f's_waitcnt vmcnt({min(cfg.pf_keep, 16)})')
            a.e('s_add_u32 s17, s17, 32768'); a.e('s_sub_u32 s18, s18, 1'); a.e('s_cmp_lg_u32 s18, 0'); a.e(f's_cbranch_scc1 L_pf{pfx}{ji}')
    if cfg.pf_blocks or cfg.pf_first:
        jobs = []
        if cfg.pf_first: jobs.append((0, 0, cfg.pf_first))
        if cfg.pf_blocks: jobs.append((16, 16 - cfg.pf_blocks, cfg.pf_blocks))
        prefetch(jobs, 'a')
    PREF[0] = prefetch
    sl0 = lambda n: n & 3
    PX, PWQ = SRD[2]['K'], SRD[2]['WQ']
    dma_x(PX, 0, 0, 'p'); dma_x(PX, 1, 1, 'p'); dma_wq(PWQ, 0, 2, S_RWP, 'p'); dma_wq(PWQ, 1, 3, S_RWP, 'p'); flush()
    qphase(PWQ, S_RWP, sl0,
           [lambda: dma_wq(SRD[1]['WQ'], 0, 2), lambda: dma_wq(SRD[1]['WQ'], 1, 3), None, None],
           lambda: (dma_x(SRD[1]['X'], 0, 0), dma_x(SRD[1]['X'], 1, 1)), pfx='p', count='A')
    build_u2()
    a.e(f's_cmp_lg_u32 s{S_W}, 0'); a.e('s_cbranch_scc1 L_nopub')
    for s_ in range(4):
        for qt in range(3):
            idx = s_*3 + qt
            if idx % 4 == 0: a.e(f's_mov_b32 s{S_T3}, {(idx//4)*4096}')
            a.e(f'buffer_store_dwordx4 {aq(qt, s_)}, v{V_L16}, s[{R_QI}:{R_QI+3}], s{S_T3} offen offset:{(idx%4)*1024} sc1')
    a.e('s_waitcnt vmcnt(0)')
    a.e('s_mov_b64 exec, 1'); a.e('v_mov_b32 v1, 0'); a.e('v_mov_b32 v2, 1')
    a.e(f'buffer_store_dword v2, v1, s[{R_FLG}:{R_FLG+3}], s{S_QF} offen sc1')
    a.e('s_mov_b64 exec, -1')
    a.label('L_nopub')
    stamp()
    if cfg.rotA: a.e(f's_mov_b32 s{S_ROT}, s{S_HH}')
    else: a.e(f's_mov_b32 s{S_ROT}, 0')
    unit(1, 'A')
    unit(2, 'A')
    a.e('s_branch L_final')
    a.label('L_progB')
    nst[0] = n0
    a.vm = []; assert not pend
    build_u2()
    a.e(f's_mov_b32 s{S_ROT}, 0')
    dma_x(SRD[1]['X'], 0, 0); dma_x(SRD[1]['X'], 1, 1); dma_wq(SRD[1]['WQ'], 0, 2); dma_wq(SRD[1]['WQ'], 1, 3); flush()
    stamp()
    unit(1, 'B')
    unit(2, 'B')
    a.label('L_final')
    a.c('================ final reduce')
    a.e('s_load_dwordx4 s[28:31], s[0:1], 80')
    a.e('s_load_dwordx2 s[32:33], s[0:1], 96')
    a.e(f's_lshl_b32 s{S_T}, s{S_W}, 6'); a.e(f'v_add_u32 v1, s{S_T}, v{V_LANE}')
    a.e(f's_bfe_u32 s{S_T+1}, s{S_FG[2]}, 0x50002'); a.e(f's_mul_i32 s{S_T+1}, s{S_T+1}, 192')
    a.e(f'v_add_u32 v3, s{S_T+1}, v1')
    a.e('v_lshlrev_b32 v2, 4, v3')
    a.e('v_lshrrev_b32 v5, 8, v3'); a.e('v_mul_u32_u24 v5, 21846, v5'); a.e('v_lshrrev_b32 v5, 16, v5')
    a.e('v_mul_u32_u24 v6, 768, v5'); a.e('v_sub_u32 v6, v3, v6')
    a.e('v_lshrrev_b32 v7, 6, v6'); a.e('v_and_b32 v8, 63, v6')
    a.e('v_lshrrev_b32 v9, 2, v7'); a.e('v_and_b32 v10, 3, v7')
    a.e('v_add_u32 v11, v5, v10'); a.e('v_lshlrev_b32 v11, 1, v11')
    a.e('v_and_b32 v12, 15, v8'); a.e('v_lshl_add_u32 v12, v9, 4, v12'); a.e('v_lshlrev_b32 v12, 11, v12')
    a.e('v_lshl_add_u32 v12, v5, 8, v12'); a.e('v_lshrrev_b32 v13, 4, v8'); a.e('v_lshl_add_u32 v12, v13, 3, v12')
    a.e('v_and_b32 v13, 7, v11'); a.e('v_lshl_add_u32 v13, v13, 5, v12')
    a.e('v_add_u32 v11, 1, v11'); a.e('v_and_b32 v11, 7, v11'); a.e('v_lshl_add_u32 v14, v11, 5, v12')
    a.e('s_waitcnt lgkmcnt(0)')
    a.e('s_mov_b32 s40, s30'); a.e('s_mov_b32 s41, s31'); a.e('s_mov_b32 s42, 256'); a.e('s_mov_b32 s43, 0x20000')
    a.e('v_mov_b32 v18, 0')
    a.e('buffer_load_dword v21, v18, s[40:43], 0 offen sc1')
    a.wait_vm_all()
    a.e('s_barrier')
    a.e('s_mov_b32 s36, s28'); a.e('s_mov_b32 s37, s29'); a.e('s_mov_b32 s38, 786432'); a.e('s_mov_b32 s39, 0x20000')
    a.e(f's_cmp_lg_u32 s{S_W}, 0'); a.e('s_cbranch_scc1 L_pd')
    a.e('s_mov_b64 exec, 1'); a.e('v_mov_b32 v15, 0'); a.e('v_mov_b32 v16, 1')
    a.e(f'buffer_store_dword v16, v15, s[{R_FLG}:{R_FLG+3}], s{S_FG[2]} offen sc1')
    a.e('s_mov_b64 exec, -1')
    stamp()
    a.e(f's_mov_b32 s{S_T+2}, 8000')
    a.label('L_cpoll')
    a.e(f'v_readfirstlane_b32 s{S_T+1}, v21'); a.e('s_nop 3')
    a.e(f's_cmp_eq_u32 s{S_T+1}, 256'); a.e('s_cbranch_scc1 L_cpok')
    a.e('s_sleep 2')
    a.e('buffer_load_dword v21, v18, s[40:43], 0 offen sc1'); a.e('s_waitcnt vmcnt(0)')
    a.e(f's_sub_u32 s{S_T+2}, s{S_T+2}, 1'); a.e(f's_cmp_lg_u32 s{S_T+2}, 0'); a.e('s_cbranch_scc1 L_cpoll')
    a.label('L_cpok')
    a.e(f'v_and_b32 v17, 15, v{V_LANE}'); a.e('v_lshlrev_b32 v17, 2, v17')
    a.e(f's_and_b32 s{S_T+1}, s{S_FG[2]}, -128'); a.e(f's_mov_b32 s{S_T+2}, 8000')
    a.label('L_poll')
    a.e(f'buffer_load_dword v20, v17, s[{R_FLG}:{R_FLG+3}], s{S_T+1} offen sc1')
    a.e('s_waitcnt vmcnt(0)')
    a.e('v_cmp_eq_u32 vcc, 1, v20')
    a.e('s_nop 1')
    a.e('s_cmp_eq_u64 vcc, -1'); a.e('s_cbranch_scc1 L_pd')
    a.e(f's_sub_u32 s{S_T+2}, s{S_T+2}, 1'); a.e(f's_cmp_lg_u32 s{S_T+2}, 0'); a.e('s_cbranch_scc1 L_poll')
    a.label('L_pd')
    a.e('s_barrier')
    stamp()
    a.e(f's_cmp_eq_u32 s{S_W}, 3'); a.e('s_cbranch_scc1 L_rd')
    a.e(f's_lshr_b32 s{S_T}, s{S_FG[2]}, 7')
    a.e(f's_mul_i32 s{S_T+1}, s{S_T}, 786432')
    a.e(f's_add_u32 s44, s32, s{S_T+1}'); a.e('s_addc_u32 s45, s33, 0'); a.e('s_mov_b32 s46, 786432'); a.e('s_mov_b32 s47, 0x20000')
    for h in range(16):
        a.e(f's_mov_b32 s48, {h*49152}')
        a.e(f'buffer_load_dwordx4 v[{48+4*h}:{51+4*h}], v2, s[44:47], s48 offen sc1')
    a.e(f's_and_b32 s49, s{S_T}, 7'); a.e('s_mul_i32 s49, s49, 98304'); a.e(f's_lshr_b32 s50, s{S_T}, 3'); a.e('s_lshl_b32 s50, s50, 10'); a.e('s_add_u32 s49, s49, s50')
    for i in range(8): a.e(f'v_mov_b32 v{20+i}, 0')
    for h in range(16):
        a.e(f's_waitcnt vmcnt({15-h})')
        for d in range(4):
            r = 48 + 4*h + d
            a.e(f'v_lshlrev_b32 v28, 16, v{r}'); a.e(f'v_and_b32 v29, 0xffff0000, v{r}')
            a.e(f'v_add_f32 v{20+2*d}, v{20+2*d}, v28'); a.e(f'v_add_f32 v{21+2*d}, v{21+2*d}, v29')
    a.e('v_cvt_pk_bf16_f32 v30, v20, v21'); a.e('v_cvt_pk_bf16_f32 v31, v22, v23')
    a.e('v_cvt_pk_bf16_f32 v32, v24, v25'); a.e('v_cvt_pk_bf16_f32 v33, v26, v27')
    a.e(f'buffer_store_dwordx2 v[30:31], v13, s[36:39], s49 offen{cfg.out_flags}')
    a.e(f'buffer_store_dwordx2 v[32:33], v14, s[36:39], s49 offen{cfg.out_flags}')
    a.label('L_rd')
    a.e('s_waitcnt vmcnt(0)')
    if cfg.stamps:
        stamp()
        a.e('s_memtime s[98:99]'); a.e('s_memrealtime s[100:101]'); a.e('s_waitcnt lgkmcnt(0)')
        a.e('v_mov_b32 v252, s98'); a.e('v_mov_b32 v253, s100')
        a.e('v_readfirstlane_b32 s2, v251')
        a.e('s_add_u32 s32, s32, 0x4000000'); a.e('s_addc_u32 s33, s33, 0'); a.e('s_mov_b32 s34, 0x100000'); a.e('s_mov_b32 s35, 0x20000')
        a.e('s_nop 3')
        a.e(f's_lshl_b32 s94, s2, 2'); a.e(f's_add_u32 s94, s94, s{S_W}'); a.e('s_lshl_b32 s94, s94, 7')
        a.e('v_mov_b32 v1, 0')
        a.e(f'buffer_store_dword v255, v1, s[32:35], s94 offen')
        a.e(f'buffer_store_dwordx4 v[252:255], v1, s[32:35], s94 offen offset:96')
        for i in range(nst[0]):
            a.e(f'v_mov_b32 v2, s{STAMP0+i}')
            a.e(f'buffer_store_dword v2, v1, s[32:35], s94 offen offset:{4*i+4}')
            a.e('s_nop 1')
        a.e('s_waitcnt vmcnt(0)')
    a.label('L_end')
    a.e('s_endpgm')
    for buf in (0, 1):
        a.label(f'L_rescale{buf}')
        t = TMP
        allreduce3([TMP+qt for qt in range(3)], 'v_max_f32')
        for qt in range(3): a.e(f'v_max_f32 v{t+qt}, s{S_FLOOR}, v{t+qt}')
        for qt in range(3):
            a.e(f'v_add_f32 v{M_(qt)}, v{M_(qt)}, v{t+qt}')
            a.e(f'v_max_f32 v{t+4+qt}, 0, v{t+qt}')
            a.e(f'v_sub_f32 v{t+4+qt}, 0, v{t+4+qt}')
        for qt in range(3): a.e(f'v_exp_f32 v{t+4+qt}, v{t+4+qt}')
        for kt in range(2):
            for qt in range(3):
                for r in range(4):
                    x = Sreg(buf, kt, qt) + r
                    a.e(f'v_sub_f32 v{x}, v{x}, v{t+qt}')
        for qt in range(3): a.e(f'v_mul_f32 v{L_(qt)}, v{L_(qt)}, v{t+4+qt}')
        for tau in range(8):
            for qt in range(3):
                for r in range(4):
                    x = Oreg(tau, qt) + r
                    a.e(f'v_mul_f32 v{x}, v{x}, v{t+4+qt}')
        a.e(f's_mov_b32 s{S_THR}, {f32bits(cfg.thr):#x}'); a.e(f's_mov_b32 s{S_FLOOR}, 0')
        a.e(f's_setpc_b64 s[{S_RET}:{S_RET+1}]')

    a.e('.section .rodata,"a"')
    a.e('.p2align 6'); a.e(f'.amdhsa_kernel {KN}')
    a.e('  .amdhsa_next_free_vgpr 512'); a.e('  .amdhsa_next_free_sgpr 102'); a.e('  .amdhsa_accum_offset 256')
    a.e('  .amdhsa_group_segment_fixed_size 0'); a.e('  .amdhsa_kernarg_size 104'); a.e('  .amdhsa_user_sgpr_count 2')
    a.e('  .amdhsa_user_sgpr_kernarg_segment_ptr 1'); a.e('  .amdhsa_system_sgpr_workgroup_id_x 1')
    a.e('  .amdhsa_float_denorm_mode_32 3'); a.e('  .amdhsa_float_denorm_mode_16_64 3')
    a.e('.end_amdhsa_kernel')
    probs = check(a.L)
    for (s0, s1) in loops: probs += check(a.L[s0:s1] + a.L[s0:s1])
    return a.text(), probs, nst[0]

if __name__ == '__main__':
    cfg = Cfg()
    for kv in sys.argv[2:]:
        k, v = kv.split('=', 1); setattr(cfg, k, eval(v))
    txt, probs, n = gen(cfg)
    for p in probs: print('HAZARD', p)
    open(sys.argv[1], 'w').write(txt)
    print('written', sys.argv[1], len(txt), 'stamps', n)
```

```python
import sys, struct, math
from asmlib import Asm, check

KN = 'concat_heads__gqa_block_cached__mha_block_cached__near_ridge_kernel'

V_LANE = 0
TRA = 16; KA = 24; DE, DO = 28, 29; ML = 30
def M_(qt): return ML + 2*qt
def L_(qt): return ML + 2*qt + 1
TMP = 36; S0 = 48; S1 = 72; P = 96; XT = 108; O = 120
IN = 48
QE, QO, OE, OO = 216, 217, 218, 219
V_L16, V_XB, V_ST = 220, 221, 222
def Oreg(tau, qt): return O + (tau*3 + qt)*4
def Sreg(buf, kt, qt): return (S0 if buf == 0 else S1) + (kt*3 + qt)*4
AQ, AX, AK, AV, ASAVE = 0, 48, 96, 128, 160
def ar(b, n): return f'a[{b}:{b+n-1}]'
def aq(qt, s): return ar(AQ + (qt*4 + s)*4, 4)
def ax(qt, s): return ar(AX + (qt*4 + s)*4, 4)
def vr(b, n): return f'v[{b}:{b+n-1}]' if n > 1 else f'v{b}'
R_FLG = 4
S_FG = {1: 8, 2: 9}
S_ISA = {1: 10, 2: 11}
STAMP0 = 12
SRD = {1: dict(K=28, V=32, WQ=36, X=40, WO=44, PT=48), 2: dict(K=52, V=56, WQ=60, X=64, WO=68, PT=72)}
S_W, S_LB, S_OFF, S_T = 76, 77, 78, 79
S_CNT, S_THR, S_FLOOR, S_C, S_RET = 86, 87, 88, 89, 90
S_WQO, S_XO, S_T2, S_T3, S_STEP, S_ROT, S_T4, S_W8 = 92, 93, 94, 95, 96, 97, 98, 99
S_HH = 3
S_KD = 48
S_RWP = 49
R_DBGK = 50
S_RW = 2
S_WB = 85
AUX = 131072
FLG_OFF = 0x2000000
QFLG = 4096
QIMG_OFF = 0x2100000
R_QI = 64
S_QF = 8

class Cfg:
    afirst = 0x55
    flA = ''
    flBK = ' nt'; flBV = ' nt'
    rotA = True
    rotW = True
    nt_w = False
    thr = 8.0
    st_flags = ' sc1'
    stamps = False
    fine = None
    dynflags = True
    late_st = True
    st_in_exch = True
    kv0_late = True
    fastpoll = True
    out_flags = ''
    rw_mode = 0
    pf_blocks = 0
    pf_flags = ''
    fake_joint = 0
    setup_stamp = False
    bb2_def = False
    dbuf = True
    early_stats = True
    stage_bb = False
    pf_keep = 16
    pf_first = 0

def f32bits(x): return struct.unpack('<I', struct.pack('<f', x))[0]

def gen(cfg=Cfg()):
    a = Asm()
    a.e(f'; @launch grid=(256,1,1) block=(256,1,1) lds=163840')
    a.e('.amdgcn_target "amdgcn-amd-amdhsa--gfx950"')
    a.e('.text')
    a.e(f'.globl {KN}'); a.e('.p2align 8'); a.e(f'.type {KN},@function'); a.label(KN)
    a.e('s_cmp_ge_u32 s2, 256'); a.e('s_cbranch_scc1 L_end')
    nst = [0]
    fon = [False]
    def fs():
        if not (cfg.fine and fon[0]): return
        a.e('s_memrealtime s[100:101]'); a.e('s_waitcnt lgkmcnt(0)'); a.e(f's_mov_b32 s{STAMP0+nst[0]}, s100'); nst[0] += 1
        assert nst[0] <= 16
    def stamp():
        if cfg.fine or not cfg.stamps: return
        a.e('s_memrealtime s[100:101]'); a.e('s_waitcnt lgkmcnt(0)'); a.e(f's_mov_b32 s{STAMP0+nst[0]}, s100'); nst[0] += 1
        assert nst[0] <= 16
    if cfg.stamps:
        a.e('s_memrealtime s[100:101]'); a.e('s_waitcnt lgkmcnt(0)'); a.e('v_mov_b32 v255, s100')
        a.e('s_memtime s[100:101]'); a.e('s_waitcnt lgkmcnt(0)'); a.e('v_mov_b32 v254, s100')
        a.e('v_mov_b32 v251, s2')
    a.e('s_load_dwordx16 s[12:27], s[0:1], 0')
    a.e('s_load_dwordx4 s[84:87], s[0:1], 64')
    a.e('s_load_dwordx4 s[88:91], s[0:1], 88')
    a.e(f'v_lshrrev_b32 v1, 6, v0')
    a.e(f'v_and_b32 v{V_LANE}, 63, v0')
    a.e(f'v_readfirstlane_b32 s{S_W}, v1')
    a.e(f'v_and_b32 v2, 15, v{V_LANE}'); a.e(f'v_lshrrev_b32 v3, 4, v{V_LANE}')
    a.e(f'v_lshlrev_b32 v{V_L16}, 4, v{V_LANE}')
    a.e(f's_lshl_b32 s{S_LB}, s{S_W}, 15')
    a.e('v_lshlrev_b32 v4, 1, v3'); a.e('v_xor_b32 v4, v2, v4'); a.e('v_lshlrev_b32 v4, 4, v4')
    a.e(f'v_lshl_add_u32 v{DE}, v3, 8, v4'); a.e(f'v_xor_b32 v{DO}, 0x80, v{DE}')
    a.e(f'v_lshl_add_u32 v{QE}, v3, 13, v4'); a.e(f'v_xor_b32 v{QO}, 0x80, v{QE}')
    a.e(f'v_lshl_add_u32 v{OE}, v3, 10, v4'); a.e(f'v_xor_b32 v{OO}, 0x80, v{OE}')
    a.e('v_and_b32 v5, 7, v2'); a.e('v_lshlrev_b32 v5, 1, v5')
    a.e('v_xor_b32 v6, v3, v5'); a.e('v_lshlrev_b32 v6, 4, v6')
    a.e('v_lshl_add_u32 v6, v2, 8, v6'); a.e(f'v_add_u32 v{KA}, s{S_LB}, v6')
    for s in range(1, 4): a.e(f'v_xor_b32 v{KA+s}, {s<<6}, v{KA}')
    a.e('v_lshrrev_b32 v6, 1, v3'); a.e('v_xor_b32 v6, v6, v5'); a.e('v_lshlrev_b32 v6, 4, v6')
    a.e('v_and_b32 v7, 1, v3'); a.e('v_lshl_add_u32 v6, v7, 3, v6')
    a.e('v_lshl_add_u32 v6, v2, 8, v6'); a.e(f'v_add_u32 v{V_XB}, s{S_LB}, v6')
    a.e('v_lshrrev_b32 v6, 2, v2'); a.e('v_lshl_add_u32 v6, v3, 2, v6')
    a.e('v_and_b32 v7, 7, v6'); a.e('v_lshlrev_b32 v7, 1, v7')
    a.e('v_bfe_u32 v8, v2, 1, 1'); a.e('v_xor_b32 v7, v8, v7'); a.e('v_lshlrev_b32 v7, 4, v7')
    a.e('v_and_b32 v8, 1, v2'); a.e('v_lshl_add_u32 v7, v8, 3, v7')
    a.e('v_lshl_add_u32 v7, v6, 8, v7'); a.e(f'v_add_u32 v7, s{S_LB}, v7')
    a.e(f's_lshl_b32 s{S_T}, s{S_W}, 1')
    for tau in range(8):
        a.e(f's_add_u32 s{S_T+1}, s{S_T}, {tau}'); a.e(f's_and_b32 s{S_T+1}, s{S_T+1}, 7'); a.e(f's_lshl_b32 s{S_T+1}, s{S_T+1}, 5')
        a.e(f'v_xor_b32 v{TRA+tau}, s{S_T+1}, v7')
    a.e(f's_mul_i32 s{S_T}, s{S_W}, 12288'); a.e(f'v_add_u32 v{V_ST}, s{S_T}, v{V_L16}')
    a.e(f's_lshl_b32 s{S_W8}, s{S_W}, 13')
    a.e('s_and_b32 s79, s2, 7'); a.e('s_lshr_b32 s80, s2, 3')
    a.e('s_and_b32 s94, s80, 15'); a.e('s_lshl_b32 s95, s79, 4'); a.e('s_add_u32 s95, s95, s94')
    a.e('s_lshr_b32 s92, s94, 1'); a.e('s_and_b32 s93, s94, 1'); a.e('s_lshl_b32 s96, s79, 1'); a.e('s_add_u32 s93, s93, s96')
    a.e('s_cmp_lt_u32 s80, 16'); a.e(f's_cselect_b32 s{S_ISA[1]}, 1, 0'); a.e(f's_mov_b32 s{S_ISA[2]}, s{S_ISA[1]}')
    a.e('s_cbranch_scc0 L_idB')
    a.e('s_lshr_b32 s96, s79, 1'); a.e('s_and_b32 s81, s79, 1'); a.e('s_lshl_b32 s81, s81, 2'); a.e('s_lshr_b32 s97, s80, 2'); a.e('s_add_u32 s81, s81, s97')
    a.e(f's_and_b32 s{S_HH}, s80, 3'); a.e('s_lshl_b32 s83, s96, 2'); a.e(f's_add_u32 s83, s83, s{S_HH}')
    a.e('s_lshl_b32 s79, s81, 3'); a.e('s_add_u32 s79, s79, s96')
    if cfg.fake_joint:
        a.e(f's_lshr_b32 s97, s{S_HH}, 1'); a.e('s_lshl_b32 s97, s97, 2'); a.e('s_add_u32 s79, s79, s97')
        a.e(f's_and_b32 s{S_HH}, s{S_HH}, 1'); a.e(f's_lshl_b32 s{S_HH}, s{S_HH}, 1')
    a.e('s_branch L_iddone')
    a.label('L_idB')
    a.e('s_mov_b32 s81, s92'); a.e('s_mov_b32 s83, s93'); a.e(f's_mov_b32 s{S_HH}, 0')
    a.e('s_lshl_b32 s79, s81, 5'); a.e('s_add_u32 s79, s79, s83')
    a.label('L_iddone')
    if cfg.rotW: a.e(f's_and_b32 s{S_RW}, s81, 3')
    else: a.e(f's_mov_b32 s{S_RW}, 0')
    a.e('s_waitcnt lgkmcnt(0)')
    R = SRD[1]; R2 = SRD[2]
    a.e(f's_cmp_eq_u32 s{S_ISA[1]}, 1')
    for name, pa, pb in (('X', 12, 22), ('K', 14, 24), ('V', 16, 26), ('WQ', 18, 84), ('WO', 20, 86)):
        r = R[name]
        a.e(f's_cselect_b32 s{r}, s{pa}, s{pb}'); a.e(f's_cselect_b32 s{r+1}, s{pa+1}, s{pb+1}')
    a.e('s_mov_b32 s80, 0x800000'); a.e(f's_cselect_b32 s80, {0 if cfg.fake_joint else 0x200000}, s80')
    a.e('s_lshl_b32 s96, s79, 19'); a.e('s_lshr_b32 s97, s79, 13')
    for name in ('K', 'V'):
        r = R[name]
        a.e(f's_add_u32 s{r}, s{r}, s96'); a.e(f's_addc_u32 s{r+1}, s{r+1}, s97')
        a.e(f's_mov_b32 s{r+2}, 0x80000'); a.e(f's_mov_b32 s{r+3}, 0x20000')
    r = R['X']; a.e('s_mul_i32 s96, s81, 49152')
    a.e(f's_add_u32 s{r}, s{r}, s96'); a.e(f's_addc_u32 s{r+1}, s{r+1}, 0'); a.e(f's_mov_b32 s{r+2}, 49152'); a.e(f's_mov_b32 s{r+3}, 0x20000')
    r = R['WQ']; a.e('s_lshl_b32 s96, s83, 8')
    a.e(f's_add_u32 s{r}, s{r}, s96'); a.e(f's_addc_u32 s{r+1}, s{r+1}, 0'); a.e(f's_sub_u32 s{r+2}, 0x400000, s96'); a.e(f's_mov_b32 s{r+3}, 0x20000')
    r = R['WO']; a.e('s_lshl_b32 s96, s83, 17')
    a.e(f's_add_u32 s{r}, s{r}, s96'); a.e(f's_addc_u32 s{r+1}, s{r+1}, 0'); a.e(f's_mov_b32 s{r+2}, 0x20000'); a.e(f's_mov_b32 s{r+3}, 0x20000')
    r = R2['V']; r1 = R['V']
    a.e(f's_add_u32 s{r}, s{r1}, s80'); a.e(f's_addc_u32 s{r+1}, s{r1+1}, 0'); a.e(f's_mov_b32 s{r+2}, 0x80000'); a.e(f's_mov_b32 s{r+3}, 0x20000')
    r = R2['WO']; r1 = R['WO']
    a.e(f's_add_u32 s{r}, s{r1}, 0x200000'); a.e(f's_addc_u32 s{r+1}, s{r1+1}, 0'); a.e(f's_mov_b32 s{r+2}, 0x20000'); a.e(f's_mov_b32 s{r+3}, 0x20000')
    a.e(f's_mov_b32 s{S_KD}, s80')
    r = R2['K']; a.e('s_mul_i32 s96, s92, 49152')
    a.e(f's_add_u32 s{r}, s22, s96'); a.e(f's_addc_u32 s{r+1}, s23, 0'); a.e(f's_mov_b32 s{r+2}, 49152'); a.e(f's_mov_b32 s{r+3}, 0x20000')
    r = R2['WQ']; a.e('s_add_u32 s96, s93, 16'); a.e('s_lshl_b32 s96, s96, 8')
    a.e(f's_add_u32 s{r}, s84, s96'); a.e(f's_addc_u32 s{r+1}, s85, 0'); a.e(f's_sub_u32 s{r+2}, 0x400000, s96'); a.e(f's_mov_b32 s{r+3}, 0x20000')
    a.e(f's_and_b32 s{S_RWP}, s92, 3')
    a.e('s_mul_i32 s96, s95, 12288'); a.e(f's_add_u32 s96, s96, {QIMG_OFF:#x}')
    a.e(f's_add_u32 s{R_QI}, s90, s96'); a.e(f's_addc_u32 s{R_QI+1}, s91, 0'); a.e(f's_mov_b32 s{R_QI+2}, 12288'); a.e(f's_mov_b32 s{R_QI+3}, 0x20000')
    a.e(f's_lshl_b32 s96, s95, 7'); a.e(f's_add_u32 s{S_QF}, s96, {QFLG}')
    a.e(f's_cmp_eq_u32 s{S_ISA[1]}, 1'); a.e('s_cselect_b32 s94, 0, 8'); a.e('s_add_u32 s94, s94, s81')
    r = SRD[2]['PT']; a.e('s_lshl_b32 s93, s94, 4'); a.e('s_add_u32 s93, s93, s83'); a.e('s_mul_i32 s96, s93, 49152')
    a.e(f's_add_u32 s{r}, s90, s96'); a.e(f's_addc_u32 s{r+1}, s91, 0'); a.e(f's_mov_b32 s{r+2}, 49152'); a.e(f's_mov_b32 s{r+3}, 0x20000')
    a.e('s_lshl_b32 s94, s94, 7'); a.e('s_lshl_b32 s96, s83, 2'); a.e(f's_add_u32 s{S_FG[2]}, s94, s96')
    a.e(f's_add_u32 s{R_FLG}, s90, {FLG_OFF:#x}'); a.e(f's_addc_u32 s{R_FLG+1}, s91, 0'); a.e(f's_mov_b32 s{R_FLG+2}, 20480'); a.e(f's_mov_b32 s{R_FLG+3}, 0x20000')
    a.e(f's_lshl_b32 s{S_WQO}, s{S_W}, 20'); a.e(f's_lshl_b32 s{S_XO}, s{S_W}, 8')
    a.e('s_mov_b32 s80, s88'); a.e('s_mov_b32 s81, s89'); a.e('s_mov_b32 s82, 256'); a.e('s_mov_b32 s83, 0x20000')
    a.e(f's_mov_b32 s{R_DBGK}, s88'); a.e(f's_mov_b32 s{R_DBGK+1}, s89')
    a.e(f's_mov_b32 s{S_C}, {f32bits(math.log2(math.e) / math.sqrt(128.0)):#x}')
    a.e(f's_cmp_lg_u32 s{S_W}, 0'); a.e('s_cbranch_scc1 L_noclear')
    a.e('s_mov_b64 exec, 1'); a.e('v_mov_b32 v1, 0')
    a.e(f'buffer_store_dword v1, v1, s[{R_FLG}:{R_FLG+3}], s{S_FG[2]} offen sc1')
    a.e(f's_cmp_eq_u32 s{S_ISA[1]}, 0'); a.e('s_cbranch_scc1 L_noclear2')
    a.e(f'buffer_store_dword v1, v1, s[{R_FLG}:{R_FLG+3}], s{S_QF} offen sc1')
    a.label('L_noclear2')
    a.e('s_mov_b64 exec, -1')
    a.label('L_noclear')

    ntw = ' nt' if cfg.nt_w else ''
    pend = []
    def pump(n=1):
        for _ in range(n):
            if not pend: return
            tag, th = pend.pop(0); th()
    def flush(): pump(len(pend))
    def wait_vm(tag):
        while any(t == tag for t, _ in pend): pump()
        a.wait_vm(tag)
    DYN = 'DYN'
    dynid = [0]
    def dma(tag, srd, slot, vE, vO, RS, sbase, const, npieces=8, flags='', pre=None, dyn=None):
        for p in range(npieces):
            def th(p=p):
                if p == 0 and pre: pre()
                if p % 4 == 0: a.e(f's_add_u32 m0, s{S_LB}, {slot*8192 + (p//4)*4096}')
                off = const + p*4*RS - (p & 3)*1024
                if RS == 256:
                    if p % 4 == 0: a.e(f's_add_u32 s{S_T2}, s{sbase}, {off}')
                else:
                    a.e(f's_add_u32 s{S_T2}, s{sbase}, {off}')
                v = vE if p % 2 == 0 else vO
                if dyn is None:
                    a.vmop(tag, f'buffer_load_dwordx4 v{v}, s[{srd}:{srd+3}], s{S_T2} offen offset:{(p&3)*1024}{flags} lds')
                else:
                    isa, fa, fb = dyn
                    k = dynid[0]; dynid[0] += 1
                    a.e(f's_cmp_eq_u32 s{isa}, 0'); a.e(f's_cbranch_scc1 L_dyb{k}')
                    a.e(f'buffer_load_dwordx4 v{v}, s[{srd}:{srd+3}], s{S_T2} offen offset:{(p&3)*1024}{fa} lds')
                    a.e(f's_branch L_dye{k}'); a.label(f'L_dyb{k}')
                    a.vmop(tag, f'buffer_load_dwordx4 v{v}, s[{srd}:{srd+3}], s{S_T2} offen offset:{(p&3)*1024}{fb} lds')
                    a.label(f'L_dye{k}')
            pend.append((tag, th))
    def regload(tag, srd, regbase, sbase, flags, pre):
        for p in range(8):
            def th(p=p):
                if p == 0 and pre: pre()
                if p % 4 == 0: a.e(f's_add_u32 s{S_T2}, s{sbase}, {(p//4)*4096}')
                v = DE if p % 2 == 0 else DO
                a.vmop(tag, f'buffer_load_dwordx4 {ar(regbase+4*p, 4)}, v{v}, s[{srd}:{srd+3}], s{S_T2} offen offset:{(p&3)*1024}{flags}')
            pend.append((tag, th))
    def commit(regbase, slot):
        a.e(f'v_add_u32 v{TMP+11}, s{S_LB}, v{V_L16}')
        for p in range(8):
            a.e(f'ds_write_b128 v{TMP+11}, {ar(regbase+4*p, 4)} offset:{slot*8192+p*1024}')
    def dma_kv(n, u, which, slot, fl, reg=None):
        pre = None
        if which == 'K':
            def pre():
                a.e(f's_add_u32 s{S_T4}, s{S_STEP}, s{S_ROT}'); a.e(f's_and_b32 s{S_T4}, s{S_T4}, 3')
                a.e(f's_and_b32 s{S_OFF}, s{S_STEP}, -4'); a.e(f's_or_b32 s{S_OFF}, s{S_OFF}, s{S_T4}')
                a.e(f's_lshl_b32 s{S_OFF}, s{S_OFF}, 15'); a.e(f's_add_u32 s{S_OFF}, s{S_OFF}, s{S_W8}')
                a.e(f's_add_u32 s{S_STEP}, s{S_STEP}, 1')
            dyn = None
            if fl == DYN:
                fl = ''
                if cfg.dynflags and cfg.flA != cfg.flBK: dyn = (S_ISA[u], cfg.flA, cfg.flBK)
            if reg is not None: regload(f'R{reg}', SRD[u]['K'], reg, S_OFF, fl, pre)
            else: dma(f'K{n&1}', SRD[u]['K'], slot, DE, DO, 256, S_OFF, 0, flags=fl, pre=pre, dyn=dyn)
        else:
            def pre():
                a.e(f's_add_u32 s{S_T4}, s{S_VSTEP}, s{S_ROT}'); a.e(f's_and_b32 s{S_T4}, s{S_T4}, 3')
                a.e(f's_and_b32 s{S_OFFV}, s{S_VSTEP}, -4'); a.e(f's_or_b32 s{S_OFFV}, s{S_OFFV}, s{S_T4}')
                a.e(f's_lshl_b32 s{S_OFFV}, s{S_OFFV}, 15'); a.e(f's_add_u32 s{S_OFFV}, s{S_OFFV}, s{S_W8}')
                a.e(f's_add_u32 s{S_VSTEP}, s{S_VSTEP}, 1')
            dyn = None
            if fl == DYN:
                fl = ''
                if cfg.dynflags and cfg.flA != cfg.flBV: dyn = (S_ISA[u], cfg.flA, cfg.flBV)
            if reg is not None: regload(f'R{reg}', SRD[u]['V'], reg, S_OFFV, fl, pre)
            else: dma(f'V{n&1}', SRD[u]['V'], slot, DE, DO, 256, S_OFFV, 0, flags=fl, pre=pre, dyn=dyn)
    S_VSTEP, S_OFFV = 84, 83
    def rot_pre(j, base_sgpr, shift, rw=S_RW):
        def pre():
            a.e(f's_add_u32 s{S_WB}, s{rw}, {j}'); a.e(f's_and_b32 s{S_WB}, s{S_WB}, 3'); a.e(f's_lshl_b32 s{S_WB}, s{S_WB}, {shift}')
            a.e(f's_add_u32 s{S_WB}, s{S_WB}, s{base_sgpr}')
        return pre
    def dma_x(srd, part, slot, pfx=''): dma(f'{pfx}X{part}', srd, slot, OE, OO, 1024, S_XO, part*32*1024, npieces=8 if part == 0 else 4, flags=ntw)
    def dma_wq(srd, j, slot, rw=S_RW, pfx=''): dma(f'{pfx}W{j}', srd, slot, QE, QO, 8192, S_WB, 0, flags=ntw, pre=rot_pre(j, S_WQO, 18, rw))
    def dma_wo(u, s, slot): dma(f'WO{s}', SRD[u]['WO'], slot, OE, OO, 1024, S_WB, 0, flags=ntw, pre=rot_pre(s, S_XO, 15))

    def tr_reads(slot, buf=AV):
        for tau in range(8):
            a.e(f'ds_read_b64_tr_b16 {ar(buf+4*tau, 2)}, v{TRA+tau} offset:{slot*8192}')
            a.e(f'ds_read_b64_tr_b16 {ar(buf+4*tau+2, 2)}, v{TRA+tau} offset:{slot*8192+4096}')
    def k_reads(slot):
        for s in range(4):
            for kt in range(2):
                a.e(f'ds_read_b128 {ar(AK+(s*2+kt)*4, 4)}, v{KA+s} offset:{slot*8192+kt*4096}')
    def pv_mfmas(bfrag, first, buf=AV):
        out = []
        for tau in range(8):
            for qt in range(3):
                d = vr(Oreg(tau, qt), 4)
                out.append(f'v_mfma_f32_16x16x32_bf16 {d}, {ar(buf+4*tau, 4)}, {bfrag(qt)}, {"0" if first else d}')
        return out
    def qk_mfmas(buf):
        out = []
        for s in range(4):
            for kt in range(2):
                for qt in range(3):
                    d = vr(Sreg(buf, kt, qt), 4)
                    out.append(f'v_mfma_f32_16x16x32_bf16 {d}, {ar(AK+(s*2+kt)*4, 4)}, {aq(qt, s)}, {"0" if s == 0 else d}')
        return out
    def pvw(slot, bfrag, first, after_reads):
        tr_reads(slot)
        a.e('s_waitcnt lgkmcnt(0)')
        if after_reads: after_reads()
        for i, m in enumerate(pv_mfmas(bfrag, first)):
            a.e(m)
            if i % 3 == 2: pump()
    def proj(steps):
        if not cfg.dbuf:
            for tag, slot, bfrag, first, after in steps:
                wait_vm(tag); pvw(slot, bfrag, first, after)
            return
        bufs = [AV, AK]
        wait_vm(steps[0][0]); tr_reads(steps[0][1], bufs[0])
        for i, (tag, slot, bfrag, first, after) in enumerate(steps):
            a.e('s_waitcnt lgkmcnt(0)')
            if after: after()
            for k, m in enumerate(pv_mfmas(bfrag, first, bufs[i & 1])):
                a.e(m)
                if k % 3 == 2: pump()
                if k == 8 and i + 1 < len(steps):
                    wait_vm(steps[i+1][0]); tr_reads(steps[i+1][1], bufs[(i+1) & 1])
    def interleave(mf, va, extras):
        tot = sum(c for c, _ in va)
        n = len(mf); done = 0; vi = 0
        if n == 0:
            for c, s_ in va: a.e(s_)
            for k in sorted(extras): extras[k]()
            return
        for i, m in enumerate(mf):
            a.e(m)
            target = tot * (i + 1) / n
            while vi < len(va) and done + va[vi][0] / 2 <= target:
                a.e(va[vi][1]); done += va[vi][0]; vi += 1
            if i in extras: extras[i]()
        while vi < len(va): a.e(va[vi][1]); vi += 1
    def sm_exp_cvt(buf):
        va = []
        def exps(qt):
            for kt in range(2):
                for r in range(4):
                    x = Sreg(buf, kt, qt) + r; va.append((8, f'v_exp_f32 v{x}, v{x}'))
        def cvts(qt):
            for kt in range(2):
                x = Sreg(buf, kt, qt)
                va.append((4, f'v_cvt_pk_bf16_f32 v{P+qt*4+kt*2}, v{x}, v{x+1}'))
                va.append((4, f'v_cvt_pk_bf16_f32 v{P+qt*4+kt*2+1}, v{x+2}, v{x+3}'))
        exps(0); exps(1); cvts(0); exps(2); cvts(1); cvts(2)
        return va
    def sm_adds(buf):
        va = []
        for kt in range(2):
            for r in range(4):
                for qt in range(3):
                    va.append((4, f'v_add_f32 v{L_(qt)}, v{L_(qt)}, v{Sreg(buf, kt, qt)+r}'))
        return va
    def sm_first(buf):
        va = []
        for kt in range(2):
            for qt in range(3):
                for r in range(4):
                    x = Sreg(buf, kt, qt) + r
                    va.append((4, f'v_fma_f32 v{x}, v{x}, s{S_C}, -v{M_(qt)}'))
        for qt in range(3):
            r0 = Sreg(buf, 0, qt); va.append((4, f'v_max3_f32 v{TMP+qt}, v{r0}, v{r0+1}, v{r0+2}'))
        for qt in range(3):
            r0 = Sreg(buf, 0, qt); r1 = Sreg(buf, 1, qt); va.append((4, f'v_max3_f32 v{TMP+qt}, v{TMP+qt}, v{r0+3}, v{r1}'))
        for qt in range(3):
            r1 = Sreg(buf, 1, qt); va.append((4, f'v_max3_f32 v{TMP+qt}, v{TMP+qt}, v{r1+1}, v{r1+2}'))
        for qt in range(3):
            r1 = Sreg(buf, 1, qt); va.append((4, f'v_max_f32 v{TMP+qt}, v{TMP+qt}, v{r1+3}'))
        va.append((4, f'v_max3_f32 v{TMP+3}, v{TMP}, v{TMP+1}, v{TMP+2}'))
        return va
    site = [0]
    def sm_check(buf):
        a.e(f'v_cmp_lt_f32 vcc, s{S_THR}, v{TMP+3}')
        k = site[0]; site[0] += 1
        a.e(f's_cbranch_vccz L_fast{k}')
        a.e(f's_call_b64 s[{S_RET}:{S_RET+1}], L_rescale{buf}')
        a.label(f'L_fast{k}')
    def kslot(sl, n): return sl(2) if n % 2 == 0 else sl(0)
    def vslot(sl, n): return sl(3) if n % 2 == 0 else sl(1)

    def stage1(i, sl, do_qk, enq):
        a.e('s_waitcnt lgkmcnt(0)')
        if enq: enq()
        mf = qk_mfmas((i+1) & 1) if do_qk else []
        def vread():
            wait_vm(f'V{i&1}'); tr_reads(vslot(sl, i))
        ex = {}
        if do_qk:
            for k in (1, 4, 7, 13, 16, 19, 21, 23): ex[k] = pump
            ex[10] = vread
        else:
            vread()
        interleave(mf, sm_exp_cvt(i & 1), ex)
        flush()
    def stage2(i, sl, do_next, enq, kread_next):
        a.e('s_waitcnt lgkmcnt(0)')
        if enq: enq()
        mf = pv_mfmas(lambda qt: vr(P+qt*4, 4), False)
        va = sm_adds(i & 1) + (sm_first((i+1) & 1) if do_next else [])
        ex = {}
        for k in (1, 4, 7, 13, 16, 19, 21, 23): ex[k] = pump
        if kread_next:
            def kread():
                wait_vm(f'K{i&1}'); k_reads(kslot(sl, i+2))
            ex[10] = kread
        interleave(mf, va, ex)
        flush()
        if do_next: sm_check((i+1) & 1)

    def allreduce(reg, op):
        t = TMP + 10
        a.e(f'v_mov_b32 v{t}, v{reg}'); a.nop(2)
        a.e(f'v_permlane32_swap_b32 v{reg}, v{t}'); a.nop(1)
        a.e(f'{op} v{reg}, v{reg}, v{t}')
        a.e(f'v_mov_b32 v{t}, v{reg}'); a.nop(2)
        a.e(f'v_permlane16_swap_b32 v{reg}, v{t}'); a.nop(1)
        a.e(f'{op} v{reg}, v{reg}, v{t}')

    def allreduce3(regs, op):
        t = TMP + 8
        for stage in ('v_permlane32_swap_b32', 'v_permlane16_swap_b32'):
            for i, r in enumerate(regs): a.e(f'v_mov_b32 v{t+i}, v{r}')
            a.nop(1)
            for i, r in enumerate(regs): a.e(f'{stage} v{r}, v{t+i}')
            a.nop(1)
            for i, r in enumerate(regs): a.e(f'{op} v{r}, v{r}, v{t+i}')
    def exchange(kind, slotA, slotB, after_in, inter=None):
        a.c(f'--- exchange {kind}')
        t = TMP
        FA = 1
        if kind == 'O':
            a.e(f'v_and_b32 v{t}, 15, v{V_LANE}'); a.e(f'v_lshlrev_b32 v{t}, 3, v{t}')
            for rho in range(4):
                a.e(f's_sub_u32 s{S_T}, s{S_W}, {rho}'); a.e(f's_and_b32 s{S_T}, s{S_T}, 3'); a.e(f's_lshl_b32 s{S_T}, s{S_T}, 13')
                a.e(f's_add_u32 s{S_T}, s{S_T}, {AUX+6144}'); a.e(f'v_add_u32 v{t+1+rho}, s{S_T}, v{t}')
            for rho in range(4):
                for qt in range(3):
                    a.e(f'ds_read_b64 {vr(IN+(rho*3+qt)*2, 2)}, v{t+1+rho} offset:{qt*128}')
        for rho in (1, 2, 3):
            a.e(f's_add_u32 s{S_T}, s{S_W}, {rho}'); a.e(f's_and_b32 s{S_T}, s{S_T}, 3')
            if rho < 3: a.e(f's_lshl_b32 s{S_T}, s{S_T}, 15')
            else: a.e(f's_lshl_b32 s{S_T}, s{S_T}, 13'); a.e(f's_add_u32 s{S_T}, s{S_T}, {AUX}')
            a.e(f'v_add_u32 v{t+5+rho}, s{S_T}, v{V_L16}')
        inter = list(inter or [])
        for rho in (1, 2, 3):
            base = {1: slotA*8192, 2: slotB*8192, 3: 0}[rho]
            for i in range(6):
                a.e(f'ds_write_b128 v{t+5+rho}, {vr(O+24*rho+4*i, 4)} offset:{base+i*1024}')
                if inter: inter.pop(0)()
        while inter: inter.pop(0)()
        if kind == 'O':
            a.e('s_waitcnt lgkmcnt(15)')
            for qt in range(3):
                m = lambda rho: IN + (rho*3+qt)*2
                mm = t
                a.e(f'v_max3_f32 v{mm}, v{m(0)}, v{m(1)}, v{m(2)}'); a.e(f'v_max_f32 v{mm}, v{mm}, v{m(3)}')
                for rho in range(4): a.e(f'v_sub_f32 v{m(rho)}, v{m(rho)}, v{mm}')
                for rho in range(4): a.e(f'v_exp_f32 v{m(rho)}, v{m(rho)}')
                a.nop(1)
                a.e(f'v_mul_f32 v{t+1}, v{m(0)}, v{m(0)+1}')
                for rho in range(1, 4): a.e(f'v_fma_f32 v{t+1}, v{m(rho)}, v{m(rho)+1}, v{t+1}')
                a.e(f'v_rcp_f32 v{t+1}, v{t+1}'); a.nop(1)
                for rho in range(4): a.e(f'v_mul_f32 v{FA+rho*3+qt}, v{m(rho)}, v{t+1}')
        a.e(f'v_add_u32 v{t+2}, s{S_LB}, v{V_L16}')
        a.e(f's_lshl_b32 s{S_T}, s{S_W}, 13'); a.e(f's_add_u32 s{S_T}, s{S_T}, {AUX}')
        a.e(f'v_add_u32 v{t+3}, s{S_T}, v{V_L16}')
        a.e('s_waitcnt lgkmcnt(0)'); a.e('s_barrier')
        for rho in (1, 2, 3):
            for i in range(6):
                if rho < 3: a.e(f'ds_read_b128 {vr(IN+24*(rho-1)+4*i, 4)}, v{t+2} offset:{ {1: slotA*8192, 2: slotB*8192}[rho] + i*1024}')
                else: a.e(f'ds_read_b128 {vr(IN+24*(rho-1)+4*i, 4)}, v{t+3} offset:{i*1024}')
        if kind == 'Q':
            a.e(f'v_lshrrev_b32 v{t+4}, 5, v{V_LANE}'); a.e(f'v_lshlrev_b32 v{t+4}, 8, v{t+4}')
            a.e(f'v_and_b32 v{t+5}, 15, v{V_LANE}'); a.e(f'v_lshl_add_u32 v{t+4}, v{t+5}, 4, v{t+4}')
            a.e(f'v_bfe_u32 v{t+5}, v{V_LANE}, 4, 1'); a.e(f'v_lshl_add_u32 v{t+4}, v{t+5}, 3, v{t+4}')
            a.e(f'v_add_u32 v{t+4}, s{S_T}, v{t+4}')
            uoff = 512
        else:
            a.e(f'v_add_u32 v{t+4}, s{S_T}, v{V_L16}')
            uoff = 8
            for i in range(6):
                for r in range(4): a.e(f'v_mul_f32 v{O+4*i+r}, v{O+4*i+r}, v{FA+(i%3)}')
        a.e('s_waitcnt lgkmcnt(12)')
        for rho in (1, 2, 3):
            if rho == 2: a.e('s_waitcnt lgkmcnt(6)')
            if rho == 3:
                a.e('s_waitcnt lgkmcnt(0)')
                if after_in: after_in()
            for i in range(6):
                for r in range(4):
                    x = O + 4*i + r; y = IN + 24*(rho-1) + 4*i + r
                    if kind == 'O': a.e(f'v_fmac_f32 v{x}, v{y}, v{FA+rho*3+(i%3)}')
                    else: a.e(f'v_add_f32 v{x}, v{x}, v{y}')
        for tau in range(2):
            for qt in range(3):
                x = Oreg(tau, qt); d = IN + (tau*3+qt)*2
                a.e(f'v_cvt_pk_bf16_f32 v{d}, v{x}, v{x+1}'); a.e(f'v_cvt_pk_bf16_f32 v{d+1}, v{x+2}, v{x+3}')
        for tau in range(2):
            for qt in range(3):
                d = IN + (tau*3+qt)*2
                a.e(f'ds_write_b64 v{t+4}, {vr(d, 2)} offset:{qt*1024 + tau*uoff}')
        pump(4)
        if kind == 'O':
            for s in range(4):
                a.e(f's_add_u32 s{S_T}, s{S_RW}, {s}'); a.e(f's_and_b32 s{S_T}, s{S_T}, 3'); a.e(f's_lshl_b32 s{S_T}, s{S_T}, 13')
                a.e(f's_add_u32 s{S_T}, s{S_T}, {AUX}'); a.e(f'v_add_u32 v{t+5+s}, s{S_T}, v{V_L16}')
        else:
            a.e(f'v_add_u32 v{t+5}, {AUX}, v{V_L16}')
        a.e('s_waitcnt lgkmcnt(0)'); a.e('s_barrier')
        for s in range(4):
            for qt in range(3):
                if kind == 'Q': a.e(f'ds_read_b128 {aq(qt, s)}, v{t+5} offset:{s*8192 + qt*1024}')
                else: a.e(f'ds_read_b128 {ax(qt, s)}, v{t+5+s} offset:{qt*1024}')
        pump(4)
        a.e('s_waitcnt lgkmcnt(0)')

    def set_flag(u, lbl):
        a.e(f's_cmp_lg_u32 s{S_W}, 0'); a.e(f's_cbranch_scc1 {lbl}')
        a.e('s_mov_b64 exec, 1'); a.e(f'v_mov_b32 v{TMP}, 0'); a.e(f'v_mov_b32 v{TMP+1}, 1')
        a.e(f'buffer_store_dword v{TMP+1}, v{TMP}, s[{R_FLG}:{R_FLG+3}], s{S_FG[u]} offen sc1')
        a.e('s_mov_b64 exec, -1')
        a.label(lbl)
        a.nop(2)

    def store_thunks(u):
        r = SRD[u]['PT']
        out = []
        for qt in range(3):
            for pi in range(4):
                def th(qt=qt, pi=pi):
                    d = IN + (qt*4+pi)*4
                    if pi == 0: a.e(f's_mov_b32 s{S_T3}, {qt*4096}')
                    a.vmop('ST', f'buffer_store_dwordx4 {vr(d, 4)}, v{V_ST}, s[{r}:{r+3}], s{S_T3} offen offset:{pi*1024}{cfg.st_flags}')
                out.append(th)
        return out
    def stores(u):
        for i, th in enumerate(store_thunks(u)):
            th()
            if i % 4 == 3: pump()
    loops = []
    PREF = [None]
    def qphase(srdWQ, rw, sl, after_step, after_in, pfx='', count=False):
        for j in range(4):
            a.e(f's_add_u32 s{S_T}, s{rw}, {j}'); a.e(f's_and_b32 s{S_T}, s{S_T}, 3'); a.e(f's_lshl_b32 s{S_T}, s{S_T}, 6')
            a.e(f'v_xor_b32 v{TMP+2*j}, s{S_T}, v{V_XB}'); a.e(f'v_xor_b32 v{TMP+2*j+1}, 32, v{TMP+2*j}')
        wait_vm(f'{pfx}X1')
        if count:
            a.e(f's_cmp_lg_u32 s{S_W}, 0'); a.e(f's_cbranch_scc1 L_nocount{count}')
            a.e('s_mov_b64 exec, 1'); a.e('v_mov_b32 v1, 0'); a.e('v_mov_b32 v2, 1')
            a.e('buffer_atomic_add v2, v1, s[80:83], 0 offen sc1')
            a.e('s_mov_b64 exec, -1')
            a.label(f'L_nocount{count}')
        for qt in range(3):
            for j in range(4):
                for uu in range(2):
                    r = AX + (qt*4 + j)*4 + uu*2
                    off = (sl(0)*8192 + qt*4096) if qt < 2 else sl(1)*8192
                    a.e(f'ds_read_b64 a[{r}:{r+1}], v{TMP+2*j+uu} offset:{off}')
        a.e('s_waitcnt lgkmcnt(0)')
        dma_wq(srdWQ, 2, sl(0), rw, pfx); dma_wq(srdWQ, 3, sl(1), rw, pfx); flush()
        wslot = [sl(2), sl(3), sl(0), sl(1)]
        proj([(f'{pfx}W{j}', wslot[j], (lambda qt, j=j: ax(qt, j)), j == 0, after_step[j]) for j in range(4)])
        flush()
        a.nop(8)
        a.e('s_barrier')
        exchange('Q', sl(0), sl(1), after_in)
        flush()

    def unit(u, br):
        isA = br == 'A'
        sg = 2 if (u == 2 and isA) else 0
        sl = lambda n: (n + sg) & 3
        fk, fv = (cfg.flA, cfg.flA) if isA else (cfg.flBK, cfg.flBV)
        if cfg.bb2_def and u == 2 and not isA: fk, fv = '', ''
        a.c(f'================ {br}{br} unit {u}')
        if not (u == 2 and not isA):
            a.e(f's_mov_b32 s{S_STEP}, 0'); a.e(f's_mov_b32 s{S_VSTEP}, 0')
            j0 = 2 if cfg.kv0_late else 0
            steps = [None]*4
            steps[j0] = lambda: dma_kv(0, u, 'K', sl(2), fk)
            steps[j0+1] = lambda: dma_kv(0, u, 'V', sl(3), fv)
            qphase(SRD[u]['WQ'], S_RW, sl, steps, lambda: dma_kv(1, u, 'K', sl(0), fk), count=('B' if (u == 1 and not isA) else False))
        else:
            wait_vm('QF')
        stamp()
        if cfg.fake_joint and isA and u == 2:
            a.wait_vm_all()
            PREF[0]([(16, 16 - cfg.fake_joint, cfg.fake_joint)], 'b')
            a.wait_vm_all()
            stamp(); stamp()
            dma_wo(u, 0, sl(2)); dma_wo(u, 1, sl(3)); flush()
            a.e('s_barrier')
            exchange('O', sl(0), sl(1), lambda: (dma_wo(u, 2, sl(0)), dma_wo(u, 3, sl(1))))
            stamp()
            oslot = [sl(2), sl(3), sl(0), sl(1)]
            for s_ in range(4):
                wait_vm(f'WO{s_}')
                pvw(oslot[s_], lambda qt, s_=s_: ax(qt, s_), s_ == 0, None)
            a.nop(8)
            stamp()
            for qt in range(3):
                for pi in range(4):
                    d = IN + (qt*4+pi)*4
                    for h2 in range(2):
                        x = Oreg(2*pi+h2, qt)
                        a.e(f'v_cvt_pk_bf16_f32 v{d+2*h2}, v{x}, v{x+1}'); a.e(f'v_cvt_pk_bf16_f32 v{d+2*h2+1}, v{x+2}, v{x+3}')
            stores(u)
            return
        wait_vm('K0'); k_reads(sl(2))
        for i in range(96): a.e(f'v_mov_b32 v{O+i}, 0')
        for qt in range(3):
            a.e(f'v_mov_b32 v{M_(qt)}, 0'); a.e(f'v_mov_b32 v{L_(qt)}, 0')
        a.e(f's_mov_b32 s{S_THR}, 0xff800000'); a.e(f's_mov_b32 s{S_FLOOR}, 0xff800000')
        a.e('s_waitcnt lgkmcnt(0)')
        dma_kv(2, u, 'K', sl(2), fk); dma_kv(1, u, 'V', sl(1), fv)
        for i, m in enumerate(qk_mfmas(0)):
            a.e(m)
            if i % 3 == 2: pump()
        wait_vm('K1'); k_reads(sl(0))
        flush()
        a.nop(4)
        for c, s_ in sm_first(0): a.e(s_)
        sm_check(0)
        assert a.vm[-16:] == ['K0']*8 + ['V1']*8, a.vm
        steady = ['V0']*8 + ['K0']*8 + ['V1']*8
        a.e(f's_mov_b32 s{S_CNT}, 6')
        a.vm = list(steady)
        a.label(f'L_loop{br}{u}')
        start = len(a.L)
        for i in (0, 1):
            stage1(i, sl, True, lambda i=i: dma_kv(i+3, u, 'K', kslot(sl, i+3), fk))
            stage2(i, sl, True, lambda i=i: dma_kv(i+2, u, 'V', vslot(sl, i+2), fv), True)
        a.e(f's_sub_u32 s{S_CNT}, s{S_CNT}, 1'); a.e(f's_cmp_lg_u32 s{S_CNT}, 0'); a.e(f's_cbranch_scc1 L_loop{br}{u}')
        assert not pend and a.vm[-24:] == steady, a.vm
        loops.append((start, len(a.L)))
        stamp()
        getq = (u == 1 and not isA)
        def qcnt_load():
            a.e(f's_mov_b32 s36, s{R_DBGK}'); a.e(f's_mov_b32 s37, s{R_DBGK+1}'); a.e('s_mov_b32 s38, 256'); a.e('s_mov_b32 s39, 0x20000')
            a.e('v_mov_b32 v15, 0')
            a.vmop('QC1', 'buffer_load_dword v14, v15, s[36:39], 0 offen sc1')
        def qflag_loads():
            wait_vm('QC1')
            a.e(f's_mov_b32 s{S_T}, 20000')
            a.label('L_cchk')
            a.e(f'v_readfirstlane_b32 s{S_T3}, v14'); a.e('s_nop 3')
            a.e(f's_cmp_eq_u32 s{S_T3}, 256'); a.e('s_cbranch_scc1 L_cok')
            a.e('s_sleep 2')
            a.e('buffer_load_dword v14, v15, s[36:39], 0 offen sc1'); a.e('s_waitcnt vmcnt(0)')
            a.e(f's_sub_u32 s{S_T}, s{S_T}, 1'); a.e(f's_cmp_lg_u32 s{S_T}, 0'); a.e('s_cbranch_scc1 L_cchk')
            a.label('L_cok')
            a.vmop('QC', f'buffer_load_dword v13, v15, s[{R_FLG}:{R_FLG+3}], s{S_QF} offen sc1')
        stage1(12, sl, True, lambda: ((qcnt_load() if getq else None), dma_kv(15, u, 'K', kslot(sl, 15), fk)))
        stage2(12, sl, True, lambda: dma_kv(14, u, 'V', vslot(sl, 14), fv), True)
        stage1(13, sl, True, lambda: dma_wo(u, 0, sl(2)))
        stage2(13, sl, True, lambda: dma_kv(15, u, 'V', vslot(sl, 15), fv), True)
        stg = getq and cfg.stage_bb
        def s114():
            if getq: qflag_loads()
            if stg:
                a.e(f's_mov_b32 s{S_STEP}, 0'); dma_kv(0, 2, 'K', None, fk, reg=ASAVE)
        def s115():
            a.e(f's_mov_b32 s{S_VSTEP}, 0'); dma_kv(0, 2, 'V', None, fv, reg=ASAVE+32)
        def s215():
            dma_kv(1, 2, 'K', None, fk, reg=ASAVE+64)
        stage1(14, sl, True, s114 if (getq or stg) else None)
        stage2(14, sl, True, lambda: dma_wo(u, 1, sl(3)), False)
        stage1(15, sl, False, s115 if stg else None)
        stage2(15, sl, False, s215 if stg else None, False)
        stamp()
        if getq:
            wait_vm('QC')
            a.e(f's_mov_b32 s{S_T}, 20000')
            a.label('L_qchk')
            a.e(f'v_readfirstlane_b32 s{S_T3}, v13'); a.e('s_nop 3')
            a.e(f's_cmp_eq_u32 s{S_T3}, 1'); a.e('s_cbranch_scc1 L_qok')
            a.e('s_sleep 2')
            a.e(f'buffer_load_dword v13, v15, s[{R_FLG}:{R_FLG+3}], s{S_QF} offen sc1'); a.e('s_waitcnt vmcnt(0)')
            a.e(f's_sub_u32 s{S_T}, s{S_T}, 1'); a.e(f's_cmp_lg_u32 s{S_T}, 0'); a.e('s_cbranch_scc1 L_qchk')
            a.label('L_qok')
            for s_ in range(4):
                for qt in range(3):
                    idx = s_*3 + qt
                    if idx % 4 == 0: a.e(f's_mov_b32 s{S_T3}, {(idx//4)*4096}')
                    a.vmop('QF', f'buffer_load_dwordx4 {aq(qt, s_)}, v{V_L16}, s[{R_QI}:{R_QI+3}], s{S_T3} offen offset:{(idx%4)*1024} sc1')
            if not cfg.stage_bb: a.e(f's_mov_b32 s{S_STEP}, 0'); a.e(f's_mov_b32 s{S_VSTEP}, 0')
        a.c('--- stats')
        allreduce3([L_(qt) for qt in range(3)], 'v_add_f32')
        t = TMP
        a.e(f'v_and_b32 v{t}, 15, v{V_LANE}'); a.e(f'v_lshlrev_b32 v{t}, 3, v{t}')
        a.e(f's_lshl_b32 s{S_T}, s{S_W}, 13'); a.e(f's_add_u32 s{S_T}, s{S_T}, {AUX+6144}'); a.e(f'v_add_u32 v{t+1}, s{S_T}, v{t}')
        for qt in range(3): a.e(f'ds_write_b64 v{t+1}, {vr(M_(qt), 2)} offset:{qt*128}')
        a.e('s_waitcnt lgkmcnt(0)'); a.e('s_barrier')
        exchange('O', sl(0), sl(1), lambda: (dma_wo(u, 2, sl(0)), dma_wo(u, 3, sl(1))))
        stamp()
        oslot = [sl(2), sl(3), sl(0), sl(1)]
        if u == 2:
            for i in range(96): a.e(f'v_accvgpr_read_b32 v{O+i}, a{ASAVE+i}')
        steps = []
        for s_ in range(4):
            after = None
            if u == 1 and isA:
                after = [lambda: dma_x(SRD[1]['X'], 0, oslot[0]), lambda: dma_x(SRD[1]['X'], 1, oslot[1]), lambda: dma_wq(SRD[2]['WQ'], 0, oslot[2]), lambda: dma_wq(SRD[2]['WQ'], 1, oslot[3])][s_]
            if u == 1 and not isA:
                after = [lambda: dma_kv(0, 2, 'K', 2, fk), lambda: dma_kv(0, 2, 'V', 3, fv), lambda: dma_kv(1, 2, 'K', 0, fk), None][s_]
            steps.append((f'WO{s_}', oslot[s_], (lambda qt, s_=s_: ax(qt, s_)), s_ == 0 and u == 1, after))
        proj(steps)
        a.nop(8)
        stamp()
        if u == 1:
            for i in range(96):
                a.e(f'v_accvgpr_write_b32 a{ASAVE+i}, v{O+i}')
                if i % 12 == 11: pump()
            if not isA: flush()
            return
        for qt in range(3):
            for pi in range(4):
                d = IN + (qt*4+pi)*4
                for h2 in range(2):
                    x = Oreg(2*pi+h2, qt)
                    a.e(f'v_cvt_pk_bf16_f32 v{d+2*h2}, v{x}, v{x+1}'); a.e(f'v_cvt_pk_bf16_f32 v{d+2*h2+1}, v{x+2}, v{x+3}')
        stores(u)

    def build_u2():
        r = SRD[2]['K']; r1 = SRD[1]['K']
        a.e(f's_add_u32 s{r}, s{r1}, s{S_KD}'); a.e(f's_addc_u32 s{r+1}, s{r1+1}, 0'); a.e(f's_mov_b32 s{r+2}, 0x80000'); a.e(f's_mov_b32 s{r+3}, 0x20000')
        r = SRD[2]['WQ']; r1 = SRD[1]['WQ']
        a.e(f's_add_u32 s{r}, s{r1}, 4096'); a.e(f's_addc_u32 s{r+1}, s{r1+1}, 0'); a.e(f's_sub_u32 s{r+2}, s{r1+2}, 4096'); a.e(f's_mov_b32 s{r+3}, 0x20000')

    if cfg.setup_stamp: stamp()
    n0 = nst[0]
    a.e(f's_cmp_eq_u32 s{S_ISA[1]}, 0'); a.e('s_cbranch_scc1 L_progB')
    a.vm = []
    def prefetch(jobs, pfx):
        a.e('s_load_dwordx4 s[12:15], s[0:1], 48')
        a.e(f's_sub_u32 s16, s{S_QF}, {QFLG}'); a.e('s_lshr_b32 s16, s16, 7'); a.e('s_lshr_b32 s17, s16, 4'); a.e('s_and_b32 s16, s16, 15')
        a.e('s_lshr_b32 s18, s16, 1'); a.e('s_and_b32 s16, s16, 1'); a.e('s_lshl_b32 s17, s17, 1'); a.e('s_add_u32 s16, s16, s17')
        a.e('s_lshl_b32 s18, s18, 5'); a.e('s_add_u32 s16, s16, s18')
        a.e('s_waitcnt lgkmcnt(0)')
        for ji, (dk, blk0, nb) in enumerate(jobs):
            a.e(f's_add_u32 s17, s16, {dk}'); a.e('s_lshl_b32 s18, s17, 19'); a.e('s_lshr_b32 s19, s17, 13')
            for (dst, src) in ((20, 12), (24, 14)):
                a.e(f's_add_u32 s{dst}, s{src}, s18'); a.e(f's_addc_u32 s{dst+1}, s{src+1}, s19'); a.e(f's_mov_b32 s{dst+2}, 0x80000'); a.e(f's_mov_b32 s{dst+3}, 0x20000')
            a.e(f's_add_u32 s17, s{S_W8}, {blk0*32768}'); a.e(f's_mov_b32 s18, {nb}')
            a.label(f'L_pf{pfx}{ji}')
            a.e('s_add_u32 s19, s17, 4096')
            for srd in (20, 24):
                for so in (17, 19):
                    for i in range(4):
                        a.e(f'buffer_load_dwordx4 v[4:7], v{V_L16}, s[{srd}:{srd+3}], s{so} offen offset:{i*1024}{cfg.pf_flags}')
                    if cfg.pf_keep < 16: a.e(f's_waitcnt vmcnt({cfg.pf_keep})')
            a.e(f's_waitcnt vmcnt({min(cfg.pf_keep, 16)})')
            a.e('s_add_u32 s17, s17, 32768'); a.e('s_sub_u32 s18, s18, 1'); a.e('s_cmp_lg_u32 s18, 0'); a.e(f's_cbranch_scc1 L_pf{pfx}{ji}')
    if cfg.pf_blocks or cfg.pf_first:
        jobs = []
        if cfg.pf_first: jobs.append((0, 0, cfg.pf_first))
        if cfg.pf_blocks: jobs.append((16, 16 - cfg.pf_blocks, cfg.pf_blocks))
        prefetch(jobs, 'a')
    PREF[0] = prefetch
    sl0 = lambda n: n & 3
    PX, PWQ = SRD[2]['K'], SRD[2]['WQ']
    dma_x(PX, 0, 0, 'p'); dma_x(PX, 1, 1, 'p'); dma_wq(PWQ, 0, 2, S_RWP, 'p'); dma_wq(PWQ, 1, 3, S_RWP, 'p'); flush()
    qphase(PWQ, S_RWP, sl0,
           [lambda: dma_wq(SRD[1]['WQ'], 0, 2), lambda: dma_wq(SRD[1]['WQ'], 1, 3), None, None],
           lambda: (dma_x(SRD[1]['X'], 0, 0), dma_x(SRD[1]['X'], 1, 1)), pfx='p', count='A')
    build_u2()
    a.e(f's_cmp_lg_u32 s{S_W}, 0'); a.e('s_cbranch_scc1 L_nopub')
    for s_ in range(4):
        for qt in range(3):
            idx = s_*3 + qt
            if idx % 4 == 0: a.e(f's_mov_b32 s{S_T3}, {(idx//4)*4096}')
            a.e(f'buffer_store_dwordx4 {aq(qt, s_)}, v{V_L16}, s[{R_QI}:{R_QI+3}], s{S_T3} offen offset:{(idx%4)*1024} sc1')
    a.e('s_waitcnt vmcnt(0)')
    a.e('s_mov_b64 exec, 1'); a.e('v_mov_b32 v1, 0'); a.e('v_mov_b32 v2, 1')
    a.e(f'buffer_store_dword v2, v1, s[{R_FLG}:{R_FLG+3}], s{S_QF} offen sc1')
    a.e('s_mov_b64 exec, -1')
    a.label('L_nopub')
    stamp()
    if cfg.rotA: a.e(f's_mov_b32 s{S_ROT}, s{S_HH}')
    else: a.e(f's_mov_b32 s{S_ROT}, 0')
    unit(1, 'A')
    unit(2, 'A')
    a.e('s_branch L_final')
    a.label('L_progB')
    nst[0] = n0
    a.vm = []; assert not pend
    build_u2()
    a.e(f's_mov_b32 s{S_ROT}, 0')
    dma_x(SRD[1]['X'], 0, 0); dma_x(SRD[1]['X'], 1, 1); dma_wq(SRD[1]['WQ'], 0, 2); dma_wq(SRD[1]['WQ'], 1, 3); flush()
    stamp()
    unit(1, 'B')
    unit(2, 'B')
    a.label('L_final')
    a.c('================ final reduce')
    a.e('s_load_dwordx4 s[28:31], s[0:1], 80')
    a.e('s_load_dwordx2 s[32:33], s[0:1], 96')
    a.e(f's_lshl_b32 s{S_T}, s{S_W}, 6'); a.e(f'v_add_u32 v1, s{S_T}, v{V_LANE}')
    a.e(f's_bfe_u32 s{S_T+1}, s{S_FG[2]}, 0x50002'); a.e(f's_mul_i32 s{S_T+1}, s{S_T+1}, 192')
    a.e(f'v_add_u32 v3, s{S_T+1}, v1')
    a.e('v_lshlrev_b32 v2, 4, v3')
    a.e('v_lshrrev_b32 v5, 8, v3'); a.e('v_mul_u32_u24 v5, 21846, v5'); a.e('v_lshrrev_b32 v5, 16, v5')
    a.e('v_mul_u32_u24 v6, 768, v5'); a.e('v_sub_u32 v6, v3, v6')
    a.e('v_lshrrev_b32 v7, 6, v6'); a.e('v_and_b32 v8, 63, v6')
    a.e('v_lshrrev_b32 v9, 2, v7'); a.e('v_and_b32 v10, 3, v7')
    a.e('v_add_u32 v11, v5, v10'); a.e('v_lshlrev_b32 v11, 1, v11')
    a.e('v_and_b32 v12, 15, v8'); a.e('v_lshl_add_u32 v12, v9, 4, v12'); a.e('v_lshlrev_b32 v12, 11, v12')
    a.e('v_lshl_add_u32 v12, v5, 8, v12'); a.e('v_lshrrev_b32 v13, 4, v8'); a.e('v_lshl_add_u32 v12, v13, 3, v12')
    a.e('v_and_b32 v13, 7, v11'); a.e('v_lshl_add_u32 v13, v13, 5, v12')
    a.e('v_add_u32 v11, 1, v11'); a.e('v_and_b32 v11, 7, v11'); a.e('v_lshl_add_u32 v14, v11, 5, v12')
    a.e('s_waitcnt lgkmcnt(0)')
    a.e('s_mov_b32 s40, s30'); a.e('s_mov_b32 s41, s31'); a.e('s_mov_b32 s42, 256'); a.e('s_mov_b32 s43, 0x20000')
    a.e('v_mov_b32 v18, 0')
    a.e('buffer_load_dword v21, v18, s[40:43], 0 offen sc1')
    a.wait_vm_all()
    a.e('s_barrier')
    a.e('s_mov_b32 s36, s28'); a.e('s_mov_b32 s37, s29'); a.e('s_mov_b32 s38, 786432'); a.e('s_mov_b32 s39, 0x20000')
    a.e(f's_cmp_lg_u32 s{S_W}, 0'); a.e('s_cbranch_scc1 L_pd')
    a.e('s_mov_b64 exec, 1'); a.e('v_mov_b32 v15, 0'); a.e('v_mov_b32 v16, 1')
    a.e(f'buffer_store_dword v16, v15, s[{R_FLG}:{R_FLG+3}], s{S_FG[2]} offen sc1')
    a.e('s_mov_b64 exec, -1')
    stamp()
    a.e(f's_mov_b32 s{S_T+2}, 8000')
    a.label('L_cpoll')
    a.e(f'v_readfirstlane_b32 s{S_T+1}, v21'); a.e('s_nop 3')
    a.e(f's_cmp_eq_u32 s{S_T+1}, 256'); a.e('s_cbranch_scc1 L_cpok')
    a.e('s_sleep 2')
    a.e('buffer_load_dword v21, v18, s[40:43], 0 offen sc1'); a.e('s_waitcnt vmcnt(0)')
    a.e(f's_sub_u32 s{S_T+2}, s{S_T+2}, 1'); a.e(f's_cmp_lg_u32 s{S_T+2}, 0'); a.e('s_cbranch_scc1 L_cpoll')
    a.label('L_cpok')
    a.e(f'v_and_b32 v17, 15, v{V_LANE}'); a.e('v_lshlrev_b32 v17, 2, v17')
    a.e(f's_and_b32 s{S_T+1}, s{S_FG[2]}, -128'); a.e(f's_mov_b32 s{S_T+2}, 8000')
    a.label('L_poll')
    a.e(f'buffer_load_dword v20, v17, s[{R_FLG}:{R_FLG+3}], s{S_T+1} offen sc1')
    a.e('s_waitcnt vmcnt(0)')
    a.e('v_cmp_eq_u32 vcc, 1, v20')
    a.e('s_nop 1')
    a.e('s_cmp_eq_u64 vcc, -1'); a.e('s_cbranch_scc1 L_pd')
    a.e(f's_sub_u32 s{S_T+2}, s{S_T+2}, 1'); a.e(f's_cmp_lg_u32 s{S_T+2}, 0'); a.e('s_cbranch_scc1 L_poll')
    a.label('L_pd')
    a.e('s_barrier')
    stamp()
    a.e(f's_cmp_eq_u32 s{S_W}, 3'); a.e('s_cbranch_scc1 L_rd')
    a.e(f's_lshr_b32 s{S_T}, s{S_FG[2]}, 7')
    a.e(f's_mul_i32 s{S_T+1}, s{S_T}, 786432')
    a.e(f's_add_u32 s44, s32, s{S_T+1}'); a.e('s_addc_u32 s45, s33, 0'); a.e('s_mov_b32 s46, 786432'); a.e('s_mov_b32 s47, 0x20000')
    for h in range(16):
        a.e(f's_mov_b32 s48, {h*49152}')
        a.e(f'buffer_load_dwordx4 v[{48+4*h}:{51+4*h}], v2, s[44:47], s48 offen sc1')
    a.e(f's_and_b32 s49, s{S_T}, 7'); a.e('s_mul_i32 s49, s49, 98304'); a.e(f's_lshr_b32 s50, s{S_T}, 3'); a.e('s_lshl_b32 s50, s50, 10'); a.e('s_add_u32 s49, s49, s50')
    for i in range(8): a.e(f'v_mov_b32 v{20+i}, 0')
    for h in range(16):
        a.e(f's_waitcnt vmcnt({15-h})')
        for d in range(4):
            r = 48 + 4*h + d
            a.e(f'v_lshlrev_b32 v28, 16, v{r}'); a.e(f'v_and_b32 v29, 0xffff0000, v{r}')
            a.e(f'v_add_f32 v{20+2*d}, v{20+2*d}, v28'); a.e(f'v_add_f32 v{21+2*d}, v{21+2*d}, v29')
    a.e('v_cvt_pk_bf16_f32 v30, v20, v21'); a.e('v_cvt_pk_bf16_f32 v31, v22, v23')
    a.e('v_cvt_pk_bf16_f32 v32, v24, v25'); a.e('v_cvt_pk_bf16_f32 v33, v26, v27')
    a.e(f'buffer_store_dwordx2 v[30:31], v13, s[36:39], s49 offen{cfg.out_flags}')
    a.e(f'buffer_store_dwordx2 v[32:33], v14, s[36:39], s49 offen{cfg.out_flags}')
    a.label('L_rd')
    a.e('s_waitcnt vmcnt(0)')
    if cfg.stamps:
        stamp()
        a.e('s_memtime s[98:99]'); a.e('s_memrealtime s[100:101]'); a.e('s_waitcnt lgkmcnt(0)')
        a.e('v_mov_b32 v252, s98'); a.e('v_mov_b32 v253, s100')
        a.e('v_readfirstlane_b32 s2, v251')
        a.e('s_add_u32 s32, s32, 0x4000000'); a.e('s_addc_u32 s33, s33, 0'); a.e('s_mov_b32 s34, 0x100000'); a.e('s_mov_b32 s35, 0x20000')
        a.e('s_nop 3')
        a.e(f's_lshl_b32 s94, s2, 2'); a.e(f's_add_u32 s94, s94, s{S_W}'); a.e('s_lshl_b32 s94, s94, 7')
        a.e('v_mov_b32 v1, 0')
        a.e(f'buffer_store_dword v255, v1, s[32:35], s94 offen')
        a.e(f'buffer_store_dwordx4 v[252:255], v1, s[32:35], s94 offen offset:96')
        for i in range(nst[0]):
            a.e(f'v_mov_b32 v2, s{STAMP0+i}')
            a.e(f'buffer_store_dword v2, v1, s[32:35], s94 offen offset:{4*i+4}')
            a.e('s_nop 1')
        a.e('s_waitcnt vmcnt(0)')
    a.label('L_end')
    a.e('s_endpgm')
    for buf in (0, 1):
        a.label(f'L_rescale{buf}')
        t = TMP
        allreduce3([TMP+qt for qt in range(3)], 'v_max_f32')
        for qt in range(3): a.e(f'v_max_f32 v{t+qt}, s{S_FLOOR}, v{t+qt}')
        for qt in range(3):
            a.e(f'v_add_f32 v{M_(qt)}, v{M_(qt)}, v{t+qt}')
            a.e(f'v_max_f32 v{t+4+qt}, 0, v{t+qt}')
            a.e(f'v_sub_f32 v{t+4+qt}, 0, v{t+4+qt}')
        for qt in range(3): a.e(f'v_exp_f32 v{t+4+qt}, v{t+4+qt}')
        for kt in range(2):
            for qt in range(3):
                for r in range(4):
                    x = Sreg(buf, kt, qt) + r
                    a.e(f'v_sub_f32 v{x}, v{x}, v{t+qt}')
        for qt in range(3): a.e(f'v_mul_f32 v{L_(qt)}, v{L_(qt)}, v{t+4+qt}')
        for tau in range(8):
            for qt in range(3):
                for r in range(4):
                    x = Oreg(tau, qt) + r
                    a.e(f'v_mul_f32 v{x}, v{x}, v{t+4+qt}')
        a.e(f's_mov_b32 s{S_THR}, {f32bits(cfg.thr):#x}'); a.e(f's_mov_b32 s{S_FLOOR}, 0')
        a.e(f's_setpc_b64 s[{S_RET}:{S_RET+1}]')

    a.e('.section .rodata,"a"')
    a.e('.p2align 6'); a.e(f'.amdhsa_kernel {KN}')
    a.e('  .amdhsa_next_free_vgpr 512'); a.e('  .amdhsa_next_free_sgpr 102'); a.e('  .amdhsa_accum_offset 256')
    a.e('  .amdhsa_group_segment_fixed_size 0'); a.e('  .amdhsa_kernarg_size 104'); a.e('  .amdhsa_user_sgpr_count 2')
    a.e('  .amdhsa_user_sgpr_kernarg_segment_ptr 1'); a.e('  .amdhsa_system_sgpr_workgroup_id_x 1')
    a.e('  .amdhsa_float_denorm_mode_32 3'); a.e('  .amdhsa_float_denorm_mode_16_64 3')
    a.e('.end_amdhsa_kernel')
    probs = check(a.L)
    for (s0, s1) in loops: probs += check(a.L[s0:s1] + a.L[s0:s1])
    return a.text(), probs, nst[0]

if __name__ == '__main__':
    cfg = Cfg()
    for kv in sys.argv[2:]:
        k, v = kv.split('=', 1); setattr(cfg, k, eval(v))
    txt, probs, n = gen(cfg)
    for p in probs: print('HAZARD', p)
    open(sys.argv[1], 'w').write(txt)
    print('written', sys.argv[1], len(txt), 'stamps', n)
```

```python
import sys, struct, math
from asmlib import Asm, check

KN = 'concat_heads__gqa_block_cached__mha_block_cached__near_ridge_kernel'

V_LANE = 0
TRA = 16; KA = 24; DE, DO = 28, 29; ML = 30
def M_(qt): return ML + 2*qt
def L_(qt): return ML + 2*qt + 1
TMP = 36; S0 = 48; S1 = 72; P = 96; XT = 108; O = 120
IN = 48
QE, QO, OE, OO = 216, 217, 218, 219
V_L16, V_XB, V_ST = 220, 221, 222
ML2 = 224
OT = 230
def Oreg(tau, qt): return O + (tau*3 + qt)*4
def Sreg(buf, kt, qt): return (S0 if buf == 0 else S1) + (kt*3 + qt)*4
AQ, AX, AK, AV, ASAVE = 0, 48, 96, 128, 160
AQ2, AO2 = 48, 160
def ar(b, n): return f'a[{b}:{b+n-1}]'
def aq(qt, s): return ar(AQ + (qt*4 + s)*4, 4)
def ax(qt, s): return ar(AX + (qt*4 + s)*4, 4)
def vr(b, n): return f'v[{b}:{b+n-1}]' if n > 1 else f'v{b}'
R_FLG = 4
S_FG = {1: 8, 2: 9}
S_ISA = {1: 10, 2: 11}
STAMP0 = 12
SRD = {1: dict(K=28, V=32, WQ=36, X=40, WO=44, PT=48), 2: dict(K=52, V=56, WQ=60, X=64, WO=68, PT=72)}
S_W, S_LB, S_OFF, S_T = 76, 77, 78, 79
S_CNT, S_THR, S_FLOOR, S_C, S_RET = 86, 87, 88, 89, 90
S_WQO, S_XO, S_T2, S_T3, S_STEP, S_ROT, S_T4, S_W8 = 92, 93, 94, 95, 96, 97, 98, 99
S_HH = 3
S_THR2, S_FLOOR2 = 11, 48
S_KD = 48
S_RWP = 49
R_DBGK = 50
S_RW = 2
S_WB = 85
AUX = 131072
FLG_OFF = 0x2000000
QFLG = 4096
OFLG = 16384
MIMG_OFF = 0x2300000
QIMG_OFF = 0x2100000
R_QI = 64
S_QF = 8

class Cfg:
    afirst = 0x55
    flA = ''
    flBK = ' nt'; flBV = ' nt'
    rotA = True
    rotW = True
    nt_w = False
    thr = 8.0
    st_flags = ' sc1'
    stamps = False
    fine = None
    dynflags = True
    late_st = True
    st_in_exch = True
    kv0_late = True
    fastpoll = True
    out_flags = ''
    rw_mode = 0
    pf_blocks = 0
    pf_flags = ''
    fake_joint = 0
    setup_stamp = False
    bb2_def = False
    dbuf = True
    early_stats = True
    aa_q2_first = False
    mini = 4
    rot_shift = 1
    rot_mode = 0
    stage_bb = False
    pf_keep = 16
    pf_first = 5

def f32bits(x): return struct.unpack('<I', struct.pack('<f', x))[0]

def gen(cfg=Cfg()):
    a = Asm()
    a.e(f'; @launch grid=(256,1,1) block=(256,1,1) lds=163840')
    for ln in (
        'Fused GQA (A) + MHA (B) attention blocks, one workgroup (4 waves) per CU, generated by a hand-written script.',
        'WG id: x8 = id&7, t = id>>3.  t<16: "AA" program (two A heads of one batch), else "BB" program (two B heads of one batch).',
        'Everything is computed transposed (Q^T = Wq^T x^T, S^T = K Q^T, O^T = V^T P^T, out^T = Wo^T O^T) with 16x16x32 bf16 MFMA;',
        'each wave streams its own keys (blocks of 32) through a private 4-slot LDS ring filled by LDS-DMA (source-swizzled rows),',
        'online softmax with the running max (deferred rescale, run-time checked), cross-wave combine through LDS,',
        'per-WG out-projection partials (bf16) in d_ws, final sum by the workgroups of each (branch,batch) group behind flags.',
        'AA workgroups also compute the second Q projection of their BB partner and prefetch its first K/V blocks.',
        'Hand-offs: sc1 stores -> vmcnt(0) -> flag; flags live in d_ws and are trusted only after the d_debug counter shows all were cleared.'):
        a.e('; ' + ln)
    a.e('.amdgcn_target "amdgcn-amd-amdhsa--gfx950"')
    a.e('.text')
    a.e(f'.globl {KN}'); a.e('.p2align 8'); a.e(f'.type {KN},@function'); a.label(KN)
    a.e('s_cmp_ge_u32 s2, 256'); a.e('s_cbranch_scc1 L_end')
    nst = [0]
    fon = [False]
    def fs():
        if not (cfg.fine and fon[0]): return
        a.e('s_memrealtime s[100:101]'); a.e('s_waitcnt lgkmcnt(0)'); a.e(f's_mov_b32 s{STAMP0+nst[0]}, s100'); nst[0] += 1
        assert nst[0] <= 16
    def stamp():
        if cfg.fine or not cfg.stamps: return
        a.e('s_memrealtime s[100:101]'); a.e('s_waitcnt lgkmcnt(0)'); a.e(f's_mov_b32 s{STAMP0+nst[0]}, s100'); nst[0] += 1
        assert nst[0] <= 16
    if cfg.stamps:
        a.e('s_memrealtime s[100:101]'); a.e('s_waitcnt lgkmcnt(0)'); a.e('v_mov_b32 v255, s100')
        a.e('s_memtime s[100:101]'); a.e('s_waitcnt lgkmcnt(0)'); a.e('v_mov_b32 v254, s100')
        a.e('v_mov_b32 v223, s2')
    a.e('s_load_dwordx16 s[12:27], s[0:1], 0')
    a.e('s_load_dwordx4 s[84:87], s[0:1], 64')
    a.e('s_load_dwordx4 s[88:91], s[0:1], 88')
    a.e(f'v_lshrrev_b32 v1, 6, v0')
    a.e(f'v_and_b32 v{V_LANE}, 63, v0')
    a.e(f'v_readfirstlane_b32 s{S_W}, v1')
    a.e(f'v_and_b32 v2, 15, v{V_LANE}'); a.e(f'v_lshrrev_b32 v3, 4, v{V_LANE}')
    a.e(f'v_lshlrev_b32 v{V_L16}, 4, v{V_LANE}')
    a.e(f's_lshl_b32 s{S_LB}, s{S_W}, 15')
    a.e('v_lshlrev_b32 v4, 1, v3'); a.e('v_xor_b32 v4, v2, v4'); a.e('v_lshlrev_b32 v4, 4, v4')
    a.e(f'v_lshl_add_u32 v{DE}, v3, 8, v4'); a.e(f'v_xor_b32 v{DO}, 0x80, v{DE}')
    a.e(f'v_lshl_add_u32 v{QE}, v3, 13, v4'); a.e(f'v_xor_b32 v{QO}, 0x80, v{QE}')
    a.e(f'v_lshl_add_u32 v{OE}, v3, 10, v4'); a.e(f'v_xor_b32 v{OO}, 0x80, v{OE}')
    a.e('v_and_b32 v5, 7, v2'); a.e('v_lshlrev_b32 v5, 1, v5')
    a.e('v_xor_b32 v6, v3, v5'); a.e('v_lshlrev_b32 v6, 4, v6')
    a.e('v_lshl_add_u32 v6, v2, 8, v6'); a.e(f'v_add_u32 v{KA}, s{S_LB}, v6')
    for s in range(1, 4): a.e(f'v_xor_b32 v{KA+s}, {s<<6}, v{KA}')
    a.e('v_lshrrev_b32 v6, 1, v3'); a.e('v_xor_b32 v6, v6, v5'); a.e('v_lshlrev_b32 v6, 4, v6')
    a.e('v_and_b32 v7, 1, v3'); a.e('v_lshl_add_u32 v6, v7, 3, v6')
    a.e('v_lshl_add_u32 v6, v2, 8, v6'); a.e(f'v_add_u32 v{V_XB}, s{S_LB}, v6')
    a.e('v_lshrrev_b32 v6, 2, v2'); a.e('v_lshl_add_u32 v6, v3, 2, v6')
    a.e('v_and_b32 v7, 7, v6'); a.e('v_lshlrev_b32 v7, 1, v7')
    a.e('v_bfe_u32 v8, v2, 1, 1'); a.e('v_xor_b32 v7, v8, v7'); a.e('v_lshlrev_b32 v7, 4, v7')
    a.e('v_and_b32 v8, 1, v2'); a.e('v_lshl_add_u32 v7, v8, 3, v7')
    a.e('v_lshl_add_u32 v7, v6, 8, v7'); a.e(f'v_add_u32 v7, s{S_LB}, v7')
    a.e(f's_lshl_b32 s{S_T}, s{S_W}, 1')
    for tau in range(8):
        a.e(f's_add_u32 s{S_T+1}, s{S_T}, {tau}'); a.e(f's_and_b32 s{S_T+1}, s{S_T+1}, 7'); a.e(f's_lshl_b32 s{S_T+1}, s{S_T+1}, 5')
        a.e(f'v_xor_b32 v{TRA+tau}, s{S_T+1}, v7')
    a.e(f's_mul_i32 s{S_T}, s{S_W}, 12288'); a.e(f'v_add_u32 v{V_ST}, s{S_T}, v{V_L16}')
    a.e(f's_lshl_b32 s{S_W8}, s{S_W}, 13')
    a.e('s_and_b32 s79, s2, 7'); a.e('s_lshr_b32 s80, s2, 3')
    a.e('s_and_b32 s94, s80, 15'); a.e('s_lshl_b32 s95, s79, 4'); a.e('s_add_u32 s95, s95, s94')
    a.e('s_lshr_b32 s92, s94, 1'); a.e('s_and_b32 s93, s94, 1'); a.e('s_lshl_b32 s96, s79, 1'); a.e('s_add_u32 s93, s93, s96')
    a.e('s_cmp_lt_u32 s80, 16'); a.e(f's_cselect_b32 s{S_ISA[1]}, 1, 0'); a.e(f's_mov_b32 s{S_ISA[2]}, s{S_ISA[1]}')
    a.e('s_cbranch_scc0 L_idB')
    a.e('s_lshr_b32 s81, s80, 1'); a.e(f's_and_b32 s{S_HH}, s80, 1')
    a.e('s_lshl_b32 s83, s79, 2'); a.e(f's_lshl_b32 s97, s{S_HH}, 1'); a.e('s_add_u32 s83, s83, s97')
    a.e('s_lshl_b32 s96, s81, 3'); a.e('s_add_u32 s79, s96, s79')
    a.e('s_branch L_iddone')
    a.label('L_idB')
    a.e('s_mov_b32 s81, s92'); a.e('s_mov_b32 s83, s93'); a.e(f's_mov_b32 s{S_HH}, 0')
    a.e('s_lshl_b32 s79, s81, 5'); a.e('s_add_u32 s79, s79, s83')
    a.label('L_iddone')
    if cfg.rotW: a.e(f's_and_b32 s{S_RW}, s81, 3')
    else: a.e(f's_mov_b32 s{S_RW}, 0')
    a.e('s_waitcnt lgkmcnt(0)')
    R = SRD[1]; R2 = SRD[2]
    a.e(f's_cmp_eq_u32 s{S_ISA[1]}, 1')
    for name, pa, pb in (('X', 12, 22), ('K', 14, 24), ('V', 16, 26), ('WQ', 18, 84), ('WO', 20, 86)):
        r = R[name]
        a.e(f's_cselect_b32 s{r}, s{pa}, s{pb}'); a.e(f's_cselect_b32 s{r+1}, s{pa+1}, s{pb+1}')
    a.e('s_mov_b32 s80, 0x800000'); a.e('s_cselect_b32 s80, 0, s80')
    a.e('s_lshl_b32 s96, s79, 19'); a.e('s_lshr_b32 s97, s79, 13')
    for name in ('K', 'V'):
        r = R[name]
        a.e(f's_add_u32 s{r}, s{r}, s96'); a.e(f's_addc_u32 s{r+1}, s{r+1}, s97')
        a.e(f's_mov_b32 s{r+2}, 0x80000'); a.e(f's_mov_b32 s{r+3}, 0x20000')
    r = R['X']; a.e('s_mul_i32 s96, s81, 49152')
    a.e(f's_add_u32 s{r}, s{r}, s96'); a.e(f's_addc_u32 s{r+1}, s{r+1}, 0'); a.e(f's_mov_b32 s{r+2}, 49152'); a.e(f's_mov_b32 s{r+3}, 0x20000')
    r = R['WQ']; a.e('s_lshl_b32 s96, s83, 8')
    a.e(f's_add_u32 s{r}, s{r}, s96'); a.e(f's_addc_u32 s{r+1}, s{r+1}, 0'); a.e(f's_sub_u32 s{r+2}, 0x400000, s96'); a.e(f's_mov_b32 s{r+3}, 0x20000')
    r = R['WO']; a.e('s_lshl_b32 s96, s83, 17')
    a.e(f's_add_u32 s{r}, s{r}, s96'); a.e(f's_addc_u32 s{r+1}, s{r+1}, 0'); a.e(f's_mov_b32 s{r+2}, 0x20000'); a.e(f's_mov_b32 s{r+3}, 0x20000')
    r = R2['V']; r1 = R['V']
    a.e(f's_add_u32 s{r}, s{r1}, s80'); a.e(f's_addc_u32 s{r+1}, s{r1+1}, 0'); a.e(f's_mov_b32 s{r+2}, 0x80000'); a.e(f's_mov_b32 s{r+3}, 0x20000')
    r = R2['WO']; r1 = R['WO']
    a.e(f's_cmp_eq_u32 s{S_ISA[1]}, 1'); a.e('s_mov_b32 s96, 0x200000'); a.e('s_cselect_b32 s96, 0x20000, s96')
    a.e(f's_add_u32 s{r}, s{r1}, s96'); a.e(f's_addc_u32 s{r+1}, s{r1+1}, 0'); a.e(f's_mov_b32 s{r+2}, 0x20000'); a.e(f's_mov_b32 s{r+3}, 0x20000')
    a.e(f's_mov_b32 s{S_KD}, s80')
    r = R2['K']; a.e('s_mul_i32 s96, s92, 49152')
    a.e(f's_add_u32 s{r}, s22, s96'); a.e(f's_addc_u32 s{r+1}, s23, 0'); a.e(f's_mov_b32 s{r+2}, 49152'); a.e(f's_mov_b32 s{r+3}, 0x20000')
    r = R2['WQ']; a.e('s_add_u32 s96, s93, 16'); a.e('s_lshl_b32 s96, s96, 8')
    a.e(f's_add_u32 s{r}, s84, s96'); a.e(f's_addc_u32 s{r+1}, s85, 0'); a.e(f's_sub_u32 s{r+2}, 0x400000, s96'); a.e(f's_mov_b32 s{r+3}, 0x20000')
    a.e(f's_and_b32 s{S_RWP}, s92, 3')
    a.e('s_mul_i32 s96, s95, 12288'); a.e(f's_add_u32 s96, s96, {QIMG_OFF:#x}')
    a.e(f's_add_u32 s{R_QI}, s90, s96'); a.e(f's_addc_u32 s{R_QI+1}, s91, 0'); a.e(f's_mov_b32 s{R_QI+2}, 12288'); a.e(f's_mov_b32 s{R_QI+3}, 0x20000')
    a.e(f's_lshl_b32 s96, s95, 7'); a.e(f's_add_u32 s{S_QF}, s96, {QFLG}')
    a.e('s_lshr_b32 s97, s83, 1')
    a.e(f's_cmp_eq_u32 s{S_ISA[1]}, 1'); a.e('s_cselect_b32 s94, 0, 8'); a.e('s_cselect_b32 s83, s97, s83'); a.e('s_add_u32 s94, s94, s81')
    r = SRD[2]['PT']; a.e('s_lshl_b32 s93, s94, 4'); a.e('s_add_u32 s93, s93, s83'); a.e('s_mul_i32 s96, s93, 49152')
    a.e(f's_add_u32 s{r}, s90, s96'); a.e(f's_addc_u32 s{r+1}, s91, 0'); a.e(f's_mov_b32 s{r+2}, 49152'); a.e(f's_mov_b32 s{r+3}, 0x20000')
    a.e('s_lshl_b32 s94, s94, 7'); a.e('s_lshl_b32 s96, s83, 2'); a.e(f's_add_u32 s{S_FG[2]}, s94, s96')
    a.e(f's_add_u32 s{R_FLG}, s90, {FLG_OFF:#x}'); a.e(f's_addc_u32 s{R_FLG+1}, s91, 0'); a.e(f's_mov_b32 s{R_FLG+2}, 36864'); a.e(f's_mov_b32 s{R_FLG+3}, 0x20000')
    a.e(f's_lshl_b32 s{S_WQO}, s{S_W}, 20'); a.e(f's_lshl_b32 s{S_XO}, s{S_W}, 8')
    a.e('s_mov_b32 s80, s88'); a.e('s_mov_b32 s81, s89'); a.e('s_mov_b32 s82, 256'); a.e('s_mov_b32 s83, 0x20000')
    a.e(f's_mov_b32 s{R_DBGK}, s88'); a.e(f's_mov_b32 s{R_DBGK+1}, s89')
    a.e(f's_mov_b32 s{S_C}, {f32bits(math.log2(math.e) / math.sqrt(128.0)):#x}')
    a.e(f's_cmp_lg_u32 s{S_W}, 0'); a.e('s_cbranch_scc1 L_noclear')
    a.e('s_mov_b64 exec, 1'); a.e('v_mov_b32 v1, 0')
    a.e(f'buffer_store_dword v1, v1, s[{R_FLG}:{R_FLG+3}], s{S_FG[2]} offen sc1')
    a.e(f's_cmp_eq_u32 s{S_ISA[1]}, 0'); a.e('s_cbranch_scc1 L_noclear2')
    a.e(f'buffer_store_dword v1, v1, s[{R_FLG}:{R_FLG+3}], s{S_QF} offen sc1')
    a.e(f'v_mov_b32 v2, {OFLG}')
    a.e(f'buffer_store_dword v1, v2, s[{R_FLG}:{R_FLG+3}], s{S_QF} offen sc1')
    a.label('L_noclear2')
    a.e('s_mov_b64 exec, -1')
    a.label('L_noclear')

    ntw = ' nt' if cfg.nt_w else ''
    pend = []
    def pump(n=1):
        for _ in range(n):
            if not pend: return
            tag, th = pend.pop(0); th()
    def flush(): pump(len(pend))
    def wait_vm(tag):
        while any(t == tag for t, _ in pend): pump()
        a.wait_vm(tag)
    DYN = 'DYN'
    dynid = [0]
    def dma(tag, srd, slot, vE, vO, RS, sbase, const, npieces=8, flags='', pre=None, dyn=None):
        for p in range(npieces):
            def th(p=p):
                if p == 0 and pre: pre()
                if p % 4 == 0: a.e(f's_add_u32 m0, s{S_LB}, {slot*8192 + (p//4)*4096}')
                off = const + p*4*RS - (p & 3)*1024
                if RS == 256:
                    if p % 4 == 0: a.e(f's_add_u32 s{S_T2}, s{sbase}, {off}')
                else:
                    a.e(f's_add_u32 s{S_T2}, s{sbase}, {off}')
                v = vE if p % 2 == 0 else vO
                if dyn is None:
                    a.vmop(tag, f'buffer_load_dwordx4 v{v}, s[{srd}:{srd+3}], s{S_T2} offen offset:{(p&3)*1024}{flags} lds')
                else:
                    isa, fa, fb = dyn
                    k = dynid[0]; dynid[0] += 1
                    a.e(f's_cmp_eq_u32 s{isa}, 0'); a.e(f's_cbranch_scc1 L_dyb{k}')
                    a.e(f'buffer_load_dwordx4 v{v}, s[{srd}:{srd+3}], s{S_T2} offen offset:{(p&3)*1024}{fa} lds')
                    a.e(f's_branch L_dye{k}'); a.label(f'L_dyb{k}')
                    a.vmop(tag, f'buffer_load_dwordx4 v{v}, s[{srd}:{srd+3}], s{S_T2} offen offset:{(p&3)*1024}{fb} lds')
                    a.label(f'L_dye{k}')
            pend.append((tag, th))
    def regload(tag, srd, regbase, sbase, flags, pre):
        for p in range(8):
            def th(p=p):
                if p == 0 and pre: pre()
                if p % 4 == 0: a.e(f's_add_u32 s{S_T2}, s{sbase}, {(p//4)*4096}')
                v = DE if p % 2 == 0 else DO
                a.vmop(tag, f'buffer_load_dwordx4 {ar(regbase+4*p, 4)}, v{v}, s[{srd}:{srd+3}], s{S_T2} offen offset:{(p&3)*1024}{flags}')
            pend.append((tag, th))
    def commit(regbase, slot):
        a.e(f'v_add_u32 v{TMP+11}, s{S_LB}, v{V_L16}')
        for p in range(8):
            a.e(f'ds_write_b128 v{TMP+11}, {ar(regbase+4*p, 4)} offset:{slot*8192+p*1024}')
    def dma_kv(n, u, which, slot, fl, reg=None):
        pre = None
        if which == 'K':
            def pre():
                a.e(f's_add_u32 s{S_T4}, s{S_STEP}, s{S_ROT}'); a.e(f's_and_b32 s{S_T4}, s{S_T4}, 3')
                a.e(f's_and_b32 s{S_OFF}, s{S_STEP}, -4'); a.e(f's_or_b32 s{S_OFF}, s{S_OFF}, s{S_T4}')
                a.e(f's_lshl_b32 s{S_OFF}, s{S_OFF}, 15'); a.e(f's_add_u32 s{S_OFF}, s{S_OFF}, s{S_W8}')
                a.e(f's_add_u32 s{S_STEP}, s{S_STEP}, 1')
            dyn = None
            if fl == DYN:
                fl = ''
                if cfg.dynflags and cfg.flA != cfg.flBK: dyn = (S_ISA[u], cfg.flA, cfg.flBK)
            if reg is not None: regload(f'R{reg}', SRD[u]['K'], reg, S_OFF, fl, pre)
            else: dma(f'K{n&1}', SRD[u]['K'], slot, DE, DO, 256, S_OFF, 0, flags=fl, pre=pre, dyn=dyn)
        else:
            def pre():
                a.e(f's_add_u32 s{S_T4}, s{S_VSTEP}, s{S_ROT}'); a.e(f's_and_b32 s{S_T4}, s{S_T4}, 3')
                a.e(f's_and_b32 s{S_OFFV}, s{S_VSTEP}, -4'); a.e(f's_or_b32 s{S_OFFV}, s{S_OFFV}, s{S_T4}')
                a.e(f's_lshl_b32 s{S_OFFV}, s{S_OFFV}, 15'); a.e(f's_add_u32 s{S_OFFV}, s{S_OFFV}, s{S_W8}')
                a.e(f's_add_u32 s{S_VSTEP}, s{S_VSTEP}, 1')
            dyn = None
            if fl == DYN:
                fl = ''
                if cfg.dynflags and cfg.flA != cfg.flBV: dyn = (S_ISA[u], cfg.flA, cfg.flBV)
            if reg is not None: regload(f'R{reg}', SRD[u]['V'], reg, S_OFFV, fl, pre)
            else: dma(f'V{n&1}', SRD[u]['V'], slot, DE, DO, 256, S_OFFV, 0, flags=fl, pre=pre, dyn=dyn)
    S_VSTEP, S_OFFV = 84, 83
    def rot_pre(j, base_sgpr, shift, rw=S_RW):
        def pre():
            a.e(f's_add_u32 s{S_WB}, s{rw}, {j}'); a.e(f's_and_b32 s{S_WB}, s{S_WB}, 3'); a.e(f's_lshl_b32 s{S_WB}, s{S_WB}, {shift}')
            a.e(f's_add_u32 s{S_WB}, s{S_WB}, s{base_sgpr}')
        return pre
    def dma_x(srd, part, slot, pfx=''): dma(f'{pfx}X{part}', srd, slot, OE, OO, 1024, S_XO, part*32*1024, npieces=8 if part == 0 else 4, flags=ntw)
    def dma_wq(srd, j, slot, rw=S_RW, pfx=''): dma(f'{pfx}W{j}', srd, slot, QE, QO, 8192, S_WB, 0, flags=ntw, pre=rot_pre(j, S_WQO, 18, rw))
    def dma_wo(u, s, slot): dma(f'WO{s}', SRD[u]['WO'], slot, OE, OO, 1024, S_WB, 0, flags=ntw, pre=rot_pre(s, S_XO, 15))

    def tr_reads(slot, buf=AV):
        for tau in range(8):
            a.e(f'ds_read_b64_tr_b16 {ar(buf+4*tau, 2)}, v{TRA+tau} offset:{slot*8192}')
            a.e(f'ds_read_b64_tr_b16 {ar(buf+4*tau+2, 2)}, v{TRA+tau} offset:{slot*8192+4096}')
    def k_reads(slot):
        for s in range(4):
            for kt in range(2):
                a.e(f'ds_read_b128 {ar(AK+(s*2+kt)*4, 4)}, v{KA+s} offset:{slot*8192+kt*4096}')
    def pv_mfmas(bfrag, first, buf=AV, acc2=False):
        out = []
        for tau in range(8):
            for qt in range(3):
                d = ar(AO2 + (tau*3+qt)*4, 4) if acc2 else vr(Oreg(tau, qt), 4)
                out.append(f'v_mfma_f32_16x16x32_bf16 {d}, {ar(buf+4*tau, 4)}, {bfrag(qt)}, {"0" if first else d}')
        return out
    def qk_mfmas(buf, qbase=AQ):
        out = []
        for s in range(4):
            for kt in range(2):
                for qt in range(3):
                    d = vr(Sreg(buf, kt, qt), 4)
                    out.append(f'v_mfma_f32_16x16x32_bf16 {d}, {ar(AK+(s*2+kt)*4, 4)}, {ar(qbase+(qt*4+s)*4, 4)}, {"0" if s == 0 else d}')
        return out
    def pvw(slot, bfrag, first, after_reads):
        tr_reads(slot)
        a.e('s_waitcnt lgkmcnt(0)')
        if after_reads: after_reads()
        for i, m in enumerate(pv_mfmas(bfrag, first)):
            a.e(m)
            if i % 3 == 2: pump()
    def proj(steps):
        if not cfg.dbuf:
            for tag, slot, bfrag, first, after in steps:
                wait_vm(tag); pvw(slot, bfrag, first, after)
            return
        bufs = [AV, AK]
        wait_vm(steps[0][0]); tr_reads(steps[0][1], bufs[0])
        for i, (tag, slot, bfrag, first, after) in enumerate(steps):
            a.e('s_waitcnt lgkmcnt(0)')
            if after: after()
            for k, m in enumerate(pv_mfmas(bfrag, first, bufs[i & 1])):
                a.e(m)
                if k % 3 == 2: pump()
                if k == 8 and i + 1 < len(steps):
                    wait_vm(steps[i+1][0]); tr_reads(steps[i+1][1], bufs[(i+1) & 1])
    def interleave(mf, va, extras):
        tot = sum(c for c, _ in va)
        n = len(mf); done = 0; vi = 0
        if n == 0:
            for c, s_ in va: a.e(s_)
            for k in sorted(extras): extras[k]()
            return
        for i, m in enumerate(mf):
            a.e(m)
            target = tot * (i + 1) / n
            while vi < len(va) and done + va[vi][0] / 2 <= target:
                a.e(va[vi][1]); done += va[vi][0]; vi += 1
            if i in extras: extras[i]()
        while vi < len(va): a.e(va[vi][1]); vi += 1
    def sm_exp_cvt(buf):
        va = []
        def exps(qt):
            for kt in range(2):
                for r in range(4):
                    x = Sreg(buf, kt, qt) + r; va.append((8, f'v_exp_f32 v{x}, v{x}'))
        def cvts(qt):
            for kt in range(2):
                x = Sreg(buf, kt, qt)
                va.append((4, f'v_cvt_pk_bf16_f32 v{P+qt*4+kt*2}, v{x}, v{x+1}'))
                va.append((4, f'v_cvt_pk_bf16_f32 v{P+qt*4+kt*2+1}, v{x+2}, v{x+3}'))
        exps(0); exps(1); cvts(0); exps(2); cvts(1); cvts(2)
        return va
    def sm_adds(buf, ml=ML):
        va = []
        for kt in range(2):
            for r in range(4):
                for qt in range(3):
                    va.append((4, f'v_add_f32 v{ml+2*qt+1}, v{ml+2*qt+1}, v{Sreg(buf, kt, qt)+r}'))
        return va
    def sm_first(buf, ml=ML):
        va = []
        for kt in range(2):
            for qt in range(3):
                for r in range(4):
                    x = Sreg(buf, kt, qt) + r
                    va.append((4, f'v_fma_f32 v{x}, v{x}, s{S_C}, -v{ml+2*qt}'))
        for qt in range(3):
            r0 = Sreg(buf, 0, qt); va.append((4, f'v_max3_f32 v{TMP+qt}, v{r0}, v{r0+1}, v{r0+2}'))
        for qt in range(3):
            r0 = Sreg(buf, 0, qt); r1 = Sreg(buf, 1, qt); va.append((4, f'v_max3_f32 v{TMP+qt}, v{TMP+qt}, v{r0+3}, v{r1}'))
        for qt in range(3):
            r1 = Sreg(buf, 1, qt); va.append((4, f'v_max3_f32 v{TMP+qt}, v{TMP+qt}, v{r1+1}, v{r1+2}'))
        for qt in range(3):
            r1 = Sreg(buf, 1, qt); va.append((4, f'v_max_f32 v{TMP+qt}, v{TMP+qt}, v{r1+3}'))
        va.append((4, f'v_max3_f32 v{TMP+3}, v{TMP}, v{TMP+1}, v{TMP+2}'))
        return va
    site = [0]
    def sm_check(buf, joint=False):
        thr = S_THR2 if (joint and buf == 1) else S_THR
        a.e(f'v_cmp_lt_f32 vcc, s{thr}, v{TMP+3}')
        k = site[0]; site[0] += 1
        a.e(f's_cbranch_vccz L_fast{k}')
        a.e(f's_call_b64 s[{S_RET}:{S_RET+1}], L_rescale{"J1" if (joint and buf == 1) else buf}')
        a.label(f'L_fast{k}')
    def kslot(sl, n): return sl(2) if n % 2 == 0 else sl(0)
    def vslot(sl, n): return sl(3) if n % 2 == 0 else sl(1)

    def stage1(i, sl, do_qk, enq):
        a.e('s_waitcnt lgkmcnt(0)')
        if enq: enq()
        mf = qk_mfmas((i+1) & 1) if do_qk else []
        def vread():
            wait_vm(f'V{i&1}'); tr_reads(vslot(sl, i))
        ex = {}
        if do_qk:
            for k in (1, 4, 7, 13, 16, 19, 21, 23): ex[k] = pump
            ex[10] = vread
        else:
            vread()
        interleave(mf, sm_exp_cvt(i & 1), ex)
        flush()
    def stage2(i, sl, do_next, enq, kread_next):
        a.e('s_waitcnt lgkmcnt(0)')
        if enq: enq()
        mf = pv_mfmas(lambda qt: vr(P+qt*4, 4), False)
        va = sm_adds(i & 1) + (sm_first((i+1) & 1) if do_next else [])
        ex = {}
        for k in (1, 4, 7, 13, 16, 19, 21, 23): ex[k] = pump
        if kread_next:
            def kread():
                wait_vm(f'K{i&1}'); k_reads(kslot(sl, i+2))
            ex[10] = kread
        interleave(mf, va, ex)
        flush()
        if do_next: sm_check((i+1) & 1)

    def jstage1(n, sl, do_qk, enq):
        if n % 2 == 1: a.e('s_waitcnt lgkmcnt(0)')
        if enq: enq()
        mf = qk_mfmas((n+1) & 1, AQ2 if (n+1) & 1 else AQ) if do_qk else []
        ex = {}
        if do_qk:
            for k in (3, 9, 15, 21): ex[k] = pump
        def vread():
            wait_vm(f'V{(n//2)&1}'); tr_reads(vslot(sl, n//2))
        if n % 2 == 0:
            if do_qk: ex[11] = vread
            else: vread()
        interleave(mf, sm_exp_cvt(n & 1), ex)
        if not do_qk: pump(4)
    def jstage2(n, sl, do_next, enq, kread_next):
        if n % 2 == 0: a.e('s_waitcnt lgkmcnt(0)')
        if enq: enq()
        mf = pv_mfmas(lambda qt: vr(P+qt*4, 4), False, acc2=bool(n & 1))
        va = sm_adds(n & 1, ML2 if n & 1 else ML) + (sm_first((n+1) & 1, ML2 if (n+1) & 1 else ML) if do_next else [])
        ex = {}
        for k in (3, 9, 15, 21): ex[k] = pump
        if n % 2 == 0 and kread_next:
            def kread():
                wait_vm(f'K{(n//2+1)&1}'); k_reads(kslot(sl, n//2+1))
            ex[11] = kread
        interleave(mf, va, ex)
        if do_next: sm_check((n+1) & 1, joint=True)

    def allreduce(reg, op):
        t = TMP + 10
        a.e(f'v_mov_b32 v{t}, v{reg}'); a.nop(2)
        a.e(f'v_permlane32_swap_b32 v{reg}, v{t}'); a.nop(1)
        a.e(f'{op} v{reg}, v{reg}, v{t}')
        a.e(f'v_mov_b32 v{t}, v{reg}'); a.nop(2)
        a.e(f'v_permlane16_swap_b32 v{reg}, v{t}'); a.nop(1)
        a.e(f'{op} v{reg}, v{reg}, v{t}')

    def allreduce3(regs, op):
        t = TMP + 8
        for stage in ('v_permlane32_swap_b32', 'v_permlane16_swap_b32'):
            for i, r in enumerate(regs): a.e(f'v_mov_b32 v{t+i}, v{r}')
            a.nop(1)
            for i, r in enumerate(regs): a.e(f'{stage} v{r}, v{t+i}')
            a.nop(1)
            for i, r in enumerate(regs): a.e(f'{op} v{r}, v{r}, v{t+i}')
    def exchange(kind, slotA, slotB, after_in, inter=None, qdst=AQ, agpr=False, stoff=6144, odst=AX, mini=False, extra=False):
        a.c(f'--- exchange {kind}')
        t = TMP
        FA = 1
        if kind == 'O':
            a.e(f'v_and_b32 v{t}, 15, v{V_LANE}'); a.e(f'v_lshlrev_b32 v{t}, 3, v{t}')
            for rho in range(4):
                a.e(f's_sub_u32 s{S_T}, s{S_W}, {rho}'); a.e(f's_and_b32 s{S_T}, s{S_T}, 3'); a.e(f's_lshl_b32 s{S_T}, s{S_T}, 13')
                a.e(f's_add_u32 s{S_T}, s{S_T}, {AUX+stoff}'); a.e(f'v_add_u32 v{t+1+rho}, s{S_T}, v{t}')
            for rho in range(4):
                for qt in range(3):
                    a.e(f'ds_read_b64 {vr(IN+(rho*3+qt)*2, 2)}, v{t+1+rho} offset:{qt*128}')
        for rho in (1, 2, 3):
            a.e(f's_add_u32 s{S_T}, s{S_W}, {rho}'); a.e(f's_and_b32 s{S_T}, s{S_T}, 3')
            if rho < 3: a.e(f's_lshl_b32 s{S_T}, s{S_T}, 15')
            else: a.e(f's_lshl_b32 s{S_T}, s{S_T}, 13'); a.e(f's_add_u32 s{S_T}, s{S_T}, {AUX}')
            a.e(f'v_add_u32 v{t+5+rho}, s{S_T}, v{V_L16}')
        inter = list(inter or [])
        for rho in (1, 2, 3):
            base = {1: slotA*8192, 2: slotB*8192, 3: 0}[rho]
            for i in range(6):
                src = ar(AO2+24*rho+4*i, 4) if agpr else vr(O+24*rho+4*i, 4)
                a.e(f'ds_write_b128 v{t+5+rho}, {src} offset:{base+i*1024}')
                if inter: inter.pop(0)()
        while inter: inter.pop(0)()
        OW = OT if agpr else O
        if agpr:
            for i in range(24): a.e(f'v_accvgpr_read_b32 v{OT+i}, a{AO2+i}')
        if kind == 'O':
            a.e('s_waitcnt lgkmcnt(15)')
            for qt in range(3):
                m = lambda rho: IN + (rho*3+qt)*2
                mm = t
                a.e(f'v_max3_f32 v{mm}, v{m(0)}, v{m(1)}, v{m(2)}'); a.e(f'v_max_f32 v{mm}, v{mm}, v{m(3)}')
                mA, lA = ML2 + 2*qt, ML2 + 2*qt + 1
                if extra: a.e(f'v_max_f32 v{mm}, v{mm}, v{mA}')
                for rho in range(4): a.e(f'v_sub_f32 v{m(rho)}, v{m(rho)}, v{mm}')
                if extra: a.e(f'v_sub_f32 v{mA}, v{mA}, v{mm}')
                for rho in range(4): a.e(f'v_exp_f32 v{m(rho)}, v{m(rho)}')
                if extra: a.e(f'v_exp_f32 v{mA}, v{mA}')
                a.nop(1)
                a.e(f'v_mul_f32 v{t+1}, v{m(0)}, v{m(0)+1}')
                for rho in range(1, 4): a.e(f'v_fma_f32 v{t+1}, v{m(rho)}, v{m(rho)+1}, v{t+1}')
                if extra:
                    a.e(f'v_mul_f32 v{mA}, v{mA}, v{lA}'); a.e(f'v_add_f32 v{t+1}, v{t+1}, v{mA}')
                if mini:
                    a.e(f'v_mov_b32 v{M_(qt)}, v{mm}'); a.e(f'v_mov_b32 v{L_(qt)}, v{t+1}')
                a.e(f'v_rcp_f32 v{t+1}, v{t+1}'); a.nop(1)
                for rho in range(4): a.e(f'v_mul_f32 v{FA+rho*3+qt}, v{m(rho)}, v{t+1}')
                if extra: a.e(f'v_mul_f32 v{13+qt}, v{mA}, v{t+1}')
        a.e(f'v_add_u32 v{t+2}, s{S_LB}, v{V_L16}')
        a.e(f's_lshl_b32 s{S_T}, s{S_W}, 13'); a.e(f's_add_u32 s{S_T}, s{S_T}, {AUX}')
        a.e(f'v_add_u32 v{t+3}, s{S_T}, v{V_L16}')
        a.e('s_waitcnt lgkmcnt(0)'); a.e('s_barrier')
        for rho in (1, 2, 3):
            for i in range(6):
                if rho < 3: a.e(f'ds_read_b128 {vr(IN+24*(rho-1)+4*i, 4)}, v{t+2} offset:{ {1: slotA*8192, 2: slotB*8192}[rho] + i*1024}')
                else: a.e(f'ds_read_b128 {vr(IN+24*(rho-1)+4*i, 4)}, v{t+3} offset:{i*1024}')
        if kind == 'Q':
            a.e(f'v_lshrrev_b32 v{t+4}, 5, v{V_LANE}'); a.e(f'v_lshlrev_b32 v{t+4}, 8, v{t+4}')
            a.e(f'v_and_b32 v{t+5}, 15, v{V_LANE}'); a.e(f'v_lshl_add_u32 v{t+4}, v{t+5}, 4, v{t+4}')
            a.e(f'v_bfe_u32 v{t+5}, v{V_LANE}, 4, 1'); a.e(f'v_lshl_add_u32 v{t+4}, v{t+5}, 3, v{t+4}')
            a.e(f'v_add_u32 v{t+4}, s{S_T}, v{t+4}')
            uoff = 512
        else:
            a.e(f'v_add_u32 v{t+4}, s{S_T}, v{V_L16}')
            uoff = 8
            for i in range(6):
                for r in range(4): a.e(f'v_mul_f32 v{OW+4*i+r}, v{OW+4*i+r}, v{FA+(i%3)}')
        a.e('s_waitcnt lgkmcnt(12)')
        for rho in (1, 2, 3):
            if rho == 2: a.e('s_waitcnt lgkmcnt(6)')
            if rho == 3:
                a.e('s_waitcnt lgkmcnt(0)')
                if after_in: after_in()
            for i in range(6):
                for r in range(4):
                    x = OW + 4*i + r; y = IN + 24*(rho-1) + 4*i + r
                    if kind == 'O': a.e(f'v_fmac_f32 v{x}, v{y}, v{FA+rho*3+(i%3)}')
                    else: a.e(f'v_add_f32 v{x}, v{x}, v{y}')
        if extra:
            for i in range(6):
                for r in range(4): a.e(f'v_fmac_f32 v{OW+4*i+r}, v{OT+4*i+r}, v{13+(i%3)}')
        if mini: return
        for tau in range(2):
            for qt in range(3):
                x = OW + (tau*3+qt)*4; d = IN + (tau*3+qt)*2
                a.e(f'v_cvt_pk_bf16_f32 v{d}, v{x}, v{x+1}'); a.e(f'v_cvt_pk_bf16_f32 v{d+1}, v{x+2}, v{x+3}')
        for tau in range(2):
            for qt in range(3):
                d = IN + (tau*3+qt)*2
                a.e(f'ds_write_b64 v{t+4}, {vr(d, 2)} offset:{qt*1024 + tau*uoff}')
        pump(4)
        if kind == 'O':
            for s in range(4):
                a.e(f's_add_u32 s{S_T}, s{S_RW}, {s}'); a.e(f's_and_b32 s{S_T}, s{S_T}, 3'); a.e(f's_lshl_b32 s{S_T}, s{S_T}, 13')
                a.e(f's_add_u32 s{S_T}, s{S_T}, {AUX}'); a.e(f'v_add_u32 v{t+5+s}, s{S_T}, v{V_L16}')
        else:
            a.e(f'v_add_u32 v{t+5}, {AUX}, v{V_L16}')
        a.e('s_waitcnt lgkmcnt(0)'); a.e('s_barrier')
        for s in range(4):
            for qt in range(3):
                if kind == 'Q': a.e(f'ds_read_b128 {ar(qdst + (qt*4 + s)*4, 4)}, v{t+5} offset:{s*8192 + qt*1024}')
                else: a.e(f'ds_read_b128 {ar(odst + (qt*4 + s)*4, 4)}, v{t+5+s} offset:{qt*1024}')
        pump(4)
        a.e('s_waitcnt lgkmcnt(0)')

    def set_flag(u, lbl):
        a.e(f's_cmp_lg_u32 s{S_W}, 0'); a.e(f's_cbranch_scc1 {lbl}')
        a.e('s_mov_b64 exec, 1'); a.e(f'v_mov_b32 v{TMP}, 0'); a.e(f'v_mov_b32 v{TMP+1}, 1')
        a.e(f'buffer_store_dword v{TMP+1}, v{TMP}, s[{R_FLG}:{R_FLG+3}], s{S_FG[u]} offen sc1')
        a.e('s_mov_b64 exec, -1')
        a.label(lbl)
        a.nop(2)

    def store_thunks(u):
        r = SRD[u]['PT']
        out = []
        for qt in range(3):
            for pi in range(4):
                def th(qt=qt, pi=pi):
                    d = IN + (qt*4+pi)*4
                    if pi == 0: a.e(f's_mov_b32 s{S_T3}, {qt*4096}')
                    a.vmop('ST', f'buffer_store_dwordx4 {vr(d, 4)}, v{V_ST}, s[{r}:{r+3}], s{S_T3} offen offset:{pi*1024}{cfg.st_flags}')
                out.append(th)
        return out
    def stores(u):
        for i, th in enumerate(store_thunks(u)):
            th()
            if i % 4 == 3: pump()
    loops = []
    PREF = [None]
    def qphase2(srdWQ, rw, sl, after_step, after_in, pfx, qdst, xb=AX):
        wslot = [sl(2), sl(3), sl(0), sl(1)]
        proj([(f'{pfx}W{j}', wslot[j], (lambda qt, j=j: ar(xb + (qt*4 + j)*4, 4)), j == 0, after_step[j]) for j in range(4)])
        flush()
        a.nop(8)
        a.e('s_barrier')
        exchange('Q', sl(0), sl(1), after_in, qdst=qdst)
        flush()
    def qphase(srdWQ, rw, sl, after_step, after_in, pfx='', count=False, xb=AX, pre_b=None, post_b=None):
        for j in range(4):
            a.e(f's_add_u32 s{S_T}, s{rw}, {j}'); a.e(f's_and_b32 s{S_T}, s{S_T}, 3'); a.e(f's_lshl_b32 s{S_T}, s{S_T}, 6')
            a.e(f'v_xor_b32 v{TMP+2*j}, s{S_T}, v{V_XB}'); a.e(f'v_xor_b32 v{TMP+2*j+1}, 32, v{TMP+2*j}')
        wait_vm(f'{pfx}X1')
        if count:
            a.e(f's_cmp_lg_u32 s{S_W}, 0'); a.e(f's_cbranch_scc1 L_nocount{count}')
            a.e('s_mov_b64 exec, 1'); a.e('v_mov_b32 v1, 0'); a.e('v_mov_b32 v2, 1')
            a.e('buffer_atomic_add v2, v1, s[80:83], 0 offen sc1')
            a.e('s_mov_b64 exec, -1')
            a.label(f'L_nocount{count}')
        for qt in range(3):
            for j in range(4):
                for uu in range(2):
                    r = xb + (qt*4 + j)*4 + uu*2
                    off = (sl(0)*8192 + qt*4096) if qt < 2 else sl(1)*8192
                    a.e(f'ds_read_b64 a[{r}:{r+1}], v{TMP+2*j+uu} offset:{off}')
        a.e('s_waitcnt lgkmcnt(0)')
        dma_wq(srdWQ, 2, sl(0), rw, pfx); dma_wq(srdWQ, 3, sl(1), rw, pfx); flush()
        wslot = [sl(2), sl(3), sl(0), sl(1)]
        proj([(f'{pfx}W{j}', wslot[j], (lambda qt, j=j: ar(xb + (qt*4 + j)*4, 4)), j == 0, after_step[j]) for j in range(4)])
        flush()
        a.nop(8)
        if pre_b: pre_b()
        a.e('s_barrier')
        if post_b: post_b()
        exchange('Q', sl(0), sl(1), after_in)
        flush()

    def unit(u, br):
        isA = br == 'A'
        sg = 2 if (u == 2 and isA and not cfg.aa_q2_first) else 0
        sl = lambda n: (n + sg) & 3
        fk, fv = (cfg.flA, cfg.flA) if isA else (cfg.flBK, cfg.flBV)
        if cfg.bb2_def and u == 2 and not isA: fk, fv = '', ''
        a.c(f'================ {br}{br} unit {u}')
        q2f = cfg.aa_q2_first and isA
        if u == 1 and q2f:
            a.e(f's_mov_b32 s{S_STEP}, 0'); a.e(f's_mov_b32 s{S_VSTEP}, 0')
            W2 = SRD[2]['WQ']
            qphase(SRD[1]['WQ'], S_RW, sl,
                   [lambda: dma_wq(W2, 0, sl(2), S_RW, 'z'), lambda: dma_wq(W2, 1, sl(3), S_RW, 'z'), None, None],
                   lambda: (dma_wq(W2, 2, sl(0), S_RW, 'z'), dma_wq(W2, 3, sl(1), S_RW, 'z')))
            qphase2(W2, S_RW, sl,
                    [None, None, lambda: dma_kv(0, u, 'K', sl(2), fk), lambda: dma_kv(0, u, 'V', sl(3), fv)],
                    lambda: dma_kv(1, u, 'K', sl(0), fk), 'z', ASAVE)
        elif u == 2 and q2f:
            pass
        elif not (u == 2 and not isA):
            a.e(f's_mov_b32 s{S_STEP}, 0'); a.e(f's_mov_b32 s{S_VSTEP}, 0')
            j0 = 2 if cfg.kv0_late else 0
            steps = [None]*4
            steps[j0] = lambda: dma_kv(0, u, 'K', sl(2), fk)
            steps[j0+1] = lambda: dma_kv(0, u, 'V', sl(3), fv)
            qphase(SRD[u]['WQ'], S_RW, sl, steps, lambda: dma_kv(1, u, 'K', sl(0), fk), count=('B' if (u == 1 and not isA) else False))
        else:
            wait_vm('QF')
        stamp()
        if cfg.fake_joint and isA and u == 2:
            a.wait_vm_all()
            PREF[0]([(16, 16 - cfg.fake_joint, cfg.fake_joint)], 'b')
            a.wait_vm_all()
            stamp(); stamp()
            dma_wo(u, 0, sl(2)); dma_wo(u, 1, sl(3)); flush()
            a.e('s_barrier')
            exchange('O', sl(0), sl(1), lambda: (dma_wo(u, 2, sl(0)), dma_wo(u, 3, sl(1))))
            stamp()
            oslot = [sl(2), sl(3), sl(0), sl(1)]
            for s_ in range(4):
                wait_vm(f'WO{s_}')
                pvw(oslot[s_], lambda qt, s_=s_: ax(qt, s_), s_ == 0, None)
            a.nop(8)
            stamp()
            for qt in range(3):
                for pi in range(4):
                    d = IN + (qt*4+pi)*4
                    for h2 in range(2):
                        x = Oreg(2*pi+h2, qt)
                        a.e(f'v_cvt_pk_bf16_f32 v{d+2*h2}, v{x}, v{x+1}'); a.e(f'v_cvt_pk_bf16_f32 v{d+2*h2+1}, v{x+2}, v{x+3}')
            stores(u)
            return
        wait_vm('K0'); k_reads(sl(2))
        for i in range(96): a.e(f'v_mov_b32 v{O+i}, 0')
        for qt in range(3):
            a.e(f'v_mov_b32 v{M_(qt)}, 0'); a.e(f'v_mov_b32 v{L_(qt)}, 0')
        a.e(f's_mov_b32 s{S_THR}, 0xff800000'); a.e(f's_mov_b32 s{S_FLOOR}, 0xff800000')
        a.e('s_waitcnt lgkmcnt(0)')
        dma_kv(2, u, 'K', sl(2), fk); dma_kv(1, u, 'V', sl(1), fv)
        for i, m in enumerate(qk_mfmas(0)):
            a.e(m)
            if i % 3 == 2: pump()
        wait_vm('K1'); k_reads(sl(0))
        flush()
        a.nop(4)
        for c, s_ in sm_first(0): a.e(s_)
        sm_check(0)
        assert a.vm[-16:] == ['K0']*8 + ['V1']*8, a.vm
        steady = ['V0']*8 + ['K0']*8 + ['V1']*8
        a.e(f's_mov_b32 s{S_CNT}, {6 - (cfg.mini//2 if (u == 2 and not isA) else 0)}')
        a.vm = list(steady)
        a.label(f'L_loop{br}{u}')
        start = len(a.L)
        for i in (0, 1):
            stage1(i, sl, True, lambda i=i: dma_kv(i+3, u, 'K', kslot(sl, i+3), fk))
            stage2(i, sl, True, lambda i=i: dma_kv(i+2, u, 'V', vslot(sl, i+2), fv), True)
        a.e(f's_sub_u32 s{S_CNT}, s{S_CNT}, 1'); a.e(f's_cmp_lg_u32 s{S_CNT}, 0'); a.e(f's_cbranch_scc1 L_loop{br}{u}')
        assert not pend and a.vm[-24:] == steady, a.vm
        loops.append((start, len(a.L)))
        stamp()
        getq = (u == 1 and not isA)
        def qcnt_load():
            a.e(f's_mov_b32 s36, s{R_DBGK}'); a.e(f's_mov_b32 s37, s{R_DBGK+1}'); a.e('s_mov_b32 s38, 256'); a.e('s_mov_b32 s39, 0x20000')
            a.e('v_mov_b32 v15, 0')
            a.vmop('QC1', 'buffer_load_dword v14, v15, s[36:39], 0 offen sc1')
        def qflag_loads():
            wait_vm('QC1')
            a.e(f's_mov_b32 s{S_T}, 20000')
            a.label('L_cchk')
            a.e(f'v_readfirstlane_b32 s{S_T3}, v14'); a.e('s_nop 3')
            a.e(f's_cmp_eq_u32 s{S_T3}, 256'); a.e('s_cbranch_scc1 L_cok')
            a.e('s_sleep 2')
            a.e('buffer_load_dword v14, v15, s[36:39], 0 offen sc1'); a.e('s_waitcnt vmcnt(0)')
            a.e(f's_sub_u32 s{S_T}, s{S_T}, 1'); a.e(f's_cmp_lg_u32 s{S_T}, 0'); a.e('s_cbranch_scc1 L_cchk')
            a.label('L_cok')
            a.vmop('QC', f'buffer_load_dword v13, v15, s[{R_FLG}:{R_FLG+3}], s{S_QF} offen sc1')
        getm = (u == 2 and not isA and cfg.mini)
        def mflag_load():
            build_mi()
            a.e(f'v_mov_b32 v15, {OFLG}')
            a.vmop('MC', f'buffer_load_dword v13, v15, s[{R_FLG}:{R_FLG+3}], s{S_QF} offen sc1')
        def mdata_loads():
            wait_vm('MC')
            a.e(f's_mov_b32 s{S_T}, 20000')
            a.label('L_mchk')
            a.e(f'v_readfirstlane_b32 s{S_T3}, v13'); a.e('s_nop 3')
            a.e(f's_cmp_eq_u32 s{S_T3}, 1'); a.e('s_cbranch_scc1 L_mok')
            a.e('s_sleep 2')
            a.e(f'buffer_load_dword v13, v15, s[{R_FLG}:{R_FLG+3}], s{S_QF} offen sc1'); a.e('s_waitcnt vmcnt(0)')
            a.e(f's_sub_u32 s{S_T}, s{S_T}, 1'); a.e(f's_cmp_lg_u32 s{S_T}, 0'); a.e('s_cbranch_scc1 L_mchk')
            a.label('L_mok')
            a.e(f's_mul_i32 s{S_T3}, s{S_W}, 6144')
            for i in range(6):
                if i == 4: a.e(f's_add_u32 s{S_T3}, s{S_T3}, 4096')
                a.vmop('MD', f'buffer_load_dwordx4 {vr(OT+4*i, 4)}, v{V_L16}, s[{R_QI}:{R_QI+3}], s{S_T3} offen offset:{(i%4)*1024} sc1')
            a.e(f'v_and_b32 v14, 15, v{V_LANE}'); a.e('v_lshlrev_b32 v14, 3, v14'); a.e(f's_mov_b32 s{S_T3}, 24576')
            for qt in range(3):
                a.vmop('MD', f'buffer_load_dwordx2 {vr(ML2+2*qt, 2)}, v14, s[{R_QI}:{R_QI+3}], s{S_T3} offen offset:{qt*128} sc1')
        stage1(12, sl, True, lambda: ((qcnt_load() if getq else None), dma_kv(15, u, 'K', kslot(sl, 15), fk)))
        stage2(12, sl, True, lambda: dma_kv(14, u, 'V', vslot(sl, 14), fv), True)
        stage1(13, sl, True, lambda: ((mflag_load() if (u == 2 and not isA and cfg.mini) else None), dma_wo(u, 0, sl(2))))
        stage2(13, sl, True, lambda: dma_kv(15, u, 'V', vslot(sl, 15), fv), True)
        stg = getq and cfg.stage_bb
        def s114():
            if getm: mdata_loads()
            if getq: qflag_loads()
            if stg:
                a.e(f's_mov_b32 s{S_STEP}, 0'); dma_kv(0, 2, 'K', None, fk, reg=ASAVE)
        def s115():
            a.e(f's_mov_b32 s{S_VSTEP}, 0'); dma_kv(0, 2, 'V', None, fv, reg=ASAVE+32)
        def s215():
            dma_kv(1, 2, 'K', None, fk, reg=ASAVE+64)
        stage1(14, sl, True, s114 if (getq or stg or getm) else None)
        stage2(14, sl, True, lambda: dma_wo(u, 1, sl(3)), False)
        stage1(15, sl, False, s115 if stg else None)
        stage2(15, sl, False, s215 if stg else None, False)
        stamp()
        if getq:
            wait_vm('QC')
            a.e(f's_mov_b32 s{S_T}, 20000')
            a.label('L_qchk')
            a.e(f'v_readfirstlane_b32 s{S_T3}, v13'); a.e('s_nop 3')
            a.e(f's_cmp_eq_u32 s{S_T3}, 1'); a.e('s_cbranch_scc1 L_qok')
            a.e('s_sleep 2')
            a.e(f'buffer_load_dword v13, v15, s[{R_FLG}:{R_FLG+3}], s{S_QF} offen sc1'); a.e('s_waitcnt vmcnt(0)')
            a.e(f's_sub_u32 s{S_T}, s{S_T}, 1'); a.e(f's_cmp_lg_u32 s{S_T}, 0'); a.e('s_cbranch_scc1 L_qchk')
            a.label('L_qok')
            for s_ in range(4):
                for qt in range(3):
                    idx = s_*3 + qt
                    if idx % 4 == 0: a.e(f's_mov_b32 s{S_T3}, {(idx//4)*4096}')
                    a.vmop('QF', f'buffer_load_dwordx4 {aq(qt, s_)}, v{V_L16}, s[{R_QI}:{R_QI+3}], s{S_T3} offen offset:{(idx%4)*1024} sc1')
            if not cfg.stage_bb: a.e(f's_mov_b32 s{S_STEP}, 0'); a.e(f's_mov_b32 s{S_VSTEP}, 0')
        if u == 1 and q2f:
            for i in range(48): a.e(f'v_accvgpr_mov_b32 a{AQ+i}, a{ASAVE+i}')
            a.e(f's_mov_b32 s{S_STEP}, 0'); a.e(f's_mov_b32 s{S_VSTEP}, 0')
        a.c('--- stats')
        allreduce3([L_(qt) for qt in range(3)], 'v_add_f32')
        t = TMP
        a.e(f'v_and_b32 v{t}, 15, v{V_LANE}'); a.e(f'v_lshlrev_b32 v{t}, 3, v{t}')
        a.e(f's_lshl_b32 s{S_T}, s{S_W}, 13'); a.e(f's_add_u32 s{S_T}, s{S_T}, {AUX+6144}'); a.e(f'v_add_u32 v{t+1}, s{S_T}, v{t}')
        for qt in range(3): a.e(f'ds_write_b64 v{t+1}, {vr(M_(qt), 2)} offset:{qt*128}')
        a.e('s_waitcnt lgkmcnt(0)'); a.e('s_barrier')
        if getm: wait_vm('MD')
        exchange('O', sl(0), sl(1), lambda: (dma_wo(u, 2, sl(0)), dma_wo(u, 3, sl(1))), extra=bool(getm))
        stamp()
        oslot = [sl(2), sl(3), sl(0), sl(1)]
        if u == 2:
            for i in range(96): a.e(f'v_accvgpr_read_b32 v{O+i}, a{ASAVE+i}')
        steps = []
        for s_ in range(4):
            after = None
            if u == 1 and isA and not q2f:
                after = [lambda: dma_x(SRD[1]['X'], 0, oslot[0]), lambda: dma_x(SRD[1]['X'], 1, oslot[1]), lambda: dma_wq(SRD[2]['WQ'], 0, oslot[2]), lambda: dma_wq(SRD[2]['WQ'], 1, oslot[3])][s_]
            if u == 1 and (not isA or q2f):
                after = [lambda: dma_kv(0, 2, 'K', 2, fk), lambda: dma_kv(0, 2, 'V', 3, fv), lambda: dma_kv(1, 2, 'K', 0, fk), None][s_]
            steps.append((f'WO{s_}', oslot[s_], (lambda qt, s_=s_: ax(qt, s_)), s_ == 0 and u == 1, after))
        proj(steps)
        a.nop(8)
        stamp()
        if u == 1:
            for i in range(96):
                a.e(f'v_accvgpr_write_b32 a{ASAVE+i}, v{O+i}')
                if i % 12 == 11: pump()
            if not isA or q2f: flush()
            return
        for qt in range(3):
            for pi in range(4):
                d = IN + (qt*4+pi)*4
                for h2 in range(2):
                    x = Oreg(2*pi+h2, qt)
                    a.e(f'v_cvt_pk_bf16_f32 v{d+2*h2}, v{x}, v{x+1}'); a.e(f'v_cvt_pk_bf16_f32 v{d+2*h2+1}, v{x+2}, v{x+3}')
        stores(u)

    def joint(pre_b=None, post_b=None):
        sl = lambda n: n & 3
        fk = fv = cfg.flA
        a.c('================ joint A: two heads of one kv head')
        a.e(f's_mov_b32 s{S_STEP}, 0'); a.e(f's_mov_b32 s{S_VSTEP}, 0')
        W2 = SRD[2]['WQ']; XB = AO2
        qphase(SRD[1]['WQ'], S_RW, sl,
               [lambda: dma_wq(W2, 0, sl(2), S_RW, 'z'), lambda: dma_wq(W2, 1, sl(3), S_RW, 'z'), None, None],
               lambda: (dma_wq(W2, 2, sl(0), S_RW, 'z'), dma_wq(W2, 3, sl(1), S_RW, 'z')), xb=XB, pre_b=pre_b, post_b=post_b)
        qphase2(W2, S_RW, sl,
                [None, None, lambda: dma_kv(0, 1, 'K', sl(2), fk), lambda: dma_kv(0, 1, 'V', sl(3), fv)],
                lambda: (dma_kv(1, 1, 'K', sl(0), fk), dma_kv(1, 1, 'V', sl(1), fv)), 'z', AQ2, xb=XB)
        stamp()
        wait_vm('K0'); k_reads(sl(2))
        for i in range(96): a.e(f'v_mov_b32 v{O+i}, 0')
        for i in range(96): a.e(f'v_accvgpr_write_b32 a{AO2+i}, 0')
        for qt in range(3):
            for ml in (ML, ML2):
                a.e(f'v_mov_b32 v{ml+2*qt}, 0'); a.e(f'v_mov_b32 v{ml+2*qt+1}, 0')
        for r in (S_THR, S_FLOOR, S_THR2, S_FLOOR2): a.e(f's_mov_b32 s{r}, 0xff800000')
        a.e('s_waitcnt lgkmcnt(0)')
        dma_kv(2, 1, 'K', sl(2), fk)
        for i, m in enumerate(qk_mfmas(0, AQ)):
            a.e(m)
            if i in (3, 9, 15, 21): pump()
        a.nop(8)
        for c, s_ in sm_first(0, ML): a.e(s_)
        sm_check(0, joint=True)
        steady = ['V0']*8 + ['K1']*8 + ['V1']*8 + ['K0']*4
        assert a.vm[-28:] == steady and [t for t, _ in pend] == ['K0']*4, (a.vm, pend)
        a.e(f's_mov_b32 s{S_CNT}, 6')
        a.vm = list(steady)
        a.label('L_loopJ')
        start = len(a.L)
        def Kq(j): return lambda: dma_kv(j, 1, 'K', kslot(sl, j), fk)
        def Vq(j): return lambda: dma_kv(j, 1, 'V', vslot(sl, j), fv)
        for n in range(4):
            jstage1(n, sl, True, Kq((n+1)//2 + 2) if n % 2 == 1 else None)
            jstage2(n, sl, True, Vq(n//2 + 2) if n % 2 == 0 else None, True)
        a.e(f's_sub_u32 s{S_CNT}, s{S_CNT}, 1'); a.e(f's_cmp_lg_u32 s{S_CNT}, 0'); a.e('s_cbranch_scc1 L_loopJ')
        assert a.vm[-28:] == steady and [t for t, _ in pend] == ['K0']*4, (a.vm, pend)
        loops.append((start, len(a.L)))
        stamp()
        e1 = {25: Kq(15), 27: lambda: dma_wo(1, 0, sl(2))}
        e2 = {24: Vq(14), 26: Vq(15), 28: lambda: dma_wo(1, 1, sl(3))}
        def cyc():
            if cfg.fine == 'J':
                a.e('s_memtime s[100:101]'); a.e('s_waitcnt lgkmcnt(0)'); a.e(f's_mov_b32 s{STAMP0+nst[0]}, s100'); nst[0] += 1
        for n in range(24, 32):
            if n >= 28: cyc()
            jstage1(n, sl, n < 31, e1.get(n))
            if n >= 28: cyc()
            jstage2(n, sl, n < 31, e2.get(n), n < 30)
        cyc()
        flush()
        stamp()
        a.c('--- stats (both heads)')
        allreduce3([ML+2*qt+1 for qt in range(3)], 'v_add_f32')
        allreduce3([ML2+2*qt+1 for qt in range(3)], 'v_add_f32')
        t = TMP
        a.e(f'v_and_b32 v{t}, 15, v{V_LANE}'); a.e(f'v_lshlrev_b32 v{t}, 3, v{t}')
        a.e(f's_lshl_b32 s{S_T}, s{S_W}, 13'); a.e(f's_add_u32 s{S_T}, s{S_T}, {AUX+6144}'); a.e(f'v_add_u32 v{t+1}, s{S_T}, v{t}')
        for qt in range(3):
            a.e(f'ds_write_b64 v{t+1}, {vr(ML+2*qt, 2)} offset:{qt*128}')
            a.e(f'ds_write_b64 v{t+1}, {vr(ML2+2*qt, 2)} offset:{384+qt*128}')
        a.e('s_waitcnt lgkmcnt(0)'); a.e('s_barrier')
        exchange('O', sl(0), sl(1), lambda: (dma_wo(1, 2, sl(0)), dma_wo(1, 3, sl(1))), odst=AQ)
        stamp()
        oslot = [sl(2), sl(3), sl(0), sl(1)]
        fr = lambda s_: (lambda qt: ar(AQ + (qt*4 + s_)*4, 4))
        hk = [lambda: dma_wo(2, 0, sl(2)), lambda: dma_wo(2, 1, sl(3)), None, None]
        proj([(f'WO{s_}', oslot[s_], fr(s_), s_ == 0, hk[s_]) for s_ in range(4)])
        flush()
        a.e('s_barrier')
        stamp()
        exchange('O', sl(0), sl(1), lambda: (dma_wo(2, 2, sl(0)), dma_wo(2, 3, sl(1))), agpr=True, stoff=6144+384, odst=AQ)
        stamp()
        proj([(f'WO{s_}', oslot[s_], fr(s_), False, None) for s_ in range(4)])
        a.nop(8)
        stamp()
        for qt in range(3):
            for pi in range(4):
                d = IN + (qt*4+pi)*4
                for h2 in range(2):
                    x = Oreg(2*pi+h2, qt)
                    a.e(f'v_cvt_pk_bf16_f32 v{d+2*h2}, v{x}, v{x+1}'); a.e(f'v_cvt_pk_bf16_f32 v{d+2*h2+1}, v{x+2}, v{x+3}')
        stores(2)

    def build_mi():
        a.e(f's_sub_u32 s{S_T}, s{S_QF}, {QFLG}'); a.e(f's_lshr_b32 s{S_T}, s{S_T}, 7'); a.e(f's_mul_i32 s{S_T}, s{S_T}, {25600-12288}')
        a.e(f's_add_u32 s{S_T}, s{S_T}, {MIMG_OFF-QIMG_OFF:#x}')
        a.e(f's_add_u32 s{R_QI}, s{R_QI}, s{S_T}'); a.e(f's_addc_u32 s{R_QI+1}, s{R_QI+1}, 0'); a.e(f's_mov_b32 s{R_QI+2}, 25600'); a.e(f's_mov_b32 s{R_QI+3}, 0x20000')
    def build_u2():
        r = SRD[2]['K']; r1 = SRD[1]['K']
        a.e(f's_add_u32 s{r}, s{r1}, s{S_KD}'); a.e(f's_addc_u32 s{r+1}, s{r1+1}, 0'); a.e(f's_mov_b32 s{r+2}, 0x80000'); a.e(f's_mov_b32 s{r+3}, 0x20000')
        r = SRD[2]['WQ']; r1 = SRD[1]['WQ']
        a.e(f's_add_u32 s{r}, s{r1}, 4096'); a.e(f's_addc_u32 s{r+1}, s{r1+1}, 0'); a.e(f's_sub_u32 s{r+2}, s{r1+2}, 4096'); a.e(f's_mov_b32 s{r+3}, 0x20000')

    if cfg.setup_stamp: stamp()
    n0 = nst[0]
    a.e(f's_cmp_eq_u32 s{S_ISA[1]}, 0'); a.e('s_cbranch_scc1 L_progB')
    a.vm = []
    def prefetch(jobs, pfx):
        a.e('s_load_dwordx4 s[12:15], s[0:1], 48')
        a.e(f's_sub_u32 s16, s{S_QF}, {QFLG}'); a.e('s_lshr_b32 s16, s16, 7'); a.e('s_lshr_b32 s17, s16, 4'); a.e('s_and_b32 s16, s16, 15')
        a.e('s_lshr_b32 s18, s16, 1'); a.e('s_and_b32 s16, s16, 1'); a.e('s_lshl_b32 s17, s17, 1'); a.e('s_add_u32 s16, s16, s17')
        a.e('s_lshl_b32 s18, s18, 5'); a.e('s_add_u32 s16, s16, s18')
        a.e('s_waitcnt lgkmcnt(0)')
        for ji, (dk, blk0, nb) in enumerate(jobs):
            a.e(f's_add_u32 s17, s16, {dk}'); a.e('s_lshl_b32 s18, s17, 19'); a.e('s_lshr_b32 s19, s17, 13')
            for (dst, src) in ((20, 12), (24, 14)):
                a.e(f's_add_u32 s{dst}, s{src}, s18'); a.e(f's_addc_u32 s{dst+1}, s{src+1}, s19'); a.e(f's_mov_b32 s{dst+2}, 0x80000'); a.e(f's_mov_b32 s{dst+3}, 0x20000')
            a.e(f's_add_u32 s17, s{S_W8}, {blk0*32768}'); a.e(f's_mov_b32 s18, {nb}')
            a.label(f'L_pf{pfx}{ji}')
            a.e('s_add_u32 s19, s17, 4096')
            for srd in (20, 24):
                for so in (17, 19):
                    for i in range(4):
                        a.e(f'buffer_load_dwordx4 v[4:7], v{V_L16}, s[{srd}:{srd+3}], s{so} offen offset:{i*1024}{cfg.pf_flags}')
                    if cfg.pf_keep < 16: a.e(f's_waitcnt vmcnt({cfg.pf_keep})')
            a.e(f's_waitcnt vmcnt({min(cfg.pf_keep, 16)})')
            a.e('s_add_u32 s17, s17, 32768'); a.e('s_sub_u32 s18, s18, 1'); a.e('s_cmp_lg_u32 s18, 0'); a.e(f's_cbranch_scc1 L_pf{pfx}{ji}')
    if cfg.pf_blocks or cfg.pf_first:
        jobs = []
        if cfg.pf_first: jobs.append((0, 0, cfg.pf_first))
        if cfg.pf_blocks: jobs.append((16, 16 - cfg.pf_blocks, cfg.pf_blocks))
        prefetch(jobs, 'a')
    PREF[0] = prefetch
    sl0 = lambda n: n & 3
    PX, PWQ = SRD[2]['K'], SRD[2]['WQ']
    dma_x(PX, 0, 0, 'p'); dma_x(PX, 1, 1, 'p'); dma_wq(PWQ, 0, 2, S_RWP, 'p'); dma_wq(PWQ, 1, 3, S_RWP, 'p'); flush()
    fb, fbv = cfg.flBK, cfg.flBV
    if cfg.mini:
        a.e('s_load_dwordx4 s[12:15], s[0:1], 48')
        a.e(f's_sub_u32 s16, s{S_QF}, {QFLG}'); a.e('s_lshr_b32 s16, s16, 7'); a.e('s_lshr_b32 s17, s16, 4'); a.e('s_and_b32 s16, s16, 15')
        a.e('s_lshr_b32 s18, s16, 1'); a.e('s_and_b32 s16, s16, 1'); a.e('s_lshl_b32 s17, s17, 1'); a.e('s_add_u32 s16, s16, s17')
        a.e('s_lshl_b32 s18, s18, 5'); a.e('s_add_u32 s16, s16, s18'); a.e('s_add_u32 s16, s16, 16')
        a.e('s_lshl_b32 s18, s16, 19'); a.e('s_lshr_b32 s19, s16, 13')
        a.e('s_waitcnt lgkmcnt(0)')
        for (dst, src) in ((SRD[2]['K'], 12), (SRD[2]['V'], 14)):
            a.e(f's_add_u32 s{dst}, s{src}, s18'); a.e(f's_addc_u32 s{dst+1}, s{src+1}, s19'); a.e(f's_mov_b32 s{dst+2}, 0x80000'); a.e(f's_mov_b32 s{dst+3}, 0x20000')
        a.e(f's_mov_b32 s{S_STEP}, {16-cfg.mini}'); a.e(f's_mov_b32 s{S_VSTEP}, {16-cfg.mini}'); a.e(f's_mov_b32 s{S_ROT}, 0')
        qphase(PWQ, S_RWP, sl0,
               [None, None, lambda: dma_kv(0, 2, 'K', 2, fb), lambda: dma_kv(0, 2, 'V', 3, fbv)],
               lambda: dma_kv(1, 2, 'K', 0, fb), pfx='p', count='A')
    else:
        qphase(PWQ, S_RWP, sl0,
               [lambda: dma_wq(SRD[1]['WQ'], 0, 2), lambda: dma_wq(SRD[1]['WQ'], 1, 3), None, None],
               lambda: (dma_x(SRD[1]['X'], 0, 0), dma_x(SRD[1]['X'], 1, 1)), pfx='p', count='A')
    r = SRD[2]['WQ']; r1 = SRD[1]['WQ']
    a.e(f's_add_u32 s{r}, s{r1}, 256'); a.e(f's_addc_u32 s{r+1}, s{r1+1}, 0'); a.e(f's_sub_u32 s{r+2}, s{r1+2}, 256'); a.e(f's_mov_b32 s{r+3}, 0x20000')
    a.e(f's_cmp_lg_u32 s{S_W}, 0'); a.e('s_cbranch_scc1 L_nopub')
    for s_ in range(4):
        for qt in range(3):
            idx = s_*3 + qt
            if idx % 4 == 0: a.e(f's_mov_b32 s{S_T3}, {(idx//4)*4096}')
            a.e(f'buffer_store_dwordx4 {aq(qt, s_)}, v{V_L16}, s[{R_QI}:{R_QI+3}], s{S_T3} offen offset:{(idx%4)*1024} sc1')
    if not cfg.mini:
        a.e('s_waitcnt vmcnt(0)')
        a.e('s_mov_b64 exec, 1'); a.e('v_mov_b32 v1, 0'); a.e('v_mov_b32 v2, 1')
        a.e(f'buffer_store_dword v2, v1, s[{R_FLG}:{R_FLG+3}], s{S_QF} offen sc1')
        a.e('s_mov_b64 exec, -1')
    a.label('L_nopub')
    stamp()
    pre_b = post_b = None
    if cfg.mini:
        assert cfg.mini == 4
        sl = sl0
        a.c('================ mini unit: last blocks of the partner\'s unit 2')
        build_mi()
        wait_vm('K0'); k_reads(sl(2))
        for i in range(96): a.e(f'v_mov_b32 v{O+i}, 0')
        for qt in range(3):
            a.e(f'v_mov_b32 v{M_(qt)}, 0'); a.e(f'v_mov_b32 v{L_(qt)}, 0')
        a.e(f's_mov_b32 s{S_THR}, 0xff800000'); a.e(f's_mov_b32 s{S_FLOOR}, 0xff800000')
        a.e('s_waitcnt lgkmcnt(0)')
        dma_kv(2, 2, 'K', sl(2), fb); dma_kv(1, 2, 'V', sl(1), fbv)
        for i, m in enumerate(qk_mfmas(0)):
            a.e(m)
            if i % 3 == 2: pump()
        wait_vm('K1'); k_reads(sl(0))
        flush()
        a.nop(4)
        for c, s_ in sm_first(0): a.e(s_)
        sm_check(0)
        assert a.vm[-16:] == ['K0']*8 + ['V1']*8, a.vm
        stage1(12, sl, True, lambda: dma_kv(15, 2, 'K', kslot(sl, 15), fb))
        stage2(12, sl, True, lambda: dma_kv(14, 2, 'V', vslot(sl, 14), fbv), True)
        stage1(13, sl, True, lambda: dma_wq(SRD[1]['WQ'], 0, 2))
        stage2(13, sl, True, lambda: dma_kv(15, 2, 'V', vslot(sl, 15), fbv), True)
        stage1(14, sl, True, None)
        stage2(14, sl, True, lambda: dma_wq(SRD[1]['WQ'], 1, 3), False)
        stage1(15, sl, False, None)
        stage2(15, sl, False, None, False)
        allreduce3([L_(qt) for qt in range(3)], 'v_add_f32')
        t = TMP
        a.e(f'v_and_b32 v{t}, 15, v{V_LANE}'); a.e(f'v_lshlrev_b32 v{t}, 3, v{t}')
        a.e(f's_lshl_b32 s{S_T}, s{S_W}, 13'); a.e(f's_add_u32 s{S_T}, s{S_T}, {AUX+6144}'); a.e(f'v_add_u32 v{t+1}, s{S_T}, v{t}')
        for qt in range(3): a.e(f'ds_write_b64 v{t+1}, {vr(M_(qt), 2)} offset:{qt*128}')
        a.e('s_waitcnt lgkmcnt(0)'); a.e('s_barrier')
        exchange('O', sl(0), sl(1), lambda: (dma_x(SRD[1]['X'], 0, 0), dma_x(SRD[1]['X'], 1, 1)), mini=True)
        a.e(f's_mul_i32 s{S_T3}, s{S_W}, 6144')
        a.nop(1)
        for i in range(6):
            if i == 4: a.e(f's_add_u32 s{S_T3}, s{S_T3}, 4096')
            a.vmop('MP', f'buffer_store_dwordx4 {vr(O+4*i, 4)}, v{V_L16}, s[{R_QI}:{R_QI+3}], s{S_T3} offen offset:{(i%4)*1024} sc1')
        a.e(f'v_and_b32 v{TMP}, 15, v{V_LANE}'); a.e(f'v_lshlrev_b32 v{TMP}, 3, v{TMP}'); a.e(f's_mov_b32 s{S_T3}, 24576')
        a.e(f's_cmp_lg_u32 s{S_W}, 0'); a.e('s_cbranch_scc1 L_nomst')
        for qt in range(3):
            a.e(f'buffer_store_dwordx2 {vr(M_(qt), 2)}, v{TMP}, s[{R_QI}:{R_QI+3}], s{S_T3} offen offset:{qt*128} sc1')
        a.label('L_nomst')
        flush()
        MPW = [len(a.vm)]
        def pre_b():
            a.e('s_waitcnt vmcnt(0)')
            a.vm = []
        def post_b():
            a.e(f's_cmp_lg_u32 s{S_W}, 0'); a.e('s_cbranch_scc1 L_nomf')
            a.e('s_mov_b64 exec, 1'); a.e(f'v_mov_b32 v{TMP}, 0'); a.e(f'v_mov_b32 v{TMP+1}, 1'); a.e(f'v_mov_b32 v{TMP+2}, {OFLG}')
            a.e(f'buffer_store_dword v{TMP+1}, v{TMP}, s[{R_FLG}:{R_FLG+3}], s{S_QF} offen sc1')
            a.e(f'buffer_store_dword v{TMP+1}, v{TMP+2}, s[{R_FLG}:{R_FLG+3}], s{S_QF} offen sc1')
            a.e('s_mov_b64 exec, -1')
            a.label('L_nomf')
            a.nop(2)
    if cfg.rotA: a.e(f's_lshl_b32 s{S_ROT}, s{S_HH}, {cfg.rot_shift}')
    else: a.e(f's_mov_b32 s{S_ROT}, 0')
    joint(pre_b, post_b)
    a.e('s_branch L_final')
    a.label('L_progB')
    nst[0] = n0
    a.vm = []; assert not pend
    build_u2()
    a.e(f's_mov_b32 s{S_ROT}, 0')
    dma_x(SRD[1]['X'], 0, 0); dma_x(SRD[1]['X'], 1, 1); dma_wq(SRD[1]['WQ'], 0, 2); dma_wq(SRD[1]['WQ'], 1, 3); flush()
    stamp()
    unit(1, 'B')
    unit(2, 'B')
    a.label('L_final')
    a.c('================ final reduce')
    a.e('s_load_dwordx4 s[28:31], s[0:1], 80')
    a.e('s_load_dwordx2 s[32:33], s[0:1], 96')
    a.e(f's_lshl_b32 s{S_T}, s{S_W}, 6'); a.e(f'v_add_u32 v1, s{S_T}, v{V_LANE}')
    a.e(f's_bfe_u32 s{S_T+1}, s{S_FG[2]}, 0x50002'); a.e(f's_mul_i32 s{S_T+1}, s{S_T+1}, 192')
    a.e(f'v_add_u32 v3, s{S_T+1}, v1')
    a.e('v_lshlrev_b32 v2, 4, v3')
    a.e('v_lshrrev_b32 v5, 8, v3'); a.e('v_mul_u32_u24 v5, 21846, v5'); a.e('v_lshrrev_b32 v5, 16, v5')
    a.e('v_mul_u32_u24 v6, 768, v5'); a.e('v_sub_u32 v6, v3, v6')
    a.e('v_lshrrev_b32 v7, 6, v6'); a.e('v_and_b32 v8, 63, v6')
    a.e('v_lshrrev_b32 v9, 2, v7'); a.e('v_and_b32 v10, 3, v7')
    a.e('v_add_u32 v11, v5, v10'); a.e('v_lshlrev_b32 v11, 1, v11')
    a.e('v_and_b32 v12, 15, v8'); a.e('v_lshl_add_u32 v12, v9, 4, v12'); a.e('v_lshlrev_b32 v12, 11, v12')
    a.e('v_lshl_add_u32 v12, v5, 8, v12'); a.e('v_lshrrev_b32 v13, 4, v8'); a.e('v_lshl_add_u32 v12, v13, 3, v12')
    a.e('v_and_b32 v13, 7, v11'); a.e('v_lshl_add_u32 v13, v13, 5, v12')
    a.e('v_add_u32 v11, 1, v11'); a.e('v_and_b32 v11, 7, v11'); a.e('v_lshl_add_u32 v14, v11, 5, v12')
    a.e('s_waitcnt lgkmcnt(0)')
    a.e('s_mov_b32 s40, s30'); a.e('s_mov_b32 s41, s31'); a.e('s_mov_b32 s42, 256'); a.e('s_mov_b32 s43, 0x20000')
    a.e('v_mov_b32 v18, 0')
    a.e('buffer_load_dword v21, v18, s[40:43], 0 offen sc1')
    a.wait_vm_all()
    a.e('s_barrier')
    a.e('s_mov_b32 s36, s28'); a.e('s_mov_b32 s37, s29'); a.e('s_mov_b32 s38, 786432'); a.e('s_mov_b32 s39, 0x20000')
    a.e(f's_cmp_lg_u32 s{S_W}, 0'); a.e('s_cbranch_scc1 L_pd')
    a.e('s_mov_b64 exec, 1'); a.e('v_mov_b32 v15, 0'); a.e('v_mov_b32 v16, 1')
    a.e(f'buffer_store_dword v16, v15, s[{R_FLG}:{R_FLG+3}], s{S_FG[2]} offen sc1')
    a.e('s_mov_b64 exec, -1')
    stamp()
    a.e(f's_mov_b32 s{S_T+2}, 8000')
    a.label('L_cpoll')
    a.e(f'v_readfirstlane_b32 s{S_T+1}, v21'); a.e('s_nop 3')
    a.e(f's_cmp_eq_u32 s{S_T+1}, 256'); a.e('s_cbranch_scc1 L_cpok')
    a.e('s_sleep 2')
    a.e('buffer_load_dword v21, v18, s[40:43], 0 offen sc1'); a.e('s_waitcnt vmcnt(0)')
    a.e(f's_sub_u32 s{S_T+2}, s{S_T+2}, 1'); a.e(f's_cmp_lg_u32 s{S_T+2}, 0'); a.e('s_cbranch_scc1 L_cpoll')
    a.label('L_cpok')
    a.e(f'v_and_b32 v17, 15, v{V_LANE}'); a.e('v_lshlrev_b32 v17, 2, v17')
    a.e(f's_and_b32 s{S_T+1}, s{S_FG[2]}, -128'); a.e(f's_mov_b32 s{S_T+2}, 8000')
    a.label('L_poll')
    a.e(f'buffer_load_dword v20, v17, s[{R_FLG}:{R_FLG+3}], s{S_T+1} offen sc1')
    a.e('s_waitcnt vmcnt(0)')
    a.e('v_cmp_eq_u32 vcc, 1, v20')
    a.e('s_nop 1')
    a.e('s_cmp_eq_u64 vcc, -1'); a.e('s_cbranch_scc1 L_pd')
    a.e(f's_sub_u32 s{S_T+2}, s{S_T+2}, 1'); a.e(f's_cmp_lg_u32 s{S_T+2}, 0'); a.e('s_cbranch_scc1 L_poll')
    a.label('L_pd')
    a.e('s_barrier')
    stamp()
    a.e(f's_cmp_eq_u32 s{S_W}, 3'); a.e('s_cbranch_scc1 L_rd')
    a.e(f's_lshr_b32 s{S_T}, s{S_FG[2]}, 7')
    a.e(f's_mul_i32 s{S_T+1}, s{S_T}, 786432')
    a.e(f's_add_u32 s44, s32, s{S_T+1}'); a.e('s_addc_u32 s45, s33, 0'); a.e('s_mov_b32 s46, 786432'); a.e('s_mov_b32 s47, 0x20000')
    for h in range(16):
        a.e(f's_mov_b32 s48, {h*49152}')
        a.e(f'buffer_load_dwordx4 v[{48+4*h}:{51+4*h}], v2, s[44:47], s48 offen sc1')
    a.e(f's_and_b32 s49, s{S_T}, 7'); a.e('s_mul_i32 s49, s49, 98304'); a.e(f's_lshr_b32 s50, s{S_T}, 3'); a.e('s_lshl_b32 s50, s50, 10'); a.e('s_add_u32 s49, s49, s50')
    for i in range(8): a.e(f'v_mov_b32 v{20+i}, 0')
    for h in range(16):
        a.e(f's_waitcnt vmcnt({15-h})')
        for d in range(4):
            r = 48 + 4*h + d
            a.e(f'v_lshlrev_b32 v28, 16, v{r}'); a.e(f'v_and_b32 v29, 0xffff0000, v{r}')
            a.e(f'v_add_f32 v{20+2*d}, v{20+2*d}, v28'); a.e(f'v_add_f32 v{21+2*d}, v{21+2*d}, v29')
    a.e('v_cvt_pk_bf16_f32 v30, v20, v21'); a.e('v_cvt_pk_bf16_f32 v31, v22, v23')
    a.e('v_cvt_pk_bf16_f32 v32, v24, v25'); a.e('v_cvt_pk_bf16_f32 v33, v26, v27')
    a.e(f'buffer_store_dwordx2 v[30:31], v13, s[36:39], s49 offen{cfg.out_flags}')
    a.e(f'buffer_store_dwordx2 v[32:33], v14, s[36:39], s49 offen{cfg.out_flags}')
    a.label('L_rd')
    a.e('s_waitcnt vmcnt(0)')
    if cfg.fine == 'J': nst[0] = 9
    if cfg.stamps:
        stamp()
        a.e('s_memtime s[98:99]'); a.e('s_memrealtime s[100:101]'); a.e('s_waitcnt lgkmcnt(0)')
        a.e('v_readfirstlane_b32 s2, v223')
        a.e('v_mov_b32 v252, s98'); a.e('v_mov_b32 v253, s100')
        a.e('s_add_u32 s32, s32, 0x4000000'); a.e('s_addc_u32 s33, s33, 0'); a.e('s_mov_b32 s34, 0x100000'); a.e('s_mov_b32 s35, 0x20000')
        a.e('s_nop 3')
        a.e(f's_lshl_b32 s94, s2, 2'); a.e(f's_add_u32 s94, s94, s{S_W}'); a.e('s_lshl_b32 s94, s94, 7')
        a.e('v_mov_b32 v1, 0')
        a.e(f'buffer_store_dword v255, v1, s[32:35], s94 offen')
        a.e(f'buffer_store_dwordx4 v[252:255], v1, s[32:35], s94 offen offset:96')
        for i in range(nst[0]):
            a.e(f'v_mov_b32 v2, s{STAMP0+i}')
            a.e(f'buffer_store_dword v2, v1, s[32:35], s94 offen offset:{4*i+4}')
            a.e('s_nop 1')
        a.e('s_waitcnt vmcnt(0)')
    a.label('L_end')
    a.e('s_endpgm')
    for buf in (0, 1):
        a.label(f'L_rescale{buf}')
        t = TMP
        allreduce3([TMP+qt for qt in range(3)], 'v_max_f32')
        for qt in range(3): a.e(f'v_max_f32 v{t+qt}, s{S_FLOOR}, v{t+qt}')
        for qt in range(3):
            a.e(f'v_add_f32 v{M_(qt)}, v{M_(qt)}, v{t+qt}')
            a.e(f'v_max_f32 v{t+4+qt}, 0, v{t+qt}')
            a.e(f'v_sub_f32 v{t+4+qt}, 0, v{t+4+qt}')
        for qt in range(3): a.e(f'v_exp_f32 v{t+4+qt}, v{t+4+qt}')
        for kt in range(2):
            for qt in range(3):
                for r in range(4):
                    x = Sreg(buf, kt, qt) + r
                    a.e(f'v_sub_f32 v{x}, v{x}, v{t+qt}')
        for qt in range(3): a.e(f'v_mul_f32 v{L_(qt)}, v{L_(qt)}, v{t+4+qt}')
        for tau in range(8):
            for qt in range(3):
                for r in range(4):
                    x = Oreg(tau, qt) + r
                    a.e(f'v_mul_f32 v{x}, v{x}, v{t+4+qt}')
        a.e(f's_mov_b32 s{S_THR}, {f32bits(cfg.thr):#x}'); a.e(f's_mov_b32 s{S_FLOOR}, 0')
        a.e(f's_setpc_b64 s[{S_RET}:{S_RET+1}]')

    a.label('L_rescaleJ1')
    t = TMP
    allreduce3([TMP+qt for qt in range(3)], 'v_max_f32')
    for qt in range(3): a.e(f'v_max_f32 v{t+qt}, s{S_FLOOR2}, v{t+qt}')
    for qt in range(3):
        a.e(f'v_add_f32 v{ML2+2*qt}, v{ML2+2*qt}, v{t+qt}')
        a.e(f'v_max_f32 v{t+4+qt}, 0, v{t+qt}')
        a.e(f'v_sub_f32 v{t+4+qt}, 0, v{t+4+qt}')
    for qt in range(3): a.e(f'v_exp_f32 v{t+4+qt}, v{t+4+qt}')
    for kt in range(2):
        for qt in range(3):
            for r in range(4):
                x = Sreg(1, kt, qt) + r
                a.e(f'v_sub_f32 v{x}, v{x}, v{t+qt}')
    for qt in range(3): a.e(f'v_mul_f32 v{ML2+2*qt+1}, v{ML2+2*qt+1}, v{t+4+qt}')
    for g in range(4):
        for i in range(24): a.e(f'v_accvgpr_read_b32 v{OT+i}, a{AO2+24*g+i}')
        for i in range(24): a.e(f'v_mul_f32 v{OT+i}, v{OT+i}, v{t+4+((i//4)%3)}')
        for i in range(24): a.e(f'v_accvgpr_write_b32 a{AO2+24*g+i}, v{OT+i}')
    a.e(f's_mov_b32 s{S_THR2}, {f32bits(cfg.thr):#x}'); a.e(f's_mov_b32 s{S_FLOOR2}, 0')
    a.e(f's_setpc_b64 s[{S_RET}:{S_RET+1}]')

    a.e('.section .rodata,"a"')
    a.e('.p2align 6'); a.e(f'.amdhsa_kernel {KN}')
    a.e('  .amdhsa_next_free_vgpr 512'); a.e('  .amdhsa_next_free_sgpr 102'); a.e('  .amdhsa_accum_offset 256')
    a.e('  .amdhsa_group_segment_fixed_size 0'); a.e('  .amdhsa_kernarg_size 104'); a.e('  .amdhsa_user_sgpr_count 2')
    a.e('  .amdhsa_user_sgpr_kernarg_segment_ptr 1'); a.e('  .amdhsa_system_sgpr_workgroup_id_x 1')
    a.e('  .amdhsa_float_denorm_mode_32 3'); a.e('  .amdhsa_float_denorm_mode_16_64 3')
    a.e('.end_amdhsa_kernel')
    probs = check(a.L)
    for (s0, s1) in loops: probs += check(a.L[s0:s1] + a.L[s0:s1])
    return a.text(), probs, nst[0]

if __name__ == '__main__':
    cfg = Cfg()
    for kv in sys.argv[2:]:
        k, v = kv.split('=', 1); setattr(cfg, k, eval(v))
    txt, probs, n = gen(cfg)
    for p in probs: print('HAZARD', p)
    open(sys.argv[1], 'w').write(txt)
    print('written', sys.argv[1], len(txt), 'stamps', n)
```

```python
import sys, struct, math
from asmlib import Asm, check

KN = 'concat_heads__gqa_block_cached__mha_block_cached__near_ridge_kernel'

V_LANE = 0
TRA = 16; KA = 24; DE, DO = 28, 29; ML = 30
def M_(qt): return ML + 2*qt
def L_(qt): return ML + 2*qt + 1
TMP = 36; S0 = 48; S1 = 72; P = 96; XT = 108; O = 120
IN = 48
QE, QO, OE, OO = 216, 217, 218, 219
V_L16, V_XB, V_ST = 220, 221, 222
ML2 = 224
OT = 230
def Oreg(tau, qt): return O + (tau*3 + qt)*4
def Sreg(buf, kt, qt): return (S0 if buf == 0 else S1) + (kt*3 + qt)*4
AQ, AX, AK, AV, ASAVE = 0, 48, 96, 128, 160
AQ2, AO2 = 48, 160
def ar(b, n): return f'a[{b}:{b+n-1}]'
def aq(qt, s): return ar(AQ + (qt*4 + s)*4, 4)
def ax(qt, s): return ar(AX + (qt*4 + s)*4, 4)
def vr(b, n): return f'v[{b}:{b+n-1}]' if n > 1 else f'v{b}'
R_FLG = 4
S_FG = {1: 8, 2: 9}
S_ISA = {1: 10, 2: 11}
STAMP0 = 12
SRD = {1: dict(K=28, V=32, WQ=36, X=40, WO=44, PT=48), 2: dict(K=52, V=56, WQ=60, X=64, WO=68, PT=72)}
S_W, S_LB, S_OFF, S_T = 76, 77, 78, 79
S_CNT, S_THR, S_FLOOR, S_C, S_RET = 86, 87, 88, 89, 90
S_WQO, S_XO, S_T2, S_T3, S_STEP, S_ROT, S_T4, S_W8 = 92, 93, 94, 95, 96, 97, 98, 99
S_HH = 3
S_THR2, S_FLOOR2 = 11, 48
S_KD = 48
S_RWP = 49
R_DBGK = 50
S_RW = 2
S_WB = 85
AUX = 131072
FLG_OFF = 0x2000000
QFLG = 4096
OFLG = 16384
MIMG_OFF = 0x2300000
QIMG_OFF = 0x2100000
R_QI = 64
S_QF = 8

class Cfg:
    afirst = 0x55
    flA = ' nt'
    flBK = ' nt'; flBV = ' nt'
    rotA = False
    rotW = True
    nt_w = False
    thr = 8.0
    st_flags = ' sc1'
    stamps = False
    fine = None
    dynflags = True
    late_st = True
    st_in_exch = True
    kv0_late = True
    fastpoll = True
    out_flags = ''
    rw_mode = 0
    pf_blocks = 0
    pf_flags = ''
    fake_joint = 0
    setup_stamp = False
    bb2_def = False
    dbuf = True
    early_stats = True
    aa_q2_first = False
    mini = 0
    pf_start = 0
    early_w = True
    rot_shift = 1
    rot_mode = 0
    stage_bb = False
    pf_keep = 16
    pf_first = 8

def f32bits(x): return struct.unpack('<I', struct.pack('<f', x))[0]

def gen(cfg=Cfg()):
    a = Asm()
    a.e(f'; @launch grid=(256,1,1) block=(256,1,1) lds=163840')
    for ln in (
        'Fused GQA (A) + MHA (B) attention blocks, one workgroup (4 waves) per CU, generated by a hand-written script.',
        'WG id: x8 = id&7, t = id>>3.  t<16: "AA" program (two A heads sharing one kv head, processed jointly), else "BB" (two B heads).',
        'Everything is computed transposed (Q^T = Wq^T x^T, S^T = K Q^T, O^T = V^T P^T, out^T = Wo^T O^T) with 16x16x32 bf16 MFMA;',
        'each wave streams its own keys (blocks of 32) through a private 4-slot LDS ring filled by LDS-DMA (source-swizzled rows),',
        'online softmax with the running max (deferred rescale, run-time checked), cross-wave combine through LDS,',
        'per-WG out-projection partials (bf16) in d_ws, final sum by the workgroups of each (branch,batch) group behind flags.',
        'AA workgroups also compute the second Q projection of their BB partner and prefetch its first K/V blocks.',
        'Hand-offs: sc1 stores -> vmcnt(0) -> flag; flags live in d_ws and are trusted only after the d_debug counter shows all were cleared.'):
        a.e('; ' + ln)
    a.e('.amdgcn_target "amdgcn-amd-amdhsa--gfx950"')
    a.e('.text')
    a.e(f'.globl {KN}'); a.e('.p2align 8'); a.e(f'.type {KN},@function'); a.label(KN)
    a.e('s_cmp_ge_u32 s2, 256'); a.e('s_cbranch_scc1 L_end')
    nst = [0]
    fon = [False]
    def fs():
        if not (cfg.fine and fon[0]): return
        a.e('s_memrealtime s[100:101]'); a.e('s_waitcnt lgkmcnt(0)'); a.e(f's_mov_b32 s{STAMP0+nst[0]}, s100'); nst[0] += 1
        assert nst[0] <= 16
    def stamp():
        if cfg.fine or not cfg.stamps: return
        a.e('s_memrealtime s[100:101]'); a.e('s_waitcnt lgkmcnt(0)'); a.e(f's_mov_b32 s{STAMP0+nst[0]}, s100'); nst[0] += 1
        assert nst[0] <= 16
    if cfg.stamps:
        a.e('s_memrealtime s[100:101]'); a.e('s_waitcnt lgkmcnt(0)'); a.e('v_mov_b32 v255, s100')
        a.e('s_memtime s[100:101]'); a.e('s_waitcnt lgkmcnt(0)'); a.e('v_mov_b32 v254, s100')
        a.e('v_mov_b32 v223, s2')
    a.e('s_load_dwordx16 s[12:27], s[0:1], 0')
    a.e('s_load_dwordx4 s[84:87], s[0:1], 64')
    a.e('s_load_dwordx4 s[88:91], s[0:1], 88')
    a.e(f'v_lshrrev_b32 v1, 6, v0')
    a.e(f'v_and_b32 v{V_LANE}, 63, v0')
    a.e(f'v_readfirstlane_b32 s{S_W}, v1')
    a.e(f'v_and_b32 v2, 15, v{V_LANE}'); a.e(f'v_lshrrev_b32 v3, 4, v{V_LANE}')
    a.e(f'v_lshlrev_b32 v{V_L16}, 4, v{V_LANE}')
    a.e(f's_lshl_b32 s{S_LB}, s{S_W}, 15')
    a.e('v_lshlrev_b32 v4, 1, v3'); a.e('v_xor_b32 v4, v2, v4'); a.e('v_lshlrev_b32 v4, 4, v4')
    a.e(f'v_lshl_add_u32 v{DE}, v3, 8, v4'); a.e(f'v_xor_b32 v{DO}, 0x80, v{DE}')
    a.e(f'v_lshl_add_u32 v{QE}, v3, 13, v4'); a.e(f'v_xor_b32 v{QO}, 0x80, v{QE}')
    a.e(f'v_lshl_add_u32 v{OE}, v3, 10, v4'); a.e(f'v_xor_b32 v{OO}, 0x80, v{OE}')
    a.e('v_and_b32 v5, 7, v2'); a.e('v_lshlrev_b32 v5, 1, v5')
    a.e('v_xor_b32 v6, v3, v5'); a.e('v_lshlrev_b32 v6, 4, v6')
    a.e('v_lshl_add_u32 v6, v2, 8, v6'); a.e(f'v_add_u32 v{KA}, s{S_LB}, v6')
    for s in range(1, 4): a.e(f'v_xor_b32 v{KA+s}, {s<<6}, v{KA}')
    a.e('v_lshrrev_b32 v6, 1, v3'); a.e('v_xor_b32 v6, v6, v5'); a.e('v_lshlrev_b32 v6, 4, v6')
    a.e('v_and_b32 v7, 1, v3'); a.e('v_lshl_add_u32 v6, v7, 3, v6')
    a.e('v_lshl_add_u32 v6, v2, 8, v6'); a.e(f'v_add_u32 v{V_XB}, s{S_LB}, v6')
    a.e('v_lshrrev_b32 v6, 2, v2'); a.e('v_lshl_add_u32 v6, v3, 2, v6')
    a.e('v_and_b32 v7, 7, v6'); a.e('v_lshlrev_b32 v7, 1, v7')
    a.e('v_bfe_u32 v8, v2, 1, 1'); a.e('v_xor_b32 v7, v8, v7'); a.e('v_lshlrev_b32 v7, 4, v7')
    a.e('v_and_b32 v8, 1, v2'); a.e('v_lshl_add_u32 v7, v8, 3, v7')
    a.e('v_lshl_add_u32 v7, v6, 8, v7'); a.e(f'v_add_u32 v7, s{S_LB}, v7')
    a.e(f's_lshl_b32 s{S_T}, s{S_W}, 1')
    for tau in range(8):
        a.e(f's_add_u32 s{S_T+1}, s{S_T}, {tau}'); a.e(f's_and_b32 s{S_T+1}, s{S_T+1}, 7'); a.e(f's_lshl_b32 s{S_T+1}, s{S_T+1}, 5')
        a.e(f'v_xor_b32 v{TRA+tau}, s{S_T+1}, v7')
    a.e(f's_mul_i32 s{S_T}, s{S_W}, 12288'); a.e(f'v_add_u32 v{V_ST}, s{S_T}, v{V_L16}')
    a.e(f's_lshl_b32 s{S_W8}, s{S_W}, 13')
    a.e('s_and_b32 s79, s2, 7'); a.e('s_lshr_b32 s80, s2, 3')
    a.e('s_and_b32 s94, s80, 15'); a.e('s_lshl_b32 s95, s79, 4'); a.e('s_add_u32 s95, s95, s94')
    a.e('s_lshr_b32 s92, s94, 1'); a.e('s_and_b32 s93, s94, 1'); a.e('s_lshl_b32 s96, s79, 1'); a.e('s_add_u32 s93, s93, s96')
    a.e('s_cmp_lt_u32 s80, 16'); a.e(f's_cselect_b32 s{S_ISA[1]}, 1, 0'); a.e(f's_mov_b32 s{S_ISA[2]}, s{S_ISA[1]}')
    a.e('s_cbranch_scc0 L_idB')
    a.e('s_lshr_b32 s81, s80, 1'); a.e(f's_and_b32 s{S_HH}, s80, 1')
    a.e('s_lshl_b32 s83, s79, 2'); a.e(f's_lshl_b32 s97, s{S_HH}, 1'); a.e('s_add_u32 s83, s83, s97')
    a.e('s_lshl_b32 s96, s81, 3'); a.e('s_add_u32 s79, s96, s79')
    a.e('s_branch L_iddone')
    a.label('L_idB')
    a.e('s_mov_b32 s81, s92'); a.e('s_mov_b32 s83, s93'); a.e(f's_mov_b32 s{S_HH}, 0')
    a.e('s_lshl_b32 s79, s81, 5'); a.e('s_add_u32 s79, s79, s83')
    a.label('L_iddone')
    if cfg.rotW: a.e(f's_and_b32 s{S_RW}, s81, 3')
    else: a.e(f's_mov_b32 s{S_RW}, 0')
    a.e('s_waitcnt lgkmcnt(0)')
    R = SRD[1]; R2 = SRD[2]
    a.e(f's_cmp_eq_u32 s{S_ISA[1]}, 1')
    for name, pa, pb in (('X', 12, 22), ('K', 14, 24), ('V', 16, 26), ('WQ', 18, 84), ('WO', 20, 86)):
        r = R[name]
        a.e(f's_cselect_b32 s{r}, s{pa}, s{pb}'); a.e(f's_cselect_b32 s{r+1}, s{pa+1}, s{pb+1}')
    a.e('s_mov_b32 s80, 0x800000'); a.e('s_cselect_b32 s80, 0, s80')
    a.e('s_lshl_b32 s96, s79, 19'); a.e('s_lshr_b32 s97, s79, 13')
    for name in ('K', 'V'):
        r = R[name]
        a.e(f's_add_u32 s{r}, s{r}, s96'); a.e(f's_addc_u32 s{r+1}, s{r+1}, s97')
        a.e(f's_mov_b32 s{r+2}, 0x80000'); a.e(f's_mov_b32 s{r+3}, 0x20000')
    r = R['X']; a.e('s_mul_i32 s96, s81, 49152')
    a.e(f's_add_u32 s{r}, s{r}, s96'); a.e(f's_addc_u32 s{r+1}, s{r+1}, 0'); a.e(f's_mov_b32 s{r+2}, 49152'); a.e(f's_mov_b32 s{r+3}, 0x20000')
    r = R['WQ']; a.e('s_lshl_b32 s96, s83, 8')
    a.e(f's_add_u32 s{r}, s{r}, s96'); a.e(f's_addc_u32 s{r+1}, s{r+1}, 0'); a.e(f's_sub_u32 s{r+2}, 0x400000, s96'); a.e(f's_mov_b32 s{r+3}, 0x20000')
    r = R['WO']; a.e('s_lshl_b32 s96, s83, 17')
    a.e(f's_add_u32 s{r}, s{r}, s96'); a.e(f's_addc_u32 s{r+1}, s{r+1}, 0'); a.e(f's_mov_b32 s{r+2}, 0x20000'); a.e(f's_mov_b32 s{r+3}, 0x20000')
    r = R2['V']; r1 = R['V']
    a.e(f's_add_u32 s{r}, s{r1}, s80'); a.e(f's_addc_u32 s{r+1}, s{r1+1}, 0'); a.e(f's_mov_b32 s{r+2}, 0x80000'); a.e(f's_mov_b32 s{r+3}, 0x20000')
    r = R2['WO']; r1 = R['WO']
    a.e(f's_cmp_eq_u32 s{S_ISA[1]}, 1'); a.e('s_mov_b32 s96, 0x200000'); a.e('s_cselect_b32 s96, 0x20000, s96')
    a.e(f's_add_u32 s{r}, s{r1}, s96'); a.e(f's_addc_u32 s{r+1}, s{r1+1}, 0'); a.e(f's_mov_b32 s{r+2}, 0x20000'); a.e(f's_mov_b32 s{r+3}, 0x20000')
    a.e(f's_mov_b32 s{S_KD}, s80')
    r = R2['K']; a.e('s_mul_i32 s96, s92, 49152')
    a.e(f's_add_u32 s{r}, s22, s96'); a.e(f's_addc_u32 s{r+1}, s23, 0'); a.e(f's_mov_b32 s{r+2}, 49152'); a.e(f's_mov_b32 s{r+3}, 0x20000')
    r = R2['WQ']; a.e('s_add_u32 s96, s93, 16'); a.e('s_lshl_b32 s96, s96, 8')
    a.e(f's_add_u32 s{r}, s84, s96'); a.e(f's_addc_u32 s{r+1}, s85, 0'); a.e(f's_sub_u32 s{r+2}, 0x400000, s96'); a.e(f's_mov_b32 s{r+3}, 0x20000')
    a.e(f's_and_b32 s{S_RWP}, s92, 3')
    a.e('s_mul_i32 s96, s95, 12288'); a.e(f's_add_u32 s96, s96, {QIMG_OFF:#x}')
    a.e(f's_add_u32 s{R_QI}, s90, s96'); a.e(f's_addc_u32 s{R_QI+1}, s91, 0'); a.e(f's_mov_b32 s{R_QI+2}, 12288'); a.e(f's_mov_b32 s{R_QI+3}, 0x20000')
    a.e(f's_lshl_b32 s96, s95, 7'); a.e(f's_add_u32 s{S_QF}, s96, {QFLG}')
    a.e('s_lshr_b32 s97, s83, 1')
    a.e(f's_cmp_eq_u32 s{S_ISA[1]}, 1'); a.e('s_cselect_b32 s94, 0, 8'); a.e('s_cselect_b32 s83, s97, s83'); a.e('s_add_u32 s94, s94, s81')
    r = SRD[2]['PT']; a.e('s_lshl_b32 s93, s94, 4'); a.e('s_add_u32 s93, s93, s83'); a.e('s_mul_i32 s96, s93, 49152')
    a.e(f's_add_u32 s{r}, s90, s96'); a.e(f's_addc_u32 s{r+1}, s91, 0'); a.e(f's_mov_b32 s{r+2}, 49152'); a.e(f's_mov_b32 s{r+3}, 0x20000')
    a.e('s_lshl_b32 s94, s94, 7'); a.e('s_lshl_b32 s96, s83, 2'); a.e(f's_add_u32 s{S_FG[2]}, s94, s96')
    a.e(f's_add_u32 s{R_FLG}, s90, {FLG_OFF:#x}'); a.e(f's_addc_u32 s{R_FLG+1}, s91, 0'); a.e(f's_mov_b32 s{R_FLG+2}, 36864'); a.e(f's_mov_b32 s{R_FLG+3}, 0x20000')
    a.e(f's_lshl_b32 s{S_WQO}, s{S_W}, 20'); a.e(f's_lshl_b32 s{S_XO}, s{S_W}, 8')
    a.e('s_mov_b32 s80, s88'); a.e('s_mov_b32 s81, s89'); a.e('s_mov_b32 s82, 256'); a.e('s_mov_b32 s83, 0x20000')
    a.e(f's_mov_b32 s{R_DBGK}, s88'); a.e(f's_mov_b32 s{R_DBGK+1}, s89')
    a.e(f's_mov_b32 s{S_C}, {f32bits(math.log2(math.e) / math.sqrt(128.0)):#x}')
    a.e(f's_cmp_lg_u32 s{S_W}, 0'); a.e('s_cbranch_scc1 L_noclear')
    a.e('s_mov_b64 exec, 1'); a.e('v_mov_b32 v1, 0')
    a.e(f'buffer_store_dword v1, v1, s[{R_FLG}:{R_FLG+3}], s{S_FG[2]} offen sc1')
    a.e(f's_cmp_eq_u32 s{S_ISA[1]}, 0'); a.e('s_cbranch_scc1 L_noclear2')
    a.e(f'buffer_store_dword v1, v1, s[{R_FLG}:{R_FLG+3}], s{S_QF} offen sc1')
    a.e(f'v_mov_b32 v2, {OFLG}')
    a.e(f'buffer_store_dword v1, v2, s[{R_FLG}:{R_FLG+3}], s{S_QF} offen sc1')
    a.label('L_noclear2')
    a.e('s_mov_b64 exec, -1')
    a.label('L_noclear')

    ntw = ' nt' if cfg.nt_w else ''
    pend = []
    def pump(n=1):
        for _ in range(n):
            if not pend: return
            tag, th = pend.pop(0); th()
    def flush(): pump(len(pend))
    def wait_vm(tag):
        while any(t == tag for t, _ in pend): pump()
        a.wait_vm(tag)
    DYN = 'DYN'
    dynid = [0]
    def dma(tag, srd, slot, vE, vO, RS, sbase, const, npieces=8, flags='', pre=None, dyn=None):
        for p in range(npieces):
            def th(p=p):
                if p == 0 and pre: pre()
                if p % 4 == 0: a.e(f's_add_u32 m0, s{S_LB}, {slot*8192 + (p//4)*4096}')
                off = const + p*4*RS - (p & 3)*1024
                if RS == 256:
                    if p % 4 == 0: a.e(f's_add_u32 s{S_T2}, s{sbase}, {off}')
                else:
                    a.e(f's_add_u32 s{S_T2}, s{sbase}, {off}')
                v = vE if p % 2 == 0 else vO
                if dyn is None:
                    a.vmop(tag, f'buffer_load_dwordx4 v{v}, s[{srd}:{srd+3}], s{S_T2} offen offset:{(p&3)*1024}{flags} lds')
                else:
                    isa, fa, fb = dyn
                    k = dynid[0]; dynid[0] += 1
                    a.e(f's_cmp_eq_u32 s{isa}, 0'); a.e(f's_cbranch_scc1 L_dyb{k}')
                    a.e(f'buffer_load_dwordx4 v{v}, s[{srd}:{srd+3}], s{S_T2} offen offset:{(p&3)*1024}{fa} lds')
                    a.e(f's_branch L_dye{k}'); a.label(f'L_dyb{k}')
                    a.vmop(tag, f'buffer_load_dwordx4 v{v}, s[{srd}:{srd+3}], s{S_T2} offen offset:{(p&3)*1024}{fb} lds')
                    a.label(f'L_dye{k}')
            pend.append((tag, th))
    def regload(tag, srd, regbase, sbase, flags, pre):
        for p in range(8):
            def th(p=p):
                if p == 0 and pre: pre()
                if p % 4 == 0: a.e(f's_add_u32 s{S_T2}, s{sbase}, {(p//4)*4096}')
                v = DE if p % 2 == 0 else DO
                a.vmop(tag, f'buffer_load_dwordx4 {ar(regbase+4*p, 4)}, v{v}, s[{srd}:{srd+3}], s{S_T2} offen offset:{(p&3)*1024}{flags}')
            pend.append((tag, th))
    def commit(regbase, slot):
        a.e(f'v_add_u32 v{TMP+11}, s{S_LB}, v{V_L16}')
        for p in range(8):
            a.e(f'ds_write_b128 v{TMP+11}, {ar(regbase+4*p, 4)} offset:{slot*8192+p*1024}')
    def dma_kv(n, u, which, slot, fl, reg=None):
        pre = None
        if which == 'K':
            def pre():
                a.e(f's_add_u32 s{S_T4}, s{S_STEP}, s{S_ROT}'); a.e(f's_and_b32 s{S_T4}, s{S_T4}, 3')
                a.e(f's_and_b32 s{S_OFF}, s{S_STEP}, -4'); a.e(f's_or_b32 s{S_OFF}, s{S_OFF}, s{S_T4}')
                a.e(f's_lshl_b32 s{S_OFF}, s{S_OFF}, 15'); a.e(f's_add_u32 s{S_OFF}, s{S_OFF}, s{S_W8}')
                a.e(f's_add_u32 s{S_STEP}, s{S_STEP}, 1')
            dyn = None
            if fl == DYN:
                fl = ''
                if cfg.dynflags and cfg.flA != cfg.flBK: dyn = (S_ISA[u], cfg.flA, cfg.flBK)
            if reg is not None: regload(f'R{reg}', SRD[u]['K'], reg, S_OFF, fl, pre)
            else: dma(f'K{n&1}', SRD[u]['K'], slot, DE, DO, 256, S_OFF, 0, flags=fl, pre=pre, dyn=dyn)
        else:
            def pre():
                a.e(f's_add_u32 s{S_T4}, s{S_VSTEP}, s{S_ROT}'); a.e(f's_and_b32 s{S_T4}, s{S_T4}, 3')
                a.e(f's_and_b32 s{S_OFFV}, s{S_VSTEP}, -4'); a.e(f's_or_b32 s{S_OFFV}, s{S_OFFV}, s{S_T4}')
                a.e(f's_lshl_b32 s{S_OFFV}, s{S_OFFV}, 15'); a.e(f's_add_u32 s{S_OFFV}, s{S_OFFV}, s{S_W8}')
                a.e(f's_add_u32 s{S_VSTEP}, s{S_VSTEP}, 1')
            dyn = None
            if fl == DYN:
                fl = ''
                if cfg.dynflags and cfg.flA != cfg.flBV: dyn = (S_ISA[u], cfg.flA, cfg.flBV)
            if reg is not None: regload(f'R{reg}', SRD[u]['V'], reg, S_OFFV, fl, pre)
            else: dma(f'V{n&1}', SRD[u]['V'], slot, DE, DO, 256, S_OFFV, 0, flags=fl, pre=pre, dyn=dyn)
    S_VSTEP, S_OFFV = 84, 83
    def rot_pre(j, base_sgpr, shift, rw=S_RW):
        def pre():
            a.e(f's_add_u32 s{S_WB}, s{rw}, {j}'); a.e(f's_and_b32 s{S_WB}, s{S_WB}, 3'); a.e(f's_lshl_b32 s{S_WB}, s{S_WB}, {shift}')
            a.e(f's_add_u32 s{S_WB}, s{S_WB}, s{base_sgpr}')
        return pre
    def dma_x(srd, part, slot, pfx=''): dma(f'{pfx}X{part}', srd, slot, OE, OO, 1024, S_XO, part*32*1024, npieces=8 if part == 0 else 4, flags=ntw)
    def dma_wq(srd, j, slot, rw=S_RW, pfx=''): dma(f'{pfx}W{j}', srd, slot, QE, QO, 8192, S_WB, 0, flags=ntw, pre=rot_pre(j, S_WQO, 18, rw))
    def dma_wo(u, s, slot): dma(f'WO{s}', SRD[u]['WO'], slot, OE, OO, 1024, S_WB, 0, flags=ntw, pre=rot_pre(s, S_XO, 15))

    def tr_reads(slot, buf=AV):
        for tau in range(8):
            a.e(f'ds_read_b64_tr_b16 {ar(buf+4*tau, 2)}, v{TRA+tau} offset:{slot*8192}')
            a.e(f'ds_read_b64_tr_b16 {ar(buf+4*tau+2, 2)}, v{TRA+tau} offset:{slot*8192+4096}')
    def k_reads(slot):
        for s in range(4):
            for kt in range(2):
                a.e(f'ds_read_b128 {ar(AK+(s*2+kt)*4, 4)}, v{KA+s} offset:{slot*8192+kt*4096}')
    def pv_mfmas(bfrag, first, buf=AV, acc2=False):
        out = []
        for tau in range(8):
            for qt in range(3):
                d = ar(AO2 + (tau*3+qt)*4, 4) if acc2 else vr(Oreg(tau, qt), 4)
                out.append(f'v_mfma_f32_16x16x32_bf16 {d}, {ar(buf+4*tau, 4)}, {bfrag(qt)}, {"0" if first else d}')
        return out
    def qk_mfmas(buf, qbase=AQ):
        out = []
        for s in range(4):
            for kt in range(2):
                for qt in range(3):
                    d = vr(Sreg(buf, kt, qt), 4)
                    out.append(f'v_mfma_f32_16x16x32_bf16 {d}, {ar(AK+(s*2+kt)*4, 4)}, {ar(qbase+(qt*4+s)*4, 4)}, {"0" if s == 0 else d}')
        return out
    def pvw(slot, bfrag, first, after_reads):
        tr_reads(slot)
        a.e('s_waitcnt lgkmcnt(0)')
        if after_reads: after_reads()
        for i, m in enumerate(pv_mfmas(bfrag, first)):
            a.e(m)
            if i % 3 == 2: pump()
    def proj(steps):
        if not cfg.dbuf:
            for tag, slot, bfrag, first, after in steps:
                wait_vm(tag); pvw(slot, bfrag, first, after)
            return
        bufs = [AV, AK]
        wait_vm(steps[0][0]); tr_reads(steps[0][1], bufs[0])
        for i, (tag, slot, bfrag, first, after) in enumerate(steps):
            a.e('s_waitcnt lgkmcnt(0)')
            if after: after()
            for k, m in enumerate(pv_mfmas(bfrag, first, bufs[i & 1])):
                a.e(m)
                if k % 3 == 2: pump()
                if k == 8 and i + 1 < len(steps):
                    wait_vm(steps[i+1][0]); tr_reads(steps[i+1][1], bufs[(i+1) & 1])
    def interleave(mf, va, extras):
        tot = sum(c for c, _ in va)
        n = len(mf); done = 0; vi = 0
        if n == 0:
            for c, s_ in va: a.e(s_)
            for k in sorted(extras): extras[k]()
            return
        for i, m in enumerate(mf):
            a.e(m)
            target = tot * (i + 1) / n
            while vi < len(va) and done + va[vi][0] / 2 <= target:
                a.e(va[vi][1]); done += va[vi][0]; vi += 1
            if i in extras: extras[i]()
        while vi < len(va): a.e(va[vi][1]); vi += 1
    def sm_exp_cvt(buf):
        va = []
        def exps(qt):
            for kt in range(2):
                for r in range(4):
                    x = Sreg(buf, kt, qt) + r; va.append((8, f'v_exp_f32 v{x}, v{x}'))
        def cvts(qt):
            for kt in range(2):
                x = Sreg(buf, kt, qt)
                va.append((4, f'v_cvt_pk_bf16_f32 v{P+qt*4+kt*2}, v{x}, v{x+1}'))
                va.append((4, f'v_cvt_pk_bf16_f32 v{P+qt*4+kt*2+1}, v{x+2}, v{x+3}'))
        exps(0); exps(1); cvts(0); exps(2); cvts(1); cvts(2)
        return va
    def sm_adds(buf, ml=ML):
        va = []
        for kt in range(2):
            for r in range(4):
                for qt in range(3):
                    va.append((4, f'v_add_f32 v{ml+2*qt+1}, v{ml+2*qt+1}, v{Sreg(buf, kt, qt)+r}'))
        return va
    def sm_first(buf, ml=ML):
        va = []
        for kt in range(2):
            for qt in range(3):
                for r in range(4):
                    x = Sreg(buf, kt, qt) + r
                    va.append((4, f'v_fma_f32 v{x}, v{x}, s{S_C}, -v{ml+2*qt}'))
        for qt in range(3):
            r0 = Sreg(buf, 0, qt); va.append((4, f'v_max3_f32 v{TMP+qt}, v{r0}, v{r0+1}, v{r0+2}'))
        for qt in range(3):
            r0 = Sreg(buf, 0, qt); r1 = Sreg(buf, 1, qt); va.append((4, f'v_max3_f32 v{TMP+qt}, v{TMP+qt}, v{r0+3}, v{r1}'))
        for qt in range(3):
            r1 = Sreg(buf, 1, qt); va.append((4, f'v_max3_f32 v{TMP+qt}, v{TMP+qt}, v{r1+1}, v{r1+2}'))
        for qt in range(3):
            r1 = Sreg(buf, 1, qt); va.append((4, f'v_max_f32 v{TMP+qt}, v{TMP+qt}, v{r1+3}'))
        va.append((4, f'v_max3_f32 v{TMP+3}, v{TMP}, v{TMP+1}, v{TMP+2}'))
        return va
    site = [0]
    def sm_check(buf, joint=False):
        thr = S_THR2 if (joint and buf == 1) else S_THR
        a.e(f'v_cmp_lt_f32 vcc, s{thr}, v{TMP+3}')
        k = site[0]; site[0] += 1
        a.e(f's_cbranch_vccz L_fast{k}')
        a.e(f's_call_b64 s[{S_RET}:{S_RET+1}], L_rescale{"J1" if (joint and buf == 1) else buf}')
        a.label(f'L_fast{k}')
    def kslot(sl, n): return sl(2) if n % 2 == 0 else sl(0)
    def vslot(sl, n): return sl(3) if n % 2 == 0 else sl(1)

    def stage1(i, sl, do_qk, enq):
        a.e('s_waitcnt lgkmcnt(0)')
        if enq: enq()
        mf = qk_mfmas((i+1) & 1) if do_qk else []
        def vread():
            wait_vm(f'V{i&1}'); tr_reads(vslot(sl, i))
        ex = {}
        if do_qk:
            for k in (1, 4, 7, 13, 16, 19, 21, 23): ex[k] = pump
            ex[10] = vread
        else:
            vread()
        interleave(mf, sm_exp_cvt(i & 1), ex)
        flush()
    def stage2(i, sl, do_next, enq, kread_next):
        a.e('s_waitcnt lgkmcnt(0)')
        if enq: enq()
        mf = pv_mfmas(lambda qt: vr(P+qt*4, 4), False)
        va = sm_adds(i & 1) + (sm_first((i+1) & 1) if do_next else [])
        ex = {}
        for k in (1, 4, 7, 13, 16, 19, 21, 23): ex[k] = pump
        if kread_next:
            def kread():
                wait_vm(f'K{i&1}'); k_reads(kslot(sl, i+2))
            ex[10] = kread
        interleave(mf, va, ex)
        flush()
        if do_next: sm_check((i+1) & 1)

    def jstage1(n, sl, do_qk, enq):
        if n % 2 == 1: a.e('s_waitcnt lgkmcnt(0)')
        if enq: enq()
        mf = qk_mfmas((n+1) & 1, AQ2 if (n+1) & 1 else AQ) if do_qk else []
        ex = {}
        if do_qk:
            for k in (3, 9, 15, 21): ex[k] = pump
        def vread():
            wait_vm(f'V{(n//2)&1}'); tr_reads(vslot(sl, n//2))
        if n % 2 == 0:
            if do_qk: ex[11] = vread
            else: vread()
        interleave(mf, sm_exp_cvt(n & 1), ex)
        if not do_qk: pump(4)
    def jstage2(n, sl, do_next, enq, kread_next):
        if n % 2 == 0: a.e('s_waitcnt lgkmcnt(0)')
        if enq: enq()
        mf = pv_mfmas(lambda qt: vr(P+qt*4, 4), False, acc2=bool(n & 1))
        va = sm_adds(n & 1, ML2 if n & 1 else ML) + (sm_first((n+1) & 1, ML2 if (n+1) & 1 else ML) if do_next else [])
        ex = {}
        for k in (3, 9, 15, 21): ex[k] = pump
        if n % 2 == 0 and kread_next:
            def kread():
                wait_vm(f'K{(n//2+1)&1}'); k_reads(kslot(sl, n//2+1))
            ex[11] = kread
        interleave(mf, va, ex)
        if do_next: sm_check((n+1) & 1, joint=True)

    def allreduce(reg, op):
        t = TMP + 10
        a.e(f'v_mov_b32 v{t}, v{reg}'); a.nop(2)
        a.e(f'v_permlane32_swap_b32 v{reg}, v{t}'); a.nop(1)
        a.e(f'{op} v{reg}, v{reg}, v{t}')
        a.e(f'v_mov_b32 v{t}, v{reg}'); a.nop(2)
        a.e(f'v_permlane16_swap_b32 v{reg}, v{t}'); a.nop(1)
        a.e(f'{op} v{reg}, v{reg}, v{t}')

    def allreduce3(regs, op):
        t = TMP + 8
        for stage in ('v_permlane32_swap_b32', 'v_permlane16_swap_b32'):
            for i, r in enumerate(regs): a.e(f'v_mov_b32 v{t+i}, v{r}')
            a.nop(1)
            for i, r in enumerate(regs): a.e(f'{stage} v{r}, v{t+i}')
            a.nop(1)
            for i, r in enumerate(regs): a.e(f'{op} v{r}, v{r}, v{t+i}')
    def exchange(kind, slotA, slotB, after_in, inter=None, qdst=AQ, agpr=False, stoff=6144, odst=AX, mini=False, extra=False):
        a.c(f'--- exchange {kind}')
        t = TMP
        FA = 1
        if kind == 'O':
            a.e(f'v_and_b32 v{t}, 15, v{V_LANE}'); a.e(f'v_lshlrev_b32 v{t}, 3, v{t}')
            for rho in range(4):
                a.e(f's_sub_u32 s{S_T}, s{S_W}, {rho}'); a.e(f's_and_b32 s{S_T}, s{S_T}, 3'); a.e(f's_lshl_b32 s{S_T}, s{S_T}, 13')
                a.e(f's_add_u32 s{S_T}, s{S_T}, {AUX+stoff}'); a.e(f'v_add_u32 v{t+1+rho}, s{S_T}, v{t}')
            for rho in range(4):
                for qt in range(3):
                    a.e(f'ds_read_b64 {vr(IN+(rho*3+qt)*2, 2)}, v{t+1+rho} offset:{qt*128}')
        for rho in (1, 2, 3):
            a.e(f's_add_u32 s{S_T}, s{S_W}, {rho}'); a.e(f's_and_b32 s{S_T}, s{S_T}, 3')
            if rho < 3: a.e(f's_lshl_b32 s{S_T}, s{S_T}, 15')
            else: a.e(f's_lshl_b32 s{S_T}, s{S_T}, 13'); a.e(f's_add_u32 s{S_T}, s{S_T}, {AUX}')
            a.e(f'v_add_u32 v{t+5+rho}, s{S_T}, v{V_L16}')
        inter = list(inter or [])
        for rho in (1, 2, 3):
            base = {1: slotA*8192, 2: slotB*8192, 3: 0}[rho]
            for i in range(6):
                src = ar(AO2+24*rho+4*i, 4) if agpr else vr(O+24*rho+4*i, 4)
                a.e(f'ds_write_b128 v{t+5+rho}, {src} offset:{base+i*1024}')
                if inter: inter.pop(0)()
        while inter: inter.pop(0)()
        OW = OT if agpr else O
        if agpr:
            for i in range(24): a.e(f'v_accvgpr_read_b32 v{OT+i}, a{AO2+i}')
        if kind == 'O':
            a.e('s_waitcnt lgkmcnt(15)')
            for qt in range(3):
                m = lambda rho: IN + (rho*3+qt)*2
                mm = t
                a.e(f'v_max3_f32 v{mm}, v{m(0)}, v{m(1)}, v{m(2)}'); a.e(f'v_max_f32 v{mm}, v{mm}, v{m(3)}')
                mA, lA = ML2 + 2*qt, ML2 + 2*qt + 1
                if extra: a.e(f'v_max_f32 v{mm}, v{mm}, v{mA}')
                for rho in range(4): a.e(f'v_sub_f32 v{m(rho)}, v{m(rho)}, v{mm}')
                if extra: a.e(f'v_sub_f32 v{mA}, v{mA}, v{mm}')
                for rho in range(4): a.e(f'v_exp_f32 v{m(rho)}, v{m(rho)}')
                if extra: a.e(f'v_exp_f32 v{mA}, v{mA}')
                a.nop(1)
                a.e(f'v_mul_f32 v{t+1}, v{m(0)}, v{m(0)+1}')
                for rho in range(1, 4): a.e(f'v_fma_f32 v{t+1}, v{m(rho)}, v{m(rho)+1}, v{t+1}')
                if extra:
                    a.e(f'v_mul_f32 v{mA}, v{mA}, v{lA}'); a.e(f'v_add_f32 v{t+1}, v{t+1}, v{mA}')
                if mini:
                    a.e(f'v_mov_b32 v{M_(qt)}, v{mm}'); a.e(f'v_mov_b32 v{L_(qt)}, v{t+1}')
                a.e(f'v_rcp_f32 v{t+1}, v{t+1}'); a.nop(1)
                for rho in range(4): a.e(f'v_mul_f32 v{FA+rho*3+qt}, v{m(rho)}, v{t+1}')
                if extra: a.e(f'v_mul_f32 v{13+qt}, v{mA}, v{t+1}')
        a.e(f'v_add_u32 v{t+2}, s{S_LB}, v{V_L16}')
        a.e(f's_lshl_b32 s{S_T}, s{S_W}, 13'); a.e(f's_add_u32 s{S_T}, s{S_T}, {AUX}')
        a.e(f'v_add_u32 v{t+3}, s{S_T}, v{V_L16}')
        a.e('s_waitcnt lgkmcnt(0)'); a.e('s_barrier')
        for rho in (1, 2, 3):
            for i in range(6):
                if rho < 3: a.e(f'ds_read_b128 {vr(IN+24*(rho-1)+4*i, 4)}, v{t+2} offset:{ {1: slotA*8192, 2: slotB*8192}[rho] + i*1024}')
                else: a.e(f'ds_read_b128 {vr(IN+24*(rho-1)+4*i, 4)}, v{t+3} offset:{i*1024}')
        if kind == 'Q':
            a.e(f'v_lshrrev_b32 v{t+4}, 5, v{V_LANE}'); a.e(f'v_lshlrev_b32 v{t+4}, 8, v{t+4}')
            a.e(f'v_and_b32 v{t+5}, 15, v{V_LANE}'); a.e(f'v_lshl_add_u32 v{t+4}, v{t+5}, 4, v{t+4}')
            a.e(f'v_bfe_u32 v{t+5}, v{V_LANE}, 4, 1'); a.e(f'v_lshl_add_u32 v{t+4}, v{t+5}, 3, v{t+4}')
            a.e(f'v_add_u32 v{t+4}, s{S_T}, v{t+4}')
            uoff = 512
        else:
            a.e(f'v_add_u32 v{t+4}, s{S_T}, v{V_L16}')
            uoff = 8
            for i in range(6):
                for r in range(4): a.e(f'v_mul_f32 v{OW+4*i+r}, v{OW+4*i+r}, v{FA+(i%3)}')
        a.e('s_waitcnt lgkmcnt(12)')
        for rho in (1, 2, 3):
            if rho == 2: a.e('s_waitcnt lgkmcnt(6)')
            if rho == 3:
                a.e('s_waitcnt lgkmcnt(0)')
                if after_in: after_in()
            for i in range(6):
                for r in range(4):
                    x = OW + 4*i + r; y = IN + 24*(rho-1) + 4*i + r
                    if kind == 'O': a.e(f'v_fmac_f32 v{x}, v{y}, v{FA+rho*3+(i%3)}')
                    else: a.e(f'v_add_f32 v{x}, v{x}, v{y}')
        if extra:
            for i in range(6):
                for r in range(4): a.e(f'v_fmac_f32 v{OW+4*i+r}, v{OT+4*i+r}, v{13+(i%3)}')
        if mini: return
        for tau in range(2):
            for qt in range(3):
                x = OW + (tau*3+qt)*4; d = IN + (tau*3+qt)*2
                a.e(f'v_cvt_pk_bf16_f32 v{d}, v{x}, v{x+1}'); a.e(f'v_cvt_pk_bf16_f32 v{d+1}, v{x+2}, v{x+3}')
        for tau in range(2):
            for qt in range(3):
                d = IN + (tau*3+qt)*2
                a.e(f'ds_write_b64 v{t+4}, {vr(d, 2)} offset:{qt*1024 + tau*uoff}')
        pump(4)
        if kind == 'O':
            for s in range(4):
                a.e(f's_add_u32 s{S_T}, s{S_RW}, {s}'); a.e(f's_and_b32 s{S_T}, s{S_T}, 3'); a.e(f's_lshl_b32 s{S_T}, s{S_T}, 13')
                a.e(f's_add_u32 s{S_T}, s{S_T}, {AUX}'); a.e(f'v_add_u32 v{t+5+s}, s{S_T}, v{V_L16}')
        else:
            a.e(f'v_add_u32 v{t+5}, {AUX}, v{V_L16}')
        a.e('s_waitcnt lgkmcnt(0)'); a.e('s_barrier')
        for s in range(4):
            for qt in range(3):
                if kind == 'Q': a.e(f'ds_read_b128 {ar(qdst + (qt*4 + s)*4, 4)}, v{t+5} offset:{s*8192 + qt*1024}')
                else: a.e(f'ds_read_b128 {ar(odst + (qt*4 + s)*4, 4)}, v{t+5+s} offset:{qt*1024}')
        pump(4)
        a.e('s_waitcnt lgkmcnt(0)')

    def set_flag(u, lbl):
        a.e(f's_cmp_lg_u32 s{S_W}, 0'); a.e(f's_cbranch_scc1 {lbl}')
        a.e('s_mov_b64 exec, 1'); a.e(f'v_mov_b32 v{TMP}, 0'); a.e(f'v_mov_b32 v{TMP+1}, 1')
        a.e(f'buffer_store_dword v{TMP+1}, v{TMP}, s[{R_FLG}:{R_FLG+3}], s{S_FG[u]} offen sc1')
        a.e('s_mov_b64 exec, -1')
        a.label(lbl)
        a.nop(2)

    def store_thunks(u):
        r = SRD[u]['PT']
        out = []
        for qt in range(3):
            for pi in range(4):
                def th(qt=qt, pi=pi):
                    d = IN + (qt*4+pi)*4
                    if pi == 0: a.e(f's_mov_b32 s{S_T3}, {qt*4096}')
                    a.vmop('ST', f'buffer_store_dwordx4 {vr(d, 4)}, v{V_ST}, s[{r}:{r+3}], s{S_T3} offen offset:{pi*1024}{cfg.st_flags}')
                out.append(th)
        return out
    def stores(u):
        for i, th in enumerate(store_thunks(u)):
            th()
            if i % 4 == 3: pump()
    loops = []
    PREF = [None]
    def qphase2(srdWQ, rw, sl, after_step, after_in, pfx, qdst, xb=AX):
        wslot = [sl(2), sl(3), sl(0), sl(1)]
        proj([(f'{pfx}W{j}', wslot[j], (lambda qt, j=j: ar(xb + (qt*4 + j)*4, 4)), j == 0, after_step[j]) for j in range(4)])
        flush()
        a.nop(8)
        a.e('s_barrier')
        exchange('Q', sl(0), sl(1), after_in, qdst=qdst)
        flush()
    def qphase(srdWQ, rw, sl, after_step, after_in, pfx='', count=False, xb=AX, pre_b=None, post_b=None):
        for j in range(4):
            a.e(f's_add_u32 s{S_T}, s{rw}, {j}'); a.e(f's_and_b32 s{S_T}, s{S_T}, 3'); a.e(f's_lshl_b32 s{S_T}, s{S_T}, 6')
            a.e(f'v_xor_b32 v{TMP+2*j}, s{S_T}, v{V_XB}'); a.e(f'v_xor_b32 v{TMP+2*j+1}, 32, v{TMP+2*j}')
        wait_vm(f'{pfx}X1')
        if count:
            a.e(f's_cmp_lg_u32 s{S_W}, 0'); a.e(f's_cbranch_scc1 L_nocount{count}')
            a.e('s_mov_b64 exec, 1'); a.e('v_mov_b32 v1, 0'); a.e('v_mov_b32 v2, 1')
            a.e('buffer_atomic_add v2, v1, s[80:83], 0 offen sc1')
            a.e('s_mov_b64 exec, -1')
            a.label(f'L_nocount{count}')
        for qt in range(3):
            for j in range(4):
                for uu in range(2):
                    r = xb + (qt*4 + j)*4 + uu*2
                    off = (sl(0)*8192 + qt*4096) if qt < 2 else sl(1)*8192
                    a.e(f'ds_read_b64 a[{r}:{r+1}], v{TMP+2*j+uu} offset:{off}')
        a.e('s_waitcnt lgkmcnt(0)')
        dma_wq(srdWQ, 2, sl(0), rw, pfx); dma_wq(srdWQ, 3, sl(1), rw, pfx); flush()
        wslot = [sl(2), sl(3), sl(0), sl(1)]
        proj([(f'{pfx}W{j}', wslot[j], (lambda qt, j=j: ar(xb + (qt*4 + j)*4, 4)), j == 0, after_step[j]) for j in range(4)])
        flush()
        a.nop(8)
        if pre_b: pre_b()
        a.e('s_barrier')
        if post_b: post_b()
        exchange('Q', sl(0), sl(1), after_in)
        flush()

    def unit(u, br):
        isA = br == 'A'
        sg = 2 if (u == 2 and isA and not cfg.aa_q2_first) else 0
        sl = lambda n: (n + sg) & 3
        fk, fv = (cfg.flA, cfg.flA) if isA else (cfg.flBK, cfg.flBV)
        if cfg.bb2_def and u == 2 and not isA: fk, fv = '', ''
        a.c(f'================ {br}{br} unit {u}')
        q2f = cfg.aa_q2_first and isA
        if u == 1 and q2f:
            a.e(f's_mov_b32 s{S_STEP}, 0'); a.e(f's_mov_b32 s{S_VSTEP}, 0')
            W2 = SRD[2]['WQ']
            qphase(SRD[1]['WQ'], S_RW, sl,
                   [lambda: dma_wq(W2, 0, sl(2), S_RW, 'z'), lambda: dma_wq(W2, 1, sl(3), S_RW, 'z'), None, None],
                   lambda: (dma_wq(W2, 2, sl(0), S_RW, 'z'), dma_wq(W2, 3, sl(1), S_RW, 'z')))
            qphase2(W2, S_RW, sl,
                    [None, None, lambda: dma_kv(0, u, 'K', sl(2), fk), lambda: dma_kv(0, u, 'V', sl(3), fv)],
                    lambda: dma_kv(1, u, 'K', sl(0), fk), 'z', ASAVE)
        elif u == 2 and q2f:
            pass
        elif not (u == 2 and not isA):
            a.e(f's_mov_b32 s{S_STEP}, 0'); a.e(f's_mov_b32 s{S_VSTEP}, 0')
            j0 = 2 if cfg.kv0_late else 0
            steps = [None]*4
            steps[j0] = lambda: dma_kv(0, u, 'K', sl(2), fk)
            steps[j0+1] = lambda: dma_kv(0, u, 'V', sl(3), fv)
            qphase(SRD[u]['WQ'], S_RW, sl, steps, lambda: dma_kv(1, u, 'K', sl(0), fk), count=('B' if (u == 1 and not isA) else False))
        else:
            wait_vm('QF')
        stamp()
        if cfg.fake_joint and isA and u == 2:
            a.wait_vm_all()
            PREF[0]([(16, 16 - cfg.fake_joint, cfg.fake_joint)], 'b')
            a.wait_vm_all()
            stamp(); stamp()
            dma_wo(u, 0, sl(2)); dma_wo(u, 1, sl(3)); flush()
            a.e('s_barrier')
            exchange('O', sl(0), sl(1), lambda: (dma_wo(u, 2, sl(0)), dma_wo(u, 3, sl(1))))
            stamp()
            oslot = [sl(2), sl(3), sl(0), sl(1)]
            for s_ in range(4):
                wait_vm(f'WO{s_}')
                pvw(oslot[s_], lambda qt, s_=s_: ax(qt, s_), s_ == 0, None)
            a.nop(8)
            stamp()
            for qt in range(3):
                for pi in range(4):
                    d = IN + (qt*4+pi)*4
                    for h2 in range(2):
                        x = Oreg(2*pi+h2, qt)
                        a.e(f'v_cvt_pk_bf16_f32 v{d+2*h2}, v{x}, v{x+1}'); a.e(f'v_cvt_pk_bf16_f32 v{d+2*h2+1}, v{x+2}, v{x+3}')
            stores(u)
            return
        wait_vm('K0'); k_reads(sl(2))
        for i in range(96): a.e(f'v_mov_b32 v{O+i}, 0')
        for qt in range(3):
            a.e(f'v_mov_b32 v{M_(qt)}, 0'); a.e(f'v_mov_b32 v{L_(qt)}, 0')
        a.e(f's_mov_b32 s{S_THR}, 0xff800000'); a.e(f's_mov_b32 s{S_FLOOR}, 0xff800000')
        a.e('s_waitcnt lgkmcnt(0)')
        dma_kv(2, u, 'K', sl(2), fk); dma_kv(1, u, 'V', sl(1), fv)
        for i, m in enumerate(qk_mfmas(0)):
            a.e(m)
            if i % 3 == 2: pump()
        wait_vm('K1'); k_reads(sl(0))
        flush()
        a.nop(4)
        for c, s_ in sm_first(0): a.e(s_)
        sm_check(0)
        assert a.vm[-16:] == ['K0']*8 + ['V1']*8, a.vm
        steady = ['V0']*8 + ['K0']*8 + ['V1']*8
        a.e(f's_mov_b32 s{S_CNT}, {6 - (cfg.mini//2 if (u == 2 and not isA) else 0)}')
        a.vm = list(steady)
        a.label(f'L_loop{br}{u}')
        start = len(a.L)
        for i in (0, 1):
            stage1(i, sl, True, lambda i=i: dma_kv(i+3, u, 'K', kslot(sl, i+3), fk))
            stage2(i, sl, True, lambda i=i: dma_kv(i+2, u, 'V', vslot(sl, i+2), fv), True)
        a.e(f's_sub_u32 s{S_CNT}, s{S_CNT}, 1'); a.e(f's_cmp_lg_u32 s{S_CNT}, 0'); a.e(f's_cbranch_scc1 L_loop{br}{u}')
        assert not pend and a.vm[-24:] == steady, a.vm
        loops.append((start, len(a.L)))
        stamp()
        getq = (u == 1 and not isA)
        def qcnt_load():
            a.e(f's_mov_b32 s36, s{R_DBGK}'); a.e(f's_mov_b32 s37, s{R_DBGK+1}'); a.e('s_mov_b32 s38, 256'); a.e('s_mov_b32 s39, 0x20000')
            a.e('v_mov_b32 v15, 0')
            a.vmop('QC1', 'buffer_load_dword v14, v15, s[36:39], 0 offen sc1')
        def qflag_loads():
            wait_vm('QC1')
            a.e(f's_mov_b32 s{S_T}, 20000')
            a.label('L_cchk')
            a.e(f'v_readfirstlane_b32 s{S_T3}, v14'); a.e('s_nop 3')
            a.e(f's_cmp_eq_u32 s{S_T3}, 256'); a.e('s_cbranch_scc1 L_cok')
            a.e('s_sleep 2')
            a.e('buffer_load_dword v14, v15, s[36:39], 0 offen sc1'); a.e('s_waitcnt vmcnt(0)')
            a.e(f's_sub_u32 s{S_T}, s{S_T}, 1'); a.e(f's_cmp_lg_u32 s{S_T}, 0'); a.e('s_cbranch_scc1 L_cchk')
            a.label('L_cok')
            a.vmop('QC', f'buffer_load_dword v13, v15, s[{R_FLG}:{R_FLG+3}], s{S_QF} offen sc1')
        getm = (u == 2 and not isA and cfg.mini)
        def mflag_load():
            build_mi()
            a.e(f'v_mov_b32 v15, {OFLG}')
            a.vmop('MC', f'buffer_load_dword v13, v15, s[{R_FLG}:{R_FLG+3}], s{S_QF} offen sc1')
        def mdata_loads():
            wait_vm('MC')
            a.e(f's_mov_b32 s{S_T}, 20000')
            a.label('L_mchk')
            a.e(f'v_readfirstlane_b32 s{S_T3}, v13'); a.e('s_nop 3')
            a.e(f's_cmp_eq_u32 s{S_T3}, 1'); a.e('s_cbranch_scc1 L_mok')
            a.e('s_sleep 2')
            a.e(f'buffer_load_dword v13, v15, s[{R_FLG}:{R_FLG+3}], s{S_QF} offen sc1'); a.e('s_waitcnt vmcnt(0)')
            a.e(f's_sub_u32 s{S_T}, s{S_T}, 1'); a.e(f's_cmp_lg_u32 s{S_T}, 0'); a.e('s_cbranch_scc1 L_mchk')
            a.label('L_mok')
            a.e(f's_mul_i32 s{S_T3}, s{S_W}, 6144')
            for i in range(6):
                if i == 4: a.e(f's_add_u32 s{S_T3}, s{S_T3}, 4096')
                a.vmop('MD', f'buffer_load_dwordx4 {vr(OT+4*i, 4)}, v{V_L16}, s[{R_QI}:{R_QI+3}], s{S_T3} offen offset:{(i%4)*1024} sc1')
            a.e(f'v_and_b32 v14, 15, v{V_LANE}'); a.e('v_lshlrev_b32 v14, 3, v14'); a.e(f's_mov_b32 s{S_T3}, 24576')
            for qt in range(3):
                a.vmop('MD', f'buffer_load_dwordx2 {vr(ML2+2*qt, 2)}, v14, s[{R_QI}:{R_QI+3}], s{S_T3} offen offset:{qt*128} sc1')
        stage1(12, sl, True, lambda: ((qcnt_load() if getq else None), dma_kv(15, u, 'K', kslot(sl, 15), fk)))
        stage2(12, sl, True, lambda: dma_kv(14, u, 'V', vslot(sl, 14), fv), True)
        stage1(13, sl, True, lambda: ((mflag_load() if (u == 2 and not isA and cfg.mini) else None), dma_wo(u, 0, sl(2))))
        stage2(13, sl, True, lambda: dma_kv(15, u, 'V', vslot(sl, 15), fv), True)
        stg = getq and cfg.stage_bb
        def s114():
            if getm: mdata_loads()
            if getq: qflag_loads()
            if stg:
                a.e(f's_mov_b32 s{S_STEP}, 0'); dma_kv(0, 2, 'K', None, fk, reg=ASAVE)
        def s115():
            a.e(f's_mov_b32 s{S_VSTEP}, 0'); dma_kv(0, 2, 'V', None, fv, reg=ASAVE+32)
        def s215():
            dma_kv(1, 2, 'K', None, fk, reg=ASAVE+64)
        stage1(14, sl, True, s114 if (getq or stg or getm) else None)
        stage2(14, sl, True, lambda: dma_wo(u, 1, sl(3)), False)
        stage1(15, sl, False, s115 if stg else None)
        stage2(15, sl, False, s215 if stg else None, False)
        stamp()
        if getq:
            wait_vm('QC')
            a.e(f's_mov_b32 s{S_T}, 20000')
            a.label('L_qchk')
            a.e(f'v_readfirstlane_b32 s{S_T3}, v13'); a.e('s_nop 3')
            a.e(f's_cmp_eq_u32 s{S_T3}, 1'); a.e('s_cbranch_scc1 L_qok')
            a.e('s_sleep 2')
            a.e(f'buffer_load_dword v13, v15, s[{R_FLG}:{R_FLG+3}], s{S_QF} offen sc1'); a.e('s_waitcnt vmcnt(0)')
            a.e(f's_sub_u32 s{S_T}, s{S_T}, 1'); a.e(f's_cmp_lg_u32 s{S_T}, 0'); a.e('s_cbranch_scc1 L_qchk')
            a.label('L_qok')
            for s_ in range(4):
                for qt in range(3):
                    idx = s_*3 + qt
                    if idx % 4 == 0: a.e(f's_mov_b32 s{S_T3}, {(idx//4)*4096}')
                    a.vmop('QF', f'buffer_load_dwordx4 {aq(qt, s_)}, v{V_L16}, s[{R_QI}:{R_QI+3}], s{S_T3} offen offset:{(idx%4)*1024} sc1')
            if not cfg.stage_bb: a.e(f's_mov_b32 s{S_STEP}, 0'); a.e(f's_mov_b32 s{S_VSTEP}, 0')
        if u == 1 and q2f:
            for i in range(48): a.e(f'v_accvgpr_mov_b32 a{AQ+i}, a{ASAVE+i}')
            a.e(f's_mov_b32 s{S_STEP}, 0'); a.e(f's_mov_b32 s{S_VSTEP}, 0')
        a.c('--- stats')
        allreduce3([L_(qt) for qt in range(3)], 'v_add_f32')
        t = TMP
        a.e(f'v_and_b32 v{t}, 15, v{V_LANE}'); a.e(f'v_lshlrev_b32 v{t}, 3, v{t}')
        a.e(f's_lshl_b32 s{S_T}, s{S_W}, 13'); a.e(f's_add_u32 s{S_T}, s{S_T}, {AUX+6144}'); a.e(f'v_add_u32 v{t+1}, s{S_T}, v{t}')
        for qt in range(3): a.e(f'ds_write_b64 v{t+1}, {vr(M_(qt), 2)} offset:{qt*128}')
        a.e('s_waitcnt lgkmcnt(0)'); a.e('s_barrier')
        if getm: wait_vm('MD')
        exchange('O', sl(0), sl(1), lambda: (dma_wo(u, 2, sl(0)), dma_wo(u, 3, sl(1))), extra=bool(getm))
        stamp()
        oslot = [sl(2), sl(3), sl(0), sl(1)]
        if u == 2:
            for i in range(96): a.e(f'v_accvgpr_read_b32 v{O+i}, a{ASAVE+i}')
        steps = []
        for s_ in range(4):
            after = None
            if u == 1 and isA and not q2f:
                after = [lambda: dma_x(SRD[1]['X'], 0, oslot[0]), lambda: dma_x(SRD[1]['X'], 1, oslot[1]), lambda: dma_wq(SRD[2]['WQ'], 0, oslot[2]), lambda: dma_wq(SRD[2]['WQ'], 1, oslot[3])][s_]
            if u == 1 and (not isA or q2f):
                after = [lambda: dma_kv(0, 2, 'K', 2, fk), lambda: dma_kv(0, 2, 'V', 3, fv), lambda: dma_kv(1, 2, 'K', 0, fk), None][s_]
            steps.append((f'WO{s_}', oslot[s_], (lambda qt, s_=s_: ax(qt, s_)), s_ == 0 and u == 1, after))
        proj(steps)
        a.nop(8)
        stamp()
        if u == 1:
            for i in range(96):
                a.e(f'v_accvgpr_write_b32 a{ASAVE+i}, v{O+i}')
                if i % 12 == 11: pump()
            if not isA or q2f: flush()
            return
        for qt in range(3):
            for pi in range(4):
                d = IN + (qt*4+pi)*4
                for h2 in range(2):
                    x = Oreg(2*pi+h2, qt)
                    a.e(f'v_cvt_pk_bf16_f32 v{d+2*h2}, v{x}, v{x+1}'); a.e(f'v_cvt_pk_bf16_f32 v{d+2*h2+1}, v{x+2}, v{x+3}')
        stores(u)

    def joint(pre_b=None, post_b=None):
        sl = lambda n: n & 3
        fk = fv = cfg.flA
        a.c('================ joint A: two heads of one kv head')
        a.e(f's_mov_b32 s{S_STEP}, 0'); a.e(f's_mov_b32 s{S_VSTEP}, 0')
        W2 = SRD[2]['WQ']; XB = AO2
        qphase(SRD[1]['WQ'], S_RW, sl,
               [lambda: dma_wq(W2, 0, sl(2), S_RW, 'z'), lambda: dma_wq(W2, 1, sl(3), S_RW, 'z'), None, None],
               lambda: (dma_wq(W2, 2, sl(0), S_RW, 'z'), dma_wq(W2, 3, sl(1), S_RW, 'z')), xb=XB, pre_b=pre_b, post_b=post_b)
        qphase2(W2, S_RW, sl,
                [None, None, lambda: dma_kv(0, 1, 'K', sl(2), fk), lambda: dma_kv(0, 1, 'V', sl(3), fv)],
                lambda: (dma_kv(1, 1, 'K', sl(0), fk), dma_kv(1, 1, 'V', sl(1), fv)), 'z', AQ2, xb=XB)
        stamp()
        wait_vm('K0'); k_reads(sl(2))
        for i in range(96): a.e(f'v_mov_b32 v{O+i}, 0')
        for i in range(96): a.e(f'v_accvgpr_write_b32 a{AO2+i}, 0')
        for qt in range(3):
            for ml in (ML, ML2):
                a.e(f'v_mov_b32 v{ml+2*qt}, 0'); a.e(f'v_mov_b32 v{ml+2*qt+1}, 0')
        for r in (S_THR, S_FLOOR, S_THR2, S_FLOOR2): a.e(f's_mov_b32 s{r}, 0xff800000')
        a.e('s_waitcnt lgkmcnt(0)')
        dma_kv(2, 1, 'K', sl(2), fk)
        for i, m in enumerate(qk_mfmas(0, AQ)):
            a.e(m)
            if i in (3, 9, 15, 21): pump()
        a.nop(8)
        for c, s_ in sm_first(0, ML): a.e(s_)
        sm_check(0, joint=True)
        steady = ['V0']*8 + ['K1']*8 + ['V1']*8 + ['K0']*4
        assert a.vm[-28:] == steady and [t for t, _ in pend] == ['K0']*4, (a.vm, pend)
        a.e(f's_mov_b32 s{S_CNT}, 6')
        a.vm = list(steady)
        a.label('L_loopJ')
        start = len(a.L)
        def Kq(j): return lambda: dma_kv(j, 1, 'K', kslot(sl, j), fk)
        def Vq(j): return lambda: dma_kv(j, 1, 'V', vslot(sl, j), fv)
        for n in range(4):
            jstage1(n, sl, True, Kq((n+1)//2 + 2) if n % 2 == 1 else None)
            jstage2(n, sl, True, Vq(n//2 + 2) if n % 2 == 0 else None, True)
        a.e(f's_sub_u32 s{S_CNT}, s{S_CNT}, 1'); a.e(f's_cmp_lg_u32 s{S_CNT}, 0'); a.e('s_cbranch_scc1 L_loopJ')
        assert a.vm[-28:] == steady and [t for t, _ in pend] == ['K0']*4, (a.vm, pend)
        loops.append((start, len(a.L)))
        stamp()
        e1 = {25: Kq(15), 27: lambda: dma_wo(1, 0, sl(2))}
        e2 = {24: Vq(14), 26: Vq(15), 28: lambda: dma_wo(1, 1, sl(3))}
        def cyc():
            if cfg.fine == 'J':
                a.e('s_memtime s[100:101]'); a.e('s_waitcnt lgkmcnt(0)'); a.e(f's_mov_b32 s{STAMP0+nst[0]}, s100'); nst[0] += 1
        for n in range(24, 32):
            if n >= 28: cyc()
            jstage1(n, sl, n < 31, e1.get(n))
            if n >= 28: cyc()
            jstage2(n, sl, n < 31, e2.get(n), n < 30)
        cyc()
        flush()
        stamp()
        a.c('--- stats (both heads)')
        allreduce3([ML+2*qt+1 for qt in range(3)], 'v_add_f32')
        allreduce3([ML2+2*qt+1 for qt in range(3)], 'v_add_f32')
        t = TMP
        a.e(f'v_and_b32 v{t}, 15, v{V_LANE}'); a.e(f'v_lshlrev_b32 v{t}, 3, v{t}')
        a.e(f's_lshl_b32 s{S_T}, s{S_W}, 13'); a.e(f's_add_u32 s{S_T}, s{S_T}, {AUX+6144}'); a.e(f'v_add_u32 v{t+1}, s{S_T}, v{t}')
        for qt in range(3):
            a.e(f'ds_write_b64 v{t+1}, {vr(ML+2*qt, 2)} offset:{qt*128}')
            a.e(f'ds_write_b64 v{t+1}, {vr(ML2+2*qt, 2)} offset:{384+qt*128}')
        a.e('s_waitcnt lgkmcnt(0)'); a.e('s_barrier')
        exchange('O', sl(0), sl(1), lambda: (dma_wo(1, 2, sl(0)), dma_wo(1, 3, sl(1))), odst=AQ)
        stamp()
        oslot = [sl(2), sl(3), sl(0), sl(1)]
        fr = lambda s_: (lambda qt: ar(AQ + (qt*4 + s_)*4, 4))
        hk = [lambda: dma_wo(2, 0, sl(2)), lambda: dma_wo(2, 1, sl(3)), None, None]
        proj([(f'WO{s_}', oslot[s_], fr(s_), s_ == 0, hk[s_]) for s_ in range(4)])
        flush()
        a.e('s_barrier')
        stamp()
        exchange('O', sl(0), sl(1), lambda: (dma_wo(2, 2, sl(0)), dma_wo(2, 3, sl(1))), agpr=True, stoff=6144+384, odst=AQ)
        stamp()
        proj([(f'WO{s_}', oslot[s_], fr(s_), False, None) for s_ in range(4)])
        a.nop(8)
        stamp()
        for qt in range(3):
            for pi in range(4):
                d = IN + (qt*4+pi)*4
                for h2 in range(2):
                    x = Oreg(2*pi+h2, qt)
                    a.e(f'v_cvt_pk_bf16_f32 v{d+2*h2}, v{x}, v{x+1}'); a.e(f'v_cvt_pk_bf16_f32 v{d+2*h2+1}, v{x+2}, v{x+3}')
        stores(2)

    def build_mi():
        a.e(f's_sub_u32 s{S_T}, s{S_QF}, {QFLG}'); a.e(f's_lshr_b32 s{S_T}, s{S_T}, 7'); a.e(f's_mul_i32 s{S_T}, s{S_T}, {25600-12288}')
        a.e(f's_add_u32 s{S_T}, s{S_T}, {MIMG_OFF-QIMG_OFF:#x}')
        a.e(f's_add_u32 s{R_QI}, s{R_QI}, s{S_T}'); a.e(f's_addc_u32 s{R_QI+1}, s{R_QI+1}, 0'); a.e(f's_mov_b32 s{R_QI+2}, 25600'); a.e(f's_mov_b32 s{R_QI+3}, 0x20000')
    def build_u2():
        r = SRD[2]['K']; r1 = SRD[1]['K']
        a.e(f's_add_u32 s{r}, s{r1}, s{S_KD}'); a.e(f's_addc_u32 s{r+1}, s{r1+1}, 0'); a.e(f's_mov_b32 s{r+2}, 0x80000'); a.e(f's_mov_b32 s{r+3}, 0x20000')
        r = SRD[2]['WQ']; r1 = SRD[1]['WQ']
        a.e(f's_add_u32 s{r}, s{r1}, 4096'); a.e(f's_addc_u32 s{r+1}, s{r1+1}, 0'); a.e(f's_sub_u32 s{r+2}, s{r1+2}, 4096'); a.e(f's_mov_b32 s{r+3}, 0x20000')

    if cfg.setup_stamp: stamp()
    n0 = nst[0]
    a.e(f's_cmp_eq_u32 s{S_ISA[1]}, 0'); a.e('s_cbranch_scc1 L_progB')
    a.vm = []
    def prefetch(jobs, pfx):
        a.e('s_load_dwordx4 s[12:15], s[0:1], 48')
        a.e(f's_sub_u32 s16, s{S_QF}, {QFLG}'); a.e('s_lshr_b32 s16, s16, 7'); a.e('s_lshr_b32 s17, s16, 4'); a.e('s_and_b32 s16, s16, 15')
        a.e('s_lshr_b32 s18, s16, 1'); a.e('s_and_b32 s16, s16, 1'); a.e('s_lshl_b32 s17, s17, 1'); a.e('s_add_u32 s16, s16, s17')
        a.e('s_lshl_b32 s18, s18, 5'); a.e('s_add_u32 s16, s16, s18')
        a.e('s_waitcnt lgkmcnt(0)')
        for ji, (dk, blk0, nb) in enumerate(jobs):
            a.e(f's_add_u32 s17, s16, {dk}'); a.e('s_lshl_b32 s18, s17, 19'); a.e('s_lshr_b32 s19, s17, 13')
            for (dst, src) in ((20, 12), (24, 14)):
                a.e(f's_add_u32 s{dst}, s{src}, s18'); a.e(f's_addc_u32 s{dst+1}, s{src+1}, s19'); a.e(f's_mov_b32 s{dst+2}, 0x80000'); a.e(f's_mov_b32 s{dst+3}, 0x20000')
            a.e(f's_add_u32 s17, s{S_W8}, {blk0*32768}'); a.e(f's_mov_b32 s18, {nb}')
            a.label(f'L_pf{pfx}{ji}')
            a.e('s_add_u32 s19, s17, 4096')
            for srd in (20, 24):
                for so in (17, 19):
                    for i in range(4):
                        a.e(f'buffer_load_dwordx4 v[4:7], v{V_L16}, s[{srd}:{srd+3}], s{so} offen offset:{i*1024}{cfg.pf_flags}')
                    if cfg.pf_keep < 16: a.e(f's_waitcnt vmcnt({cfg.pf_keep})')
            a.e(f's_waitcnt vmcnt({min(cfg.pf_keep, 16)})')
            a.e('s_add_u32 s17, s17, 32768'); a.e('s_sub_u32 s18, s18, 1'); a.e('s_cmp_lg_u32 s18, 0'); a.e(f's_cbranch_scc1 L_pf{pfx}{ji}')
    if cfg.early_w:
        dma_x(SRD[2]['K'], 0, 0, 'p'); dma_x(SRD[2]['K'], 1, 1, 'p'); dma_wq(SRD[2]['WQ'], 0, 2, S_RWP, 'p'); dma_wq(SRD[2]['WQ'], 1, 3, S_RWP, 'p'); flush()
    if cfg.pf_blocks or cfg.pf_first:
        jobs = []
        if cfg.pf_first: jobs.append((0, cfg.pf_start, cfg.pf_first))
        if cfg.pf_blocks: jobs.append((16, 16 - cfg.pf_blocks, cfg.pf_blocks))
        prefetch(jobs, 'a')
    PREF[0] = prefetch
    sl0 = lambda n: n & 3
    PX, PWQ = SRD[2]['K'], SRD[2]['WQ']
    if not cfg.early_w:
        dma_x(PX, 0, 0, 'p'); dma_x(PX, 1, 1, 'p'); dma_wq(PWQ, 0, 2, S_RWP, 'p'); dma_wq(PWQ, 1, 3, S_RWP, 'p'); flush()
    fb, fbv = cfg.flBK, cfg.flBV
    if cfg.mini:
        a.e('s_load_dwordx4 s[12:15], s[0:1], 48')
        a.e(f's_sub_u32 s16, s{S_QF}, {QFLG}'); a.e('s_lshr_b32 s16, s16, 7'); a.e('s_lshr_b32 s17, s16, 4'); a.e('s_and_b32 s16, s16, 15')
        a.e('s_lshr_b32 s18, s16, 1'); a.e('s_and_b32 s16, s16, 1'); a.e('s_lshl_b32 s17, s17, 1'); a.e('s_add_u32 s16, s16, s17')
        a.e('s_lshl_b32 s18, s18, 5'); a.e('s_add_u32 s16, s16, s18'); a.e('s_add_u32 s16, s16, 16')
        a.e('s_lshl_b32 s18, s16, 19'); a.e('s_lshr_b32 s19, s16, 13')
        a.e('s_waitcnt lgkmcnt(0)')
        for (dst, src) in ((SRD[2]['K'], 12), (SRD[2]['V'], 14)):
            a.e(f's_add_u32 s{dst}, s{src}, s18'); a.e(f's_addc_u32 s{dst+1}, s{src+1}, s19'); a.e(f's_mov_b32 s{dst+2}, 0x80000'); a.e(f's_mov_b32 s{dst+3}, 0x20000')
        a.e(f's_mov_b32 s{S_STEP}, {16-cfg.mini}'); a.e(f's_mov_b32 s{S_VSTEP}, {16-cfg.mini}'); a.e(f's_mov_b32 s{S_ROT}, 0')
        qphase(PWQ, S_RWP, sl0,
               [None, None, lambda: dma_kv(0, 2, 'K', 2, fb), lambda: dma_kv(0, 2, 'V', 3, fbv)],
               lambda: dma_kv(1, 2, 'K', 0, fb), pfx='p', count='A')
    else:
        qphase(PWQ, S_RWP, sl0,
               [lambda: dma_wq(SRD[1]['WQ'], 0, 2), lambda: dma_wq(SRD[1]['WQ'], 1, 3), None, None],
               lambda: (dma_x(SRD[1]['X'], 0, 0), dma_x(SRD[1]['X'], 1, 1)), pfx='p', count='A')
    r = SRD[2]['WQ']; r1 = SRD[1]['WQ']
    a.e(f's_add_u32 s{r}, s{r1}, 256'); a.e(f's_addc_u32 s{r+1}, s{r1+1}, 0'); a.e(f's_sub_u32 s{r+2}, s{r1+2}, 256'); a.e(f's_mov_b32 s{r+3}, 0x20000')
    a.e(f's_cmp_lg_u32 s{S_W}, 0'); a.e('s_cbranch_scc1 L_nopub')
    for s_ in range(4):
        for qt in range(3):
            idx = s_*3 + qt
            if idx % 4 == 0: a.e(f's_mov_b32 s{S_T3}, {(idx//4)*4096}')
            a.e(f'buffer_store_dwordx4 {aq(qt, s_)}, v{V_L16}, s[{R_QI}:{R_QI+3}], s{S_T3} offen offset:{(idx%4)*1024} sc1')
    if not cfg.mini:
        a.e('s_waitcnt vmcnt(0)')
        a.e('s_mov_b64 exec, 1'); a.e('v_mov_b32 v1, 0'); a.e('v_mov_b32 v2, 1')
        a.e(f'buffer_store_dword v2, v1, s[{R_FLG}:{R_FLG+3}], s{S_QF} offen sc1')
        a.e('s_mov_b64 exec, -1')
    a.label('L_nopub')
    stamp()
    pre_b = post_b = None
    if cfg.mini:
        assert cfg.mini == 4
        sl = sl0
        a.c('================ mini unit: last blocks of the partner\'s unit 2')
        build_mi()
        wait_vm('K0'); k_reads(sl(2))
        for i in range(96): a.e(f'v_mov_b32 v{O+i}, 0')
        for qt in range(3):
            a.e(f'v_mov_b32 v{M_(qt)}, 0'); a.e(f'v_mov_b32 v{L_(qt)}, 0')
        a.e(f's_mov_b32 s{S_THR}, 0xff800000'); a.e(f's_mov_b32 s{S_FLOOR}, 0xff800000')
        a.e('s_waitcnt lgkmcnt(0)')
        dma_kv(2, 2, 'K', sl(2), fb); dma_kv(1, 2, 'V', sl(1), fbv)
        for i, m in enumerate(qk_mfmas(0)):
            a.e(m)
            if i % 3 == 2: pump()
        wait_vm('K1'); k_reads(sl(0))
        flush()
        a.nop(4)
        for c, s_ in sm_first(0): a.e(s_)
        sm_check(0)
        assert a.vm[-16:] == ['K0']*8 + ['V1']*8, a.vm
        stage1(12, sl, True, lambda: dma_kv(15, 2, 'K', kslot(sl, 15), fb))
        stage2(12, sl, True, lambda: dma_kv(14, 2, 'V', vslot(sl, 14), fbv), True)
        stage1(13, sl, True, lambda: dma_wq(SRD[1]['WQ'], 0, 2))
        stage2(13, sl, True, lambda: dma_kv(15, 2, 'V', vslot(sl, 15), fbv), True)
        stage1(14, sl, True, None)
        stage2(14, sl, True, lambda: dma_wq(SRD[1]['WQ'], 1, 3), False)
        stage1(15, sl, False, None)
        stage2(15, sl, False, None, False)
        allreduce3([L_(qt) for qt in range(3)], 'v_add_f32')
        t = TMP
        a.e(f'v_and_b32 v{t}, 15, v{V_LANE}'); a.e(f'v_lshlrev_b32 v{t}, 3, v{t}')
        a.e(f's_lshl_b32 s{S_T}, s{S_W}, 13'); a.e(f's_add_u32 s{S_T}, s{S_T}, {AUX+6144}'); a.e(f'v_add_u32 v{t+1}, s{S_T}, v{t}')
        for qt in range(3): a.e(f'ds_write_b64 v{t+1}, {vr(M_(qt), 2)} offset:{qt*128}')
        a.e('s_waitcnt lgkmcnt(0)'); a.e('s_barrier')
        exchange('O', sl(0), sl(1), lambda: (dma_x(SRD[1]['X'], 0, 0), dma_x(SRD[1]['X'], 1, 1)), mini=True)
        a.e(f's_mul_i32 s{S_T3}, s{S_W}, 6144')
        a.nop(1)
        for i in range(6):
            if i == 4: a.e(f's_add_u32 s{S_T3}, s{S_T3}, 4096')
            a.vmop('MP', f'buffer_store_dwordx4 {vr(O+4*i, 4)}, v{V_L16}, s[{R_QI}:{R_QI+3}], s{S_T3} offen offset:{(i%4)*1024} sc1')
        a.e(f'v_and_b32 v{TMP}, 15, v{V_LANE}'); a.e(f'v_lshlrev_b32 v{TMP}, 3, v{TMP}'); a.e(f's_mov_b32 s{S_T3}, 24576')
        a.e(f's_cmp_lg_u32 s{S_W}, 0'); a.e('s_cbranch_scc1 L_nomst')
        for qt in range(3):
            a.e(f'buffer_store_dwordx2 {vr(M_(qt), 2)}, v{TMP}, s[{R_QI}:{R_QI+3}], s{S_T3} offen offset:{qt*128} sc1')
        a.label('L_nomst')
        flush()
        MPW = [len(a.vm)]
        def pre_b():
            a.e('s_waitcnt vmcnt(0)')
            a.vm = []
        def post_b():
            a.e(f's_cmp_lg_u32 s{S_W}, 0'); a.e('s_cbranch_scc1 L_nomf')
            a.e('s_mov_b64 exec, 1'); a.e(f'v_mov_b32 v{TMP}, 0'); a.e(f'v_mov_b32 v{TMP+1}, 1'); a.e(f'v_mov_b32 v{TMP+2}, {OFLG}')
            a.e(f'buffer_store_dword v{TMP+1}, v{TMP}, s[{R_FLG}:{R_FLG+3}], s{S_QF} offen sc1')
            a.e(f'buffer_store_dword v{TMP+1}, v{TMP+2}, s[{R_FLG}:{R_FLG+3}], s{S_QF} offen sc1')
            a.e('s_mov_b64 exec, -1')
            a.label('L_nomf')
            a.nop(2)
    if cfg.rotA: a.e(f's_lshl_b32 s{S_ROT}, s{S_HH}, {cfg.rot_shift}')
    else: a.e(f's_mov_b32 s{S_ROT}, 0')
    joint(pre_b, post_b)
    a.e('s_branch L_final')
    a.label('L_progB')
    nst[0] = n0
    a.vm = []; assert not pend
    build_u2()
    a.e(f's_mov_b32 s{S_ROT}, 0')
    dma_x(SRD[1]['X'], 0, 0); dma_x(SRD[1]['X'], 1, 1); dma_wq(SRD[1]['WQ'], 0, 2); dma_wq(SRD[1]['WQ'], 1, 3); flush()
    stamp()
    unit(1, 'B')
    unit(2, 'B')
    a.label('L_final')
    a.c('================ final reduce')
    a.e('s_load_dwordx4 s[28:31], s[0:1], 80')
    a.e('s_load_dwordx2 s[32:33], s[0:1], 96')
    a.e(f's_lshl_b32 s{S_T}, s{S_W}, 6'); a.e(f'v_add_u32 v1, s{S_T}, v{V_LANE}')
    a.e(f's_bfe_u32 s{S_T+1}, s{S_FG[2]}, 0x50002'); a.e(f's_mul_i32 s{S_T+1}, s{S_T+1}, 192')
    a.e(f'v_add_u32 v3, s{S_T+1}, v1')
    a.e('v_lshlrev_b32 v2, 4, v3')
    a.e('v_lshrrev_b32 v5, 8, v3'); a.e('v_mul_u32_u24 v5, 21846, v5'); a.e('v_lshrrev_b32 v5, 16, v5')
    a.e('v_mul_u32_u24 v6, 768, v5'); a.e('v_sub_u32 v6, v3, v6')
    a.e('v_lshrrev_b32 v7, 6, v6'); a.e('v_and_b32 v8, 63, v6')
    a.e('v_lshrrev_b32 v9, 2, v7'); a.e('v_and_b32 v10, 3, v7')
    a.e('v_add_u32 v11, v5, v10'); a.e('v_lshlrev_b32 v11, 1, v11')
    a.e('v_and_b32 v12, 15, v8'); a.e('v_lshl_add_u32 v12, v9, 4, v12'); a.e('v_lshlrev_b32 v12, 11, v12')
    a.e('v_lshl_add_u32 v12, v5, 8, v12'); a.e('v_lshrrev_b32 v13, 4, v8'); a.e('v_lshl_add_u32 v12, v13, 3, v12')
    a.e('v_and_b32 v13, 7, v11'); a.e('v_lshl_add_u32 v13, v13, 5, v12')
    a.e('v_add_u32 v11, 1, v11'); a.e('v_and_b32 v11, 7, v11'); a.e('v_lshl_add_u32 v14, v11, 5, v12')
    a.e('s_waitcnt lgkmcnt(0)')
    a.e('s_mov_b32 s40, s30'); a.e('s_mov_b32 s41, s31'); a.e('s_mov_b32 s42, 256'); a.e('s_mov_b32 s43, 0x20000')
    a.e('v_mov_b32 v18, 0')
    a.e('buffer_load_dword v21, v18, s[40:43], 0 offen sc1')
    a.wait_vm_all()
    a.e('s_barrier')
    a.e('s_mov_b32 s36, s28'); a.e('s_mov_b32 s37, s29'); a.e('s_mov_b32 s38, 786432'); a.e('s_mov_b32 s39, 0x20000')
    a.e(f's_cmp_lg_u32 s{S_W}, 0'); a.e('s_cbranch_scc1 L_pd')
    a.e('s_mov_b64 exec, 1'); a.e('v_mov_b32 v15, 0'); a.e('v_mov_b32 v16, 1')
    a.e(f'buffer_store_dword v16, v15, s[{R_FLG}:{R_FLG+3}], s{S_FG[2]} offen sc1')
    a.e('s_mov_b64 exec, -1')
    stamp()
    a.e(f's_mov_b32 s{S_T+2}, 8000')
    a.label('L_cpoll')
    a.e(f'v_readfirstlane_b32 s{S_T+1}, v21'); a.e('s_nop 3')
    a.e(f's_cmp_eq_u32 s{S_T+1}, 256'); a.e('s_cbranch_scc1 L_cpok')
    a.e('s_sleep 2')
    a.e('buffer_load_dword v21, v18, s[40:43], 0 offen sc1'); a.e('s_waitcnt vmcnt(0)')
    a.e(f's_sub_u32 s{S_T+2}, s{S_T+2}, 1'); a.e(f's_cmp_lg_u32 s{S_T+2}, 0'); a.e('s_cbranch_scc1 L_cpoll')
    a.label('L_cpok')
    a.e(f'v_and_b32 v17, 15, v{V_LANE}'); a.e('v_lshlrev_b32 v17, 2, v17')
    a.e(f's_and_b32 s{S_T+1}, s{S_FG[2]}, -128'); a.e(f's_mov_b32 s{S_T+2}, 8000')
    a.label('L_poll')
    a.e(f'buffer_load_dword v20, v17, s[{R_FLG}:{R_FLG+3}], s{S_T+1} offen sc1')
    a.e('s_waitcnt vmcnt(0)')
    a.e('v_cmp_eq_u32 vcc, 1, v20')
    a.e('s_nop 1')
    a.e('s_cmp_eq_u64 vcc, -1'); a.e('s_cbranch_scc1 L_pd')
    a.e(f's_sub_u32 s{S_T+2}, s{S_T+2}, 1'); a.e(f's_cmp_lg_u32 s{S_T+2}, 0'); a.e('s_cbranch_scc1 L_poll')
    a.label('L_pd')
    a.e('s_barrier')
    stamp()
    a.e(f's_cmp_eq_u32 s{S_W}, 3'); a.e('s_cbranch_scc1 L_rd')
    a.e(f's_lshr_b32 s{S_T}, s{S_FG[2]}, 7')
    a.e(f's_mul_i32 s{S_T+1}, s{S_T}, 786432')
    a.e(f's_add_u32 s44, s32, s{S_T+1}'); a.e('s_addc_u32 s45, s33, 0'); a.e('s_mov_b32 s46, 786432'); a.e('s_mov_b32 s47, 0x20000')
    for h in range(16):
        a.e(f's_mov_b32 s48, {h*49152}')
        a.e(f'buffer_load_dwordx4 v[{48+4*h}:{51+4*h}], v2, s[44:47], s48 offen sc1')
    a.e(f's_and_b32 s49, s{S_T}, 7'); a.e('s_mul_i32 s49, s49, 98304'); a.e(f's_lshr_b32 s50, s{S_T}, 3'); a.e('s_lshl_b32 s50, s50, 10'); a.e('s_add_u32 s49, s49, s50')
    for i in range(8): a.e(f'v_mov_b32 v{20+i}, 0')
    for h in range(16):
        a.e(f's_waitcnt vmcnt({15-h})')
        for d in range(4):
            r = 48 + 4*h + d
            a.e(f'v_lshlrev_b32 v28, 16, v{r}'); a.e(f'v_and_b32 v29, 0xffff0000, v{r}')
            a.e(f'v_add_f32 v{20+2*d}, v{20+2*d}, v28'); a.e(f'v_add_f32 v{21+2*d}, v{21+2*d}, v29')
    a.e('v_cvt_pk_bf16_f32 v30, v20, v21'); a.e('v_cvt_pk_bf16_f32 v31, v22, v23')
    a.e('v_cvt_pk_bf16_f32 v32, v24, v25'); a.e('v_cvt_pk_bf16_f32 v33, v26, v27')
    a.e(f'buffer_store_dwordx2 v[30:31], v13, s[36:39], s49 offen{cfg.out_flags}')
    a.e(f'buffer_store_dwordx2 v[32:33], v14, s[36:39], s49 offen{cfg.out_flags}')
    a.label('L_rd')
    a.e('s_waitcnt vmcnt(0)')
    if cfg.fine == 'J': nst[0] = 9
    if cfg.stamps:
        stamp()
        a.e('s_memtime s[98:99]'); a.e('s_memrealtime s[100:101]'); a.e('s_waitcnt lgkmcnt(0)')
        a.e('v_readfirstlane_b32 s2, v223')
        a.e('v_mov_b32 v252, s98'); a.e('v_mov_b32 v253, s100')
        a.e('s_add_u32 s32, s32, 0x4000000'); a.e('s_addc_u32 s33, s33, 0'); a.e('s_mov_b32 s34, 0x100000'); a.e('s_mov_b32 s35, 0x20000')
        a.e('s_nop 3')
        a.e(f's_lshl_b32 s94, s2, 2'); a.e(f's_add_u32 s94, s94, s{S_W}'); a.e('s_lshl_b32 s94, s94, 7')
        a.e('v_mov_b32 v1, 0')
        a.e(f'buffer_store_dword v255, v1, s[32:35], s94 offen')
        a.e(f'buffer_store_dwordx4 v[252:255], v1, s[32:35], s94 offen offset:96')
        for i in range(nst[0]):
            a.e(f'v_mov_b32 v2, s{STAMP0+i}')
            a.e(f'buffer_store_dword v2, v1, s[32:35], s94 offen offset:{4*i+4}')
            a.e('s_nop 1')
        a.e('s_waitcnt vmcnt(0)')
    a.label('L_end')
    a.e('s_endpgm')
    for buf in (0, 1):
        a.label(f'L_rescale{buf}')
        t = TMP
        allreduce3([TMP+qt for qt in range(3)], 'v_max_f32')
        for qt in range(3): a.e(f'v_max_f32 v{t+qt}, s{S_FLOOR}, v{t+qt}')
        for qt in range(3):
            a.e(f'v_add_f32 v{M_(qt)}, v{M_(qt)}, v{t+qt}')
            a.e(f'v_max_f32 v{t+4+qt}, 0, v{t+qt}')
            a.e(f'v_sub_f32 v{t+4+qt}, 0, v{t+4+qt}')
        for qt in range(3): a.e(f'v_exp_f32 v{t+4+qt}, v{t+4+qt}')
        for kt in range(2):
            for qt in range(3):
                for r in range(4):
                    x = Sreg(buf, kt, qt) + r
                    a.e(f'v_sub_f32 v{x}, v{x}, v{t+qt}')
        for qt in range(3): a.e(f'v_mul_f32 v{L_(qt)}, v{L_(qt)}, v{t+4+qt}')
        for tau in range(8):
            for qt in range(3):
                for r in range(4):
                    x = Oreg(tau, qt) + r
                    a.e(f'v_mul_f32 v{x}, v{x}, v{t+4+qt}')
        a.e(f's_mov_b32 s{S_THR}, {f32bits(cfg.thr):#x}'); a.e(f's_mov_b32 s{S_FLOOR}, 0')
        a.e(f's_setpc_b64 s[{S_RET}:{S_RET+1}]')

    a.label('L_rescaleJ1')
    t = TMP
    allreduce3([TMP+qt for qt in range(3)], 'v_max_f32')
    for qt in range(3): a.e(f'v_max_f32 v{t+qt}, s{S_FLOOR2}, v{t+qt}')
    for qt in range(3):
        a.e(f'v_add_f32 v{ML2+2*qt}, v{ML2+2*qt}, v{t+qt}')
        a.e(f'v_max_f32 v{t+4+qt}, 0, v{t+qt}')
        a.e(f'v_sub_f32 v{t+4+qt}, 0, v{t+4+qt}')
    for qt in range(3): a.e(f'v_exp_f32 v{t+4+qt}, v{t+4+qt}')
    for kt in range(2):
        for qt in range(3):
            for r in range(4):
                x = Sreg(1, kt, qt) + r
                a.e(f'v_sub_f32 v{x}, v{x}, v{t+qt}')
    for qt in range(3): a.e(f'v_mul_f32 v{ML2+2*qt+1}, v{ML2+2*qt+1}, v{t+4+qt}')
    for g in range(4):
        for i in range(24): a.e(f'v_accvgpr_read_b32 v{OT+i}, a{AO2+24*g+i}')
        for i in range(24): a.e(f'v_mul_f32 v{OT+i}, v{OT+i}, v{t+4+((i//4)%3)}')
        for i in range(24): a.e(f'v_accvgpr_write_b32 a{AO2+24*g+i}, v{OT+i}')
    a.e(f's_mov_b32 s{S_THR2}, {f32bits(cfg.thr):#x}'); a.e(f's_mov_b32 s{S_FLOOR2}, 0')
    a.e(f's_setpc_b64 s[{S_RET}:{S_RET+1}]')

    a.e('.section .rodata,"a"')
    a.e('.p2align 6'); a.e(f'.amdhsa_kernel {KN}')
    a.e('  .amdhsa_next_free_vgpr 512'); a.e('  .amdhsa_next_free_sgpr 102'); a.e('  .amdhsa_accum_offset 256')
    a.e('  .amdhsa_group_segment_fixed_size 0'); a.e('  .amdhsa_kernarg_size 104'); a.e('  .amdhsa_user_sgpr_count 2')
    a.e('  .amdhsa_user_sgpr_kernarg_segment_ptr 1'); a.e('  .amdhsa_system_sgpr_workgroup_id_x 1')
    a.e('  .amdhsa_float_denorm_mode_32 3'); a.e('  .amdhsa_float_denorm_mode_16_64 3')
    a.e('.end_amdhsa_kernel')
    probs = check(a.L)
    for (s0, s1) in loops: probs += check(a.L[s0:s1] + a.L[s0:s1])
    return a.text(), probs, nst[0]

if __name__ == '__main__':
    cfg = Cfg()
    for kv in sys.argv[2:]:
        k, v = kv.split('=', 1); setattr(cfg, k, eval(v))
    txt, probs, n = gen(cfg)
    for p in probs: print('HAZARD', p)
    open(sys.argv[1], 'w').write(txt)
    print('written', sys.argv[1], len(txt), 'stamps', n)
```

```python
import sys, struct, math
from asmlib import Asm, check

KN = 'concat_heads__gqa_block_cached__mha_block_cached__near_ridge_kernel'

V_LANE = 0
TRA = 16; KA = 24; DE, DO = 28, 29; ML = 30
def M_(qt): return ML + 2*qt
def L_(qt): return ML + 2*qt + 1
TMP = 36; S0 = 48; S1 = 72; P = 96; XT = 108; O = 120
IN = 48
QE, QO, OE, OO = 216, 217, 218, 219
V_L16, V_XB, V_ST = 220, 221, 222
ML2 = 224
OT = 230
def Oreg(tau, qt): return O + (tau*3 + qt)*4
def Sreg(buf, kt, qt): return (S0 if buf == 0 else S1) + (kt*3 + qt)*4
AQ, AX, AK, AV, ASAVE = 0, 48, 96, 128, 160
AQ2, AO2 = 48, 160
def ar(b, n): return f'a[{b}:{b+n-1}]'
def aq(qt, s): return ar(AQ + (qt*4 + s)*4, 4)
def ax(qt, s): return ar(AX + (qt*4 + s)*4, 4)
def vr(b, n): return f'v[{b}:{b+n-1}]' if n > 1 else f'v{b}'
R_FLG = 4
S_FG = {1: 8, 2: 9}
S_ISA = {1: 10, 2: 11}
STAMP0 = 12
SRD = {1: dict(K=28, V=32, WQ=36, X=40, WO=44, PT=48), 2: dict(K=52, V=56, WQ=60, X=64, WO=68, PT=72)}
S_W, S_LB, S_OFF, S_T = 76, 77, 78, 79
S_CNT, S_THR, S_FLOOR, S_C, S_RET = 86, 87, 88, 89, 90
S_WQO, S_XO, S_T2, S_T3, S_STEP, S_ROT, S_T4, S_W8 = 92, 93, 94, 95, 96, 97, 98, 99
S_HH = 3
S_THR2, S_FLOOR2 = 11, 48
S_KD = 48
S_RWP = 49
R_DBGK = 50
S_RW = 2
S_WB = 85
AUX = 131072
FLG_OFF = 0x2000000
QFLG = 4096
OFLG = 16384
MIMG_OFF = 0x2300000
QIMG_OFF = 0x2100000
R_QI = 64
S_QF = 8

class Cfg:
    afirst = 0x55
    flA = ' nt'
    flBK = ' nt'; flBV = ' nt'
    rotA = False
    rotW = True
    nt_w = False
    thr = 8.0
    st_flags = ' sc1'
    stamps = False
    fine = None
    dynflags = True
    late_st = True
    st_in_exch = True
    kv0_late = True
    fastpoll = True
    out_flags = ''
    rw_mode = 0
    pf_blocks = 0
    pf_flags = ''
    fake_joint = 0
    setup_stamp = False
    bb2_def = False
    dbuf = True
    early_stats = True
    aa_q2_first = False
    mini = 0
    flAV = None
    pf2_n = 3
    pf2_cnt = 5
    pf_start = 0
    early_w = True
    rot_shift = 1
    rot_mode = 0
    stage_bb = False
    pf_keep = 16
    pf_first = 6

def f32bits(x): return struct.unpack('<I', struct.pack('<f', x))[0]

def gen(cfg=Cfg()):
    a = Asm()
    a.e(f'; @launch grid=(256,1,1) block=(256,1,1) lds=163840')
    for ln in (
        'Fused GQA (A) + MHA (B) attention blocks, one workgroup (4 waves) per CU, generated by a hand-written script.',
        'WG id: x8 = id&7, t = id>>3.  t<16: "AA" program (two A heads sharing one kv head, processed jointly), else "BB" (two B heads).',
        'Everything is computed transposed (Q^T = Wq^T x^T, S^T = K Q^T, O^T = V^T P^T, out^T = Wo^T O^T) with 16x16x32 bf16 MFMA;',
        'each wave streams its own keys (blocks of 32) through a private 4-slot LDS ring filled by LDS-DMA (source-swizzled rows),',
        'online softmax with the running max (deferred rescale, run-time checked), cross-wave combine through LDS,',
        'per-WG out-projection partials (bf16) in d_ws, final sum by the workgroups of each (branch,batch) group behind flags.',
        'AA workgroups also compute the second Q projection of their BB partner and prefetch its first K/V blocks.',
        'Hand-offs: sc1 stores -> vmcnt(0) -> flag; flags live in d_ws and are trusted only after the d_debug counter shows all were cleared.'):
        a.e('; ' + ln)
    a.e('.amdgcn_target "amdgcn-amd-amdhsa--gfx950"')
    a.e('.text')
    a.e(f'.globl {KN}'); a.e('.p2align 8'); a.e(f'.type {KN},@function'); a.label(KN)
    a.e('s_cmp_ge_u32 s2, 256'); a.e('s_cbranch_scc1 L_end')
    nst = [0]
    fon = [False]
    def fs():
        if not (cfg.fine and fon[0]): return
        a.e('s_memrealtime s[100:101]'); a.e('s_waitcnt lgkmcnt(0)'); a.e(f's_mov_b32 s{STAMP0+nst[0]}, s100'); nst[0] += 1
        assert nst[0] <= 16
    def stamp():
        if cfg.fine or not cfg.stamps: return
        a.e('s_memrealtime s[100:101]'); a.e('s_waitcnt lgkmcnt(0)'); a.e(f's_mov_b32 s{STAMP0+nst[0]}, s100'); nst[0] += 1
        assert nst[0] <= 16
    if cfg.stamps:
        a.e('s_memrealtime s[100:101]'); a.e('s_waitcnt lgkmcnt(0)'); a.e('v_mov_b32 v255, s100')
        a.e('s_memtime s[100:101]'); a.e('s_waitcnt lgkmcnt(0)'); a.e('v_mov_b32 v254, s100')
        a.e('v_mov_b32 v223, s2')
    a.e('s_load_dwordx16 s[12:27], s[0:1], 0')
    a.e('s_load_dwordx4 s[84:87], s[0:1], 64')
    a.e('s_load_dwordx4 s[88:91], s[0:1], 88')
    a.e(f'v_lshrrev_b32 v1, 6, v0')
    a.e(f'v_and_b32 v{V_LANE}, 63, v0')
    a.e(f'v_readfirstlane_b32 s{S_W}, v1')
    a.e(f'v_and_b32 v2, 15, v{V_LANE}'); a.e(f'v_lshrrev_b32 v3, 4, v{V_LANE}')
    a.e(f'v_lshlrev_b32 v{V_L16}, 4, v{V_LANE}')
    a.e(f's_lshl_b32 s{S_LB}, s{S_W}, 15')
    a.e('v_lshlrev_b32 v4, 1, v3'); a.e('v_xor_b32 v4, v2, v4'); a.e('v_lshlrev_b32 v4, 4, v4')
    a.e(f'v_lshl_add_u32 v{DE}, v3, 8, v4'); a.e(f'v_xor_b32 v{DO}, 0x80, v{DE}')
    a.e(f'v_lshl_add_u32 v{QE}, v3, 13, v4'); a.e(f'v_xor_b32 v{QO}, 0x80, v{QE}')
    a.e(f'v_lshl_add_u32 v{OE}, v3, 10, v4'); a.e(f'v_xor_b32 v{OO}, 0x80, v{OE}')
    a.e('v_and_b32 v5, 7, v2'); a.e('v_lshlrev_b32 v5, 1, v5')
    a.e('v_xor_b32 v6, v3, v5'); a.e('v_lshlrev_b32 v6, 4, v6')
    a.e('v_lshl_add_u32 v6, v2, 8, v6'); a.e(f'v_add_u32 v{KA}, s{S_LB}, v6')
    for s in range(1, 4): a.e(f'v_xor_b32 v{KA+s}, {s<<6}, v{KA}')
    a.e('v_lshrrev_b32 v6, 1, v3'); a.e('v_xor_b32 v6, v6, v5'); a.e('v_lshlrev_b32 v6, 4, v6')
    a.e('v_and_b32 v7, 1, v3'); a.e('v_lshl_add_u32 v6, v7, 3, v6')
    a.e('v_lshl_add_u32 v6, v2, 8, v6'); a.e(f'v_add_u32 v{V_XB}, s{S_LB}, v6')
    a.e('v_lshrrev_b32 v6, 2, v2'); a.e('v_lshl_add_u32 v6, v3, 2, v6')
    a.e('v_and_b32 v7, 7, v6'); a.e('v_lshlrev_b32 v7, 1, v7')
    a.e('v_bfe_u32 v8, v2, 1, 1'); a.e('v_xor_b32 v7, v8, v7'); a.e('v_lshlrev_b32 v7, 4, v7')
    a.e('v_and_b32 v8, 1, v2'); a.e('v_lshl_add_u32 v7, v8, 3, v7')
    a.e('v_lshl_add_u32 v7, v6, 8, v7'); a.e(f'v_add_u32 v7, s{S_LB}, v7')
    a.e(f's_lshl_b32 s{S_T}, s{S_W}, 1')
    for tau in range(8):
        a.e(f's_add_u32 s{S_T+1}, s{S_T}, {tau}'); a.e(f's_and_b32 s{S_T+1}, s{S_T+1}, 7'); a.e(f's_lshl_b32 s{S_T+1}, s{S_T+1}, 5')
        a.e(f'v_xor_b32 v{TRA+tau}, s{S_T+1}, v7')
    a.e(f's_mul_i32 s{S_T}, s{S_W}, 12288'); a.e(f'v_add_u32 v{V_ST}, s{S_T}, v{V_L16}')
    a.e(f's_lshl_b32 s{S_W8}, s{S_W}, 13')
    a.e('s_and_b32 s79, s2, 7'); a.e('s_lshr_b32 s80, s2, 3')
    a.e('s_and_b32 s94, s80, 15'); a.e('s_lshl_b32 s95, s79, 4'); a.e('s_add_u32 s95, s95, s94')
    a.e('s_lshr_b32 s92, s94, 1'); a.e('s_and_b32 s93, s94, 1'); a.e('s_lshl_b32 s96, s79, 1'); a.e('s_add_u32 s93, s93, s96')
    a.e('s_cmp_lt_u32 s80, 16'); a.e(f's_cselect_b32 s{S_ISA[1]}, 1, 0'); a.e(f's_mov_b32 s{S_ISA[2]}, s{S_ISA[1]}')
    a.e('s_cbranch_scc0 L_idB')
    a.e('s_lshr_b32 s81, s80, 1'); a.e(f's_and_b32 s{S_HH}, s80, 1')
    a.e('s_lshl_b32 s83, s79, 2'); a.e(f's_lshl_b32 s97, s{S_HH}, 1'); a.e('s_add_u32 s83, s83, s97')
    a.e('s_lshl_b32 s96, s81, 3'); a.e('s_add_u32 s79, s96, s79')
    a.e('s_branch L_iddone')
    a.label('L_idB')
    a.e('s_mov_b32 s81, s92'); a.e('s_mov_b32 s83, s93'); a.e(f's_mov_b32 s{S_HH}, 0')
    a.e('s_lshl_b32 s79, s81, 5'); a.e('s_add_u32 s79, s79, s83')
    a.label('L_iddone')
    if cfg.rotW: a.e(f's_and_b32 s{S_RW}, s81, 3')
    else: a.e(f's_mov_b32 s{S_RW}, 0')
    a.e('s_waitcnt lgkmcnt(0)')
    R = SRD[1]; R2 = SRD[2]
    a.e(f's_cmp_eq_u32 s{S_ISA[1]}, 1')
    for name, pa, pb in (('X', 12, 22), ('K', 14, 24), ('V', 16, 26), ('WQ', 18, 84), ('WO', 20, 86)):
        r = R[name]
        a.e(f's_cselect_b32 s{r}, s{pa}, s{pb}'); a.e(f's_cselect_b32 s{r+1}, s{pa+1}, s{pb+1}')
    a.e('s_mov_b32 s80, 0x800000'); a.e('s_cselect_b32 s80, 0, s80')
    a.e('s_lshl_b32 s96, s79, 19'); a.e('s_lshr_b32 s97, s79, 13')
    for name in ('K', 'V'):
        r = R[name]
        a.e(f's_add_u32 s{r}, s{r}, s96'); a.e(f's_addc_u32 s{r+1}, s{r+1}, s97')
        a.e(f's_mov_b32 s{r+2}, 0x80000'); a.e(f's_mov_b32 s{r+3}, 0x20000')
    r = R['X']; a.e('s_mul_i32 s96, s81, 49152')
    a.e(f's_add_u32 s{r}, s{r}, s96'); a.e(f's_addc_u32 s{r+1}, s{r+1}, 0'); a.e(f's_mov_b32 s{r+2}, 49152'); a.e(f's_mov_b32 s{r+3}, 0x20000')
    r = R['WQ']; a.e('s_lshl_b32 s96, s83, 8')
    a.e(f's_add_u32 s{r}, s{r}, s96'); a.e(f's_addc_u32 s{r+1}, s{r+1}, 0'); a.e(f's_sub_u32 s{r+2}, 0x400000, s96'); a.e(f's_mov_b32 s{r+3}, 0x20000')
    r = R['WO']; a.e('s_lshl_b32 s96, s83, 17')
    a.e(f's_add_u32 s{r}, s{r}, s96'); a.e(f's_addc_u32 s{r+1}, s{r+1}, 0'); a.e(f's_mov_b32 s{r+2}, 0x20000'); a.e(f's_mov_b32 s{r+3}, 0x20000')
    r = R2['V']; r1 = R['V']
    a.e(f's_add_u32 s{r}, s{r1}, s80'); a.e(f's_addc_u32 s{r+1}, s{r1+1}, 0'); a.e(f's_mov_b32 s{r+2}, 0x80000'); a.e(f's_mov_b32 s{r+3}, 0x20000')
    r = R2['WO']; r1 = R['WO']
    a.e(f's_cmp_eq_u32 s{S_ISA[1]}, 1'); a.e('s_mov_b32 s96, 0x200000'); a.e('s_cselect_b32 s96, 0x20000, s96')
    a.e(f's_add_u32 s{r}, s{r1}, s96'); a.e(f's_addc_u32 s{r+1}, s{r1+1}, 0'); a.e(f's_mov_b32 s{r+2}, 0x20000'); a.e(f's_mov_b32 s{r+3}, 0x20000')
    a.e(f's_mov_b32 s{S_KD}, s80')
    r = R2['K']; a.e('s_mul_i32 s96, s92, 49152')
    a.e(f's_add_u32 s{r}, s22, s96'); a.e(f's_addc_u32 s{r+1}, s23, 0'); a.e(f's_mov_b32 s{r+2}, 49152'); a.e(f's_mov_b32 s{r+3}, 0x20000')
    r = R2['WQ']; a.e('s_add_u32 s96, s93, 16'); a.e('s_lshl_b32 s96, s96, 8')
    a.e(f's_add_u32 s{r}, s84, s96'); a.e(f's_addc_u32 s{r+1}, s85, 0'); a.e(f's_sub_u32 s{r+2}, 0x400000, s96'); a.e(f's_mov_b32 s{r+3}, 0x20000')
    a.e(f's_and_b32 s{S_RWP}, s92, 3')
    a.e('s_mul_i32 s96, s95, 12288'); a.e(f's_add_u32 s96, s96, {QIMG_OFF:#x}')
    a.e(f's_add_u32 s{R_QI}, s90, s96'); a.e(f's_addc_u32 s{R_QI+1}, s91, 0'); a.e(f's_mov_b32 s{R_QI+2}, 12288'); a.e(f's_mov_b32 s{R_QI+3}, 0x20000')
    a.e(f's_lshl_b32 s96, s95, 7'); a.e(f's_add_u32 s{S_QF}, s96, {QFLG}')
    a.e('s_lshr_b32 s97, s83, 1')
    a.e(f's_cmp_eq_u32 s{S_ISA[1]}, 1'); a.e('s_cselect_b32 s94, 0, 8'); a.e('s_cselect_b32 s83, s97, s83'); a.e('s_add_u32 s94, s94, s81')
    r = SRD[2]['PT']; a.e('s_lshl_b32 s93, s94, 4'); a.e('s_add_u32 s93, s93, s83'); a.e('s_mul_i32 s96, s93, 49152')
    a.e(f's_add_u32 s{r}, s90, s96'); a.e(f's_addc_u32 s{r+1}, s91, 0'); a.e(f's_mov_b32 s{r+2}, 49152'); a.e(f's_mov_b32 s{r+3}, 0x20000')
    a.e('s_lshl_b32 s94, s94, 7'); a.e('s_lshl_b32 s96, s83, 2'); a.e(f's_add_u32 s{S_FG[2]}, s94, s96')
    a.e(f's_add_u32 s{R_FLG}, s90, {FLG_OFF:#x}'); a.e(f's_addc_u32 s{R_FLG+1}, s91, 0'); a.e(f's_mov_b32 s{R_FLG+2}, 36864'); a.e(f's_mov_b32 s{R_FLG+3}, 0x20000')
    a.e(f's_lshl_b32 s{S_WQO}, s{S_W}, 20'); a.e(f's_lshl_b32 s{S_XO}, s{S_W}, 8')
    a.e('s_mov_b32 s80, s88'); a.e('s_mov_b32 s81, s89'); a.e('s_mov_b32 s82, 256'); a.e('s_mov_b32 s83, 0x20000')
    a.e(f's_mov_b32 s{R_DBGK}, s88'); a.e(f's_mov_b32 s{R_DBGK+1}, s89')
    a.e(f's_mov_b32 s{S_C}, {f32bits(math.log2(math.e) / math.sqrt(128.0)):#x}')
    a.e(f's_cmp_lg_u32 s{S_W}, 0'); a.e('s_cbranch_scc1 L_noclear')
    a.e('s_mov_b64 exec, 1'); a.e('v_mov_b32 v1, 0')
    a.e(f'buffer_store_dword v1, v1, s[{R_FLG}:{R_FLG+3}], s{S_FG[2]} offen sc1')
    a.e(f's_cmp_eq_u32 s{S_ISA[1]}, 0'); a.e('s_cbranch_scc1 L_noclear2')
    a.e(f'buffer_store_dword v1, v1, s[{R_FLG}:{R_FLG+3}], s{S_QF} offen sc1')
    a.e(f'v_mov_b32 v2, {OFLG}')
    a.e(f'buffer_store_dword v1, v2, s[{R_FLG}:{R_FLG+3}], s{S_QF} offen sc1')
    a.label('L_noclear2')
    a.e('s_mov_b64 exec, -1')
    a.label('L_noclear')

    ntw = ' nt' if cfg.nt_w else ''
    pend = []
    def pump(n=1):
        for _ in range(n):
            if not pend: return
            tag, th = pend.pop(0); th()
    def flush(): pump(len(pend))
    def wait_vm(tag):
        while any(t == tag for t, _ in pend): pump()
        a.wait_vm(tag)
    DYN = 'DYN'
    dynid = [0]
    def dma(tag, srd, slot, vE, vO, RS, sbase, const, npieces=8, flags='', pre=None, dyn=None):
        for p in range(npieces):
            def th(p=p):
                if p == 0 and pre: pre()
                if p % 4 == 0: a.e(f's_add_u32 m0, s{S_LB}, {slot*8192 + (p//4)*4096}')
                off = const + p*4*RS - (p & 3)*1024
                if RS == 256:
                    if p % 4 == 0: a.e(f's_add_u32 s{S_T2}, s{sbase}, {off}')
                else:
                    a.e(f's_add_u32 s{S_T2}, s{sbase}, {off}')
                v = vE if p % 2 == 0 else vO
                if dyn is None:
                    a.vmop(tag, f'buffer_load_dwordx4 v{v}, s[{srd}:{srd+3}], s{S_T2} offen offset:{(p&3)*1024}{flags} lds')
                else:
                    isa, fa, fb = dyn
                    k = dynid[0]; dynid[0] += 1
                    a.e(f's_cmp_eq_u32 s{isa}, 0'); a.e(f's_cbranch_scc1 L_dyb{k}')
                    a.e(f'buffer_load_dwordx4 v{v}, s[{srd}:{srd+3}], s{S_T2} offen offset:{(p&3)*1024}{fa} lds')
                    a.e(f's_branch L_dye{k}'); a.label(f'L_dyb{k}')
                    a.vmop(tag, f'buffer_load_dwordx4 v{v}, s[{srd}:{srd+3}], s{S_T2} offen offset:{(p&3)*1024}{fb} lds')
                    a.label(f'L_dye{k}')
            pend.append((tag, th))
    def regload(tag, srd, regbase, sbase, flags, pre):
        for p in range(8):
            def th(p=p):
                if p == 0 and pre: pre()
                if p % 4 == 0: a.e(f's_add_u32 s{S_T2}, s{sbase}, {(p//4)*4096}')
                v = DE if p % 2 == 0 else DO
                a.vmop(tag, f'buffer_load_dwordx4 {ar(regbase+4*p, 4)}, v{v}, s[{srd}:{srd+3}], s{S_T2} offen offset:{(p&3)*1024}{flags}')
            pend.append((tag, th))
    def commit(regbase, slot):
        a.e(f'v_add_u32 v{TMP+11}, s{S_LB}, v{V_L16}')
        for p in range(8):
            a.e(f'ds_write_b128 v{TMP+11}, {ar(regbase+4*p, 4)} offset:{slot*8192+p*1024}')
    def dma_kv(n, u, which, slot, fl, reg=None):
        pre = None
        if which == 'K':
            def pre():
                a.e(f's_add_u32 s{S_T4}, s{S_STEP}, s{S_ROT}'); a.e(f's_and_b32 s{S_T4}, s{S_T4}, 3')
                a.e(f's_and_b32 s{S_OFF}, s{S_STEP}, -4'); a.e(f's_or_b32 s{S_OFF}, s{S_OFF}, s{S_T4}')
                a.e(f's_lshl_b32 s{S_OFF}, s{S_OFF}, 15'); a.e(f's_add_u32 s{S_OFF}, s{S_OFF}, s{S_W8}')
                a.e(f's_add_u32 s{S_STEP}, s{S_STEP}, 1')
            dyn = None
            if fl == DYN:
                fl = ''
                if cfg.dynflags and cfg.flA != cfg.flBK: dyn = (S_ISA[u], cfg.flA, cfg.flBK)
            if reg is not None: regload(f'R{reg}', SRD[u]['K'], reg, S_OFF, fl, pre)
            else: dma(f'K{n&1}', SRD[u]['K'], slot, DE, DO, 256, S_OFF, 0, flags=fl, pre=pre, dyn=dyn)
        else:
            def pre():
                a.e(f's_add_u32 s{S_T4}, s{S_VSTEP}, s{S_ROT}'); a.e(f's_and_b32 s{S_T4}, s{S_T4}, 3')
                a.e(f's_and_b32 s{S_OFFV}, s{S_VSTEP}, -4'); a.e(f's_or_b32 s{S_OFFV}, s{S_OFFV}, s{S_T4}')
                a.e(f's_lshl_b32 s{S_OFFV}, s{S_OFFV}, 15'); a.e(f's_add_u32 s{S_OFFV}, s{S_OFFV}, s{S_W8}')
                a.e(f's_add_u32 s{S_VSTEP}, s{S_VSTEP}, 1')
            dyn = None
            if fl == DYN:
                fl = ''
                if cfg.dynflags and cfg.flA != cfg.flBV: dyn = (S_ISA[u], cfg.flA, cfg.flBV)
            if reg is not None: regload(f'R{reg}', SRD[u]['V'], reg, S_OFFV, fl, pre)
            else: dma(f'V{n&1}', SRD[u]['V'], slot, DE, DO, 256, S_OFFV, 0, flags=fl, pre=pre, dyn=dyn)
    S_VSTEP, S_OFFV = 84, 83
    def rot_pre(j, base_sgpr, shift, rw=S_RW):
        def pre():
            a.e(f's_add_u32 s{S_WB}, s{rw}, {j}'); a.e(f's_and_b32 s{S_WB}, s{S_WB}, 3'); a.e(f's_lshl_b32 s{S_WB}, s{S_WB}, {shift}')
            a.e(f's_add_u32 s{S_WB}, s{S_WB}, s{base_sgpr}')
        return pre
    def dma_x(srd, part, slot, pfx=''): dma(f'{pfx}X{part}', srd, slot, OE, OO, 1024, S_XO, part*32*1024, npieces=8 if part == 0 else 4, flags=ntw)
    def dma_wq(srd, j, slot, rw=S_RW, pfx=''): dma(f'{pfx}W{j}', srd, slot, QE, QO, 8192, S_WB, 0, flags=ntw, pre=rot_pre(j, S_WQO, 18, rw))
    def dma_wo(u, s, slot): dma(f'WO{s}', SRD[u]['WO'], slot, OE, OO, 1024, S_WB, 0, flags=ntw, pre=rot_pre(s, S_XO, 15))

    def tr_reads(slot, buf=AV):
        for tau in range(8):
            a.e(f'ds_read_b64_tr_b16 {ar(buf+4*tau, 2)}, v{TRA+tau} offset:{slot*8192}')
            a.e(f'ds_read_b64_tr_b16 {ar(buf+4*tau+2, 2)}, v{TRA+tau} offset:{slot*8192+4096}')
    def k_reads(slot):
        for s in range(4):
            for kt in range(2):
                a.e(f'ds_read_b128 {ar(AK+(s*2+kt)*4, 4)}, v{KA+s} offset:{slot*8192+kt*4096}')
    def pv_mfmas(bfrag, first, buf=AV, acc2=False):
        out = []
        for tau in range(8):
            for qt in range(3):
                d = ar(AO2 + (tau*3+qt)*4, 4) if acc2 else vr(Oreg(tau, qt), 4)
                out.append(f'v_mfma_f32_16x16x32_bf16 {d}, {ar(buf+4*tau, 4)}, {bfrag(qt)}, {"0" if first else d}')
        return out
    def qk_mfmas(buf, qbase=AQ):
        out = []
        for s in range(4):
            for kt in range(2):
                for qt in range(3):
                    d = vr(Sreg(buf, kt, qt), 4)
                    out.append(f'v_mfma_f32_16x16x32_bf16 {d}, {ar(AK+(s*2+kt)*4, 4)}, {ar(qbase+(qt*4+s)*4, 4)}, {"0" if s == 0 else d}')
        return out
    def pvw(slot, bfrag, first, after_reads):
        tr_reads(slot)
        a.e('s_waitcnt lgkmcnt(0)')
        if after_reads: after_reads()
        for i, m in enumerate(pv_mfmas(bfrag, first)):
            a.e(m)
            if i % 3 == 2: pump()
    def proj(steps):
        if not cfg.dbuf:
            for tag, slot, bfrag, first, after in steps:
                wait_vm(tag); pvw(slot, bfrag, first, after)
            return
        bufs = [AV, AK]
        wait_vm(steps[0][0]); tr_reads(steps[0][1], bufs[0])
        for i, (tag, slot, bfrag, first, after) in enumerate(steps):
            a.e('s_waitcnt lgkmcnt(0)')
            if after: after()
            for k, m in enumerate(pv_mfmas(bfrag, first, bufs[i & 1])):
                a.e(m)
                if k % 3 == 2: pump()
                if k == 8 and i + 1 < len(steps):
                    wait_vm(steps[i+1][0]); tr_reads(steps[i+1][1], bufs[(i+1) & 1])
    def interleave(mf, va, extras):
        tot = sum(c for c, _ in va)
        n = len(mf); done = 0; vi = 0
        if n == 0:
            for c, s_ in va: a.e(s_)
            for k in sorted(extras): extras[k]()
            return
        for i, m in enumerate(mf):
            a.e(m)
            target = tot * (i + 1) / n
            while vi < len(va) and done + va[vi][0] / 2 <= target:
                a.e(va[vi][1]); done += va[vi][0]; vi += 1
            if i in extras: extras[i]()
        while vi < len(va): a.e(va[vi][1]); vi += 1
    def sm_exp_cvt(buf):
        va = []
        def exps(qt):
            for kt in range(2):
                for r in range(4):
                    x = Sreg(buf, kt, qt) + r; va.append((8, f'v_exp_f32 v{x}, v{x}'))
        def cvts(qt):
            for kt in range(2):
                x = Sreg(buf, kt, qt)
                va.append((4, f'v_cvt_pk_bf16_f32 v{P+qt*4+kt*2}, v{x}, v{x+1}'))
                va.append((4, f'v_cvt_pk_bf16_f32 v{P+qt*4+kt*2+1}, v{x+2}, v{x+3}'))
        exps(0); exps(1); cvts(0); exps(2); cvts(1); cvts(2)
        return va
    def sm_adds(buf, ml=ML):
        va = []
        for kt in range(2):
            for r in range(4):
                for qt in range(3):
                    va.append((4, f'v_add_f32 v{ml+2*qt+1}, v{ml+2*qt+1}, v{Sreg(buf, kt, qt)+r}'))
        return va
    def sm_first(buf, ml=ML):
        va = []
        for kt in range(2):
            for qt in range(3):
                for r in range(4):
                    x = Sreg(buf, kt, qt) + r
                    va.append((4, f'v_fma_f32 v{x}, v{x}, s{S_C}, -v{ml+2*qt}'))
        for qt in range(3):
            r0 = Sreg(buf, 0, qt); va.append((4, f'v_max3_f32 v{TMP+qt}, v{r0}, v{r0+1}, v{r0+2}'))
        for qt in range(3):
            r0 = Sreg(buf, 0, qt); r1 = Sreg(buf, 1, qt); va.append((4, f'v_max3_f32 v{TMP+qt}, v{TMP+qt}, v{r0+3}, v{r1}'))
        for qt in range(3):
            r1 = Sreg(buf, 1, qt); va.append((4, f'v_max3_f32 v{TMP+qt}, v{TMP+qt}, v{r1+1}, v{r1+2}'))
        for qt in range(3):
            r1 = Sreg(buf, 1, qt); va.append((4, f'v_max_f32 v{TMP+qt}, v{TMP+qt}, v{r1+3}'))
        va.append((4, f'v_max3_f32 v{TMP+3}, v{TMP}, v{TMP+1}, v{TMP+2}'))
        return va
    site = [0]
    def sm_check(buf, joint=False):
        thr = S_THR2 if (joint and buf == 1) else S_THR
        a.e(f'v_cmp_lt_f32 vcc, s{thr}, v{TMP+3}')
        k = site[0]; site[0] += 1
        a.e(f's_cbranch_vccz L_fast{k}')
        a.e(f's_call_b64 s[{S_RET}:{S_RET+1}], L_rescale{"J1" if (joint and buf == 1) else buf}')
        a.label(f'L_fast{k}')
    def kslot(sl, n): return sl(2) if n % 2 == 0 else sl(0)
    def vslot(sl, n): return sl(3) if n % 2 == 0 else sl(1)

    def stage1(i, sl, do_qk, enq):
        a.e('s_waitcnt lgkmcnt(0)')
        if enq: enq()
        mf = qk_mfmas((i+1) & 1) if do_qk else []
        def vread():
            wait_vm(f'V{i&1}'); tr_reads(vslot(sl, i))
        ex = {}
        if do_qk:
            for k in (1, 4, 7, 13, 16, 19, 21, 23): ex[k] = pump
            ex[10] = vread
        else:
            vread()
        interleave(mf, sm_exp_cvt(i & 1), ex)
        flush()
    def stage2(i, sl, do_next, enq, kread_next):
        a.e('s_waitcnt lgkmcnt(0)')
        if enq: enq()
        mf = pv_mfmas(lambda qt: vr(P+qt*4, 4), False)
        va = sm_adds(i & 1) + (sm_first((i+1) & 1) if do_next else [])
        ex = {}
        for k in (1, 4, 7, 13, 16, 19, 21, 23): ex[k] = pump
        if kread_next:
            def kread():
                wait_vm(f'K{i&1}'); k_reads(kslot(sl, i+2))
            ex[10] = kread
        interleave(mf, va, ex)
        flush()
        if do_next: sm_check((i+1) & 1)

    def jstage1(n, sl, do_qk, enq):
        if n % 2 == 1: a.e('s_waitcnt lgkmcnt(0)')
        if enq: enq()
        mf = qk_mfmas((n+1) & 1, AQ2 if (n+1) & 1 else AQ) if do_qk else []
        ex = {}
        if do_qk:
            for k in (3, 9, 15, 21): ex[k] = pump
        def vread():
            wait_vm(f'V{(n//2)&1}'); tr_reads(vslot(sl, n//2))
        if n % 2 == 0:
            if do_qk: ex[11] = vread
            else: vread()
        interleave(mf, sm_exp_cvt(n & 1), ex)
        if not do_qk: pump(4)
    def jstage2(n, sl, do_next, enq, kread_next):
        if n % 2 == 0: a.e('s_waitcnt lgkmcnt(0)')
        if enq: enq()
        mf = pv_mfmas(lambda qt: vr(P+qt*4, 4), False, acc2=bool(n & 1))
        va = sm_adds(n & 1, ML2 if n & 1 else ML) + (sm_first((n+1) & 1, ML2 if (n+1) & 1 else ML) if do_next else [])
        ex = {}
        for k in (3, 9, 15, 21): ex[k] = pump
        if n % 2 == 0 and kread_next:
            def kread():
                wait_vm(f'K{(n//2+1)&1}'); k_reads(kslot(sl, n//2+1))
            ex[11] = kread
        interleave(mf, va, ex)
        if do_next: sm_check((n+1) & 1, joint=True)

    def allreduce(reg, op):
        t = TMP + 10
        a.e(f'v_mov_b32 v{t}, v{reg}'); a.nop(2)
        a.e(f'v_permlane32_swap_b32 v{reg}, v{t}'); a.nop(1)
        a.e(f'{op} v{reg}, v{reg}, v{t}')
        a.e(f'v_mov_b32 v{t}, v{reg}'); a.nop(2)
        a.e(f'v_permlane16_swap_b32 v{reg}, v{t}'); a.nop(1)
        a.e(f'{op} v{reg}, v{reg}, v{t}')

    def allreduce3(regs, op):
        t = TMP + 8
        for stage in ('v_permlane32_swap_b32', 'v_permlane16_swap_b32'):
            for i, r in enumerate(regs): a.e(f'v_mov_b32 v{t+i}, v{r}')
            a.nop(1)
            for i, r in enumerate(regs): a.e(f'{stage} v{r}, v{t+i}')
            a.nop(1)
            for i, r in enumerate(regs): a.e(f'{op} v{r}, v{r}, v{t+i}')
    def exchange(kind, slotA, slotB, after_in, inter=None, qdst=AQ, agpr=False, stoff=6144, odst=AX, mini=False, extra=False):
        a.c(f'--- exchange {kind}')
        t = TMP
        FA = 1
        if kind == 'O':
            a.e(f'v_and_b32 v{t}, 15, v{V_LANE}'); a.e(f'v_lshlrev_b32 v{t}, 3, v{t}')
            for rho in range(4):
                a.e(f's_sub_u32 s{S_T}, s{S_W}, {rho}'); a.e(f's_and_b32 s{S_T}, s{S_T}, 3'); a.e(f's_lshl_b32 s{S_T}, s{S_T}, 13')
                a.e(f's_add_u32 s{S_T}, s{S_T}, {AUX+stoff}'); a.e(f'v_add_u32 v{t+1+rho}, s{S_T}, v{t}')
            for rho in range(4):
                for qt in range(3):
                    a.e(f'ds_read_b64 {vr(IN+(rho*3+qt)*2, 2)}, v{t+1+rho} offset:{qt*128}')
        for rho in (1, 2, 3):
            a.e(f's_add_u32 s{S_T}, s{S_W}, {rho}'); a.e(f's_and_b32 s{S_T}, s{S_T}, 3')
            if rho < 3: a.e(f's_lshl_b32 s{S_T}, s{S_T}, 15')
            else: a.e(f's_lshl_b32 s{S_T}, s{S_T}, 13'); a.e(f's_add_u32 s{S_T}, s{S_T}, {AUX}')
            a.e(f'v_add_u32 v{t+5+rho}, s{S_T}, v{V_L16}')
        inter = list(inter or [])
        for rho in (1, 2, 3):
            base = {1: slotA*8192, 2: slotB*8192, 3: 0}[rho]
            for i in range(6):
                src = ar(AO2+24*rho+4*i, 4) if agpr else vr(O+24*rho+4*i, 4)
                a.e(f'ds_write_b128 v{t+5+rho}, {src} offset:{base+i*1024}')
                if inter: inter.pop(0)()
        while inter: inter.pop(0)()
        OW = OT if agpr else O
        if agpr:
            for i in range(24): a.e(f'v_accvgpr_read_b32 v{OT+i}, a{AO2+i}')
        if kind == 'O':
            a.e('s_waitcnt lgkmcnt(15)')
            for qt in range(3):
                m = lambda rho: IN + (rho*3+qt)*2
                mm = t
                a.e(f'v_max3_f32 v{mm}, v{m(0)}, v{m(1)}, v{m(2)}'); a.e(f'v_max_f32 v{mm}, v{mm}, v{m(3)}')
                mA, lA = ML2 + 2*qt, ML2 + 2*qt + 1
                if extra: a.e(f'v_max_f32 v{mm}, v{mm}, v{mA}')
                for rho in range(4): a.e(f'v_sub_f32 v{m(rho)}, v{m(rho)}, v{mm}')
                if extra: a.e(f'v_sub_f32 v{mA}, v{mA}, v{mm}')
                for rho in range(4): a.e(f'v_exp_f32 v{m(rho)}, v{m(rho)}')
                if extra: a.e(f'v_exp_f32 v{mA}, v{mA}')
                a.nop(1)
                a.e(f'v_mul_f32 v{t+1}, v{m(0)}, v{m(0)+1}')
                for rho in range(1, 4): a.e(f'v_fma_f32 v{t+1}, v{m(rho)}, v{m(rho)+1}, v{t+1}')
                if extra:
                    a.e(f'v_mul_f32 v{mA}, v{mA}, v{lA}'); a.e(f'v_add_f32 v{t+1}, v{t+1}, v{mA}')
                if mini:
                    a.e(f'v_mov_b32 v{M_(qt)}, v{mm}'); a.e(f'v_mov_b32 v{L_(qt)}, v{t+1}')
                a.e(f'v_rcp_f32 v{t+1}, v{t+1}'); a.nop(1)
                for rho in range(4): a.e(f'v_mul_f32 v{FA+rho*3+qt}, v{m(rho)}, v{t+1}')
                if extra: a.e(f'v_mul_f32 v{13+qt}, v{mA}, v{t+1}')
        a.e(f'v_add_u32 v{t+2}, s{S_LB}, v{V_L16}')
        a.e(f's_lshl_b32 s{S_T}, s{S_W}, 13'); a.e(f's_add_u32 s{S_T}, s{S_T}, {AUX}')
        a.e(f'v_add_u32 v{t+3}, s{S_T}, v{V_L16}')
        a.e('s_waitcnt lgkmcnt(0)'); a.e('s_barrier')
        for rho in (1, 2, 3):
            for i in range(6):
                if rho < 3: a.e(f'ds_read_b128 {vr(IN+24*(rho-1)+4*i, 4)}, v{t+2} offset:{ {1: slotA*8192, 2: slotB*8192}[rho] + i*1024}')
                else: a.e(f'ds_read_b128 {vr(IN+24*(rho-1)+4*i, 4)}, v{t+3} offset:{i*1024}')
        if kind == 'Q':
            a.e(f'v_lshrrev_b32 v{t+4}, 5, v{V_LANE}'); a.e(f'v_lshlrev_b32 v{t+4}, 8, v{t+4}')
            a.e(f'v_and_b32 v{t+5}, 15, v{V_LANE}'); a.e(f'v_lshl_add_u32 v{t+4}, v{t+5}, 4, v{t+4}')
            a.e(f'v_bfe_u32 v{t+5}, v{V_LANE}, 4, 1'); a.e(f'v_lshl_add_u32 v{t+4}, v{t+5}, 3, v{t+4}')
            a.e(f'v_add_u32 v{t+4}, s{S_T}, v{t+4}')
            uoff = 512
        else:
            a.e(f'v_add_u32 v{t+4}, s{S_T}, v{V_L16}')
            uoff = 8
            for i in range(6):
                for r in range(4): a.e(f'v_mul_f32 v{OW+4*i+r}, v{OW+4*i+r}, v{FA+(i%3)}')
        a.e('s_waitcnt lgkmcnt(12)')
        for rho in (1, 2, 3):
            if rho == 2: a.e('s_waitcnt lgkmcnt(6)')
            if rho == 3:
                a.e('s_waitcnt lgkmcnt(0)')
                if after_in: after_in()
            for i in range(6):
                for r in range(4):
                    x = OW + 4*i + r; y = IN + 24*(rho-1) + 4*i + r
                    if kind == 'O': a.e(f'v_fmac_f32 v{x}, v{y}, v{FA+rho*3+(i%3)}')
                    else: a.e(f'v_add_f32 v{x}, v{x}, v{y}')
        if extra:
            for i in range(6):
                for r in range(4): a.e(f'v_fmac_f32 v{OW+4*i+r}, v{OT+4*i+r}, v{13+(i%3)}')
        if mini: return
        for tau in range(2):
            for qt in range(3):
                x = OW + (tau*3+qt)*4; d = IN + (tau*3+qt)*2
                a.e(f'v_cvt_pk_bf16_f32 v{d}, v{x}, v{x+1}'); a.e(f'v_cvt_pk_bf16_f32 v{d+1}, v{x+2}, v{x+3}')
        for tau in range(2):
            for qt in range(3):
                d = IN + (tau*3+qt)*2
                a.e(f'ds_write_b64 v{t+4}, {vr(d, 2)} offset:{qt*1024 + tau*uoff}')
        pump(4)
        if kind == 'O':
            for s in range(4):
                a.e(f's_add_u32 s{S_T}, s{S_RW}, {s}'); a.e(f's_and_b32 s{S_T}, s{S_T}, 3'); a.e(f's_lshl_b32 s{S_T}, s{S_T}, 13')
                a.e(f's_add_u32 s{S_T}, s{S_T}, {AUX}'); a.e(f'v_add_u32 v{t+5+s}, s{S_T}, v{V_L16}')
        else:
            a.e(f'v_add_u32 v{t+5}, {AUX}, v{V_L16}')
        a.e('s_waitcnt lgkmcnt(0)'); a.e('s_barrier')
        for s in range(4):
            for qt in range(3):
                if kind == 'Q': a.e(f'ds_read_b128 {ar(qdst + (qt*4 + s)*4, 4)}, v{t+5} offset:{s*8192 + qt*1024}')
                else: a.e(f'ds_read_b128 {ar(odst + (qt*4 + s)*4, 4)}, v{t+5+s} offset:{qt*1024}')
        pump(4)
        a.e('s_waitcnt lgkmcnt(0)')

    def set_flag(u, lbl):
        a.e(f's_cmp_lg_u32 s{S_W}, 0'); a.e(f's_cbranch_scc1 {lbl}')
        a.e('s_mov_b64 exec, 1'); a.e(f'v_mov_b32 v{TMP}, 0'); a.e(f'v_mov_b32 v{TMP+1}, 1')
        a.e(f'buffer_store_dword v{TMP+1}, v{TMP}, s[{R_FLG}:{R_FLG+3}], s{S_FG[u]} offen sc1')
        a.e('s_mov_b64 exec, -1')
        a.label(lbl)
        a.nop(2)

    def store_thunks(u):
        r = SRD[u]['PT']
        out = []
        for qt in range(3):
            for pi in range(4):
                def th(qt=qt, pi=pi):
                    d = IN + (qt*4+pi)*4
                    if pi == 0: a.e(f's_mov_b32 s{S_T3}, {qt*4096}')
                    a.vmop('ST', f'buffer_store_dwordx4 {vr(d, 4)}, v{V_ST}, s[{r}:{r+3}], s{S_T3} offen offset:{pi*1024}{cfg.st_flags}')
                out.append(th)
        return out
    def stores(u):
        for i, th in enumerate(store_thunks(u)):
            th()
            if i % 4 == 3: pump()
    loops = []
    PREF = [None]
    def qphase2(srdWQ, rw, sl, after_step, after_in, pfx, qdst, xb=AX):
        wslot = [sl(2), sl(3), sl(0), sl(1)]
        proj([(f'{pfx}W{j}', wslot[j], (lambda qt, j=j: ar(xb + (qt*4 + j)*4, 4)), j == 0, after_step[j]) for j in range(4)])
        flush()
        a.nop(8)
        a.e('s_barrier')
        exchange('Q', sl(0), sl(1), after_in, qdst=qdst)
        flush()
    def qphase(srdWQ, rw, sl, after_step, after_in, pfx='', count=False, xb=AX, pre_b=None, post_b=None):
        for j in range(4):
            a.e(f's_add_u32 s{S_T}, s{rw}, {j}'); a.e(f's_and_b32 s{S_T}, s{S_T}, 3'); a.e(f's_lshl_b32 s{S_T}, s{S_T}, 6')
            a.e(f'v_xor_b32 v{TMP+2*j}, s{S_T}, v{V_XB}'); a.e(f'v_xor_b32 v{TMP+2*j+1}, 32, v{TMP+2*j}')
        wait_vm(f'{pfx}X1')
        if count:
            a.e(f's_cmp_lg_u32 s{S_W}, 0'); a.e(f's_cbranch_scc1 L_nocount{count}')
            a.e('s_mov_b64 exec, 1'); a.e('v_mov_b32 v1, 0'); a.e('v_mov_b32 v2, 1')
            a.e('buffer_atomic_add v2, v1, s[80:83], 0 offen sc1')
            a.e('s_mov_b64 exec, -1')
            a.label(f'L_nocount{count}')
        for qt in range(3):
            for j in range(4):
                for uu in range(2):
                    r = xb + (qt*4 + j)*4 + uu*2
                    off = (sl(0)*8192 + qt*4096) if qt < 2 else sl(1)*8192
                    a.e(f'ds_read_b64 a[{r}:{r+1}], v{TMP+2*j+uu} offset:{off}')
        a.e('s_waitcnt lgkmcnt(0)')
        dma_wq(srdWQ, 2, sl(0), rw, pfx); dma_wq(srdWQ, 3, sl(1), rw, pfx); flush()
        wslot = [sl(2), sl(3), sl(0), sl(1)]
        proj([(f'{pfx}W{j}', wslot[j], (lambda qt, j=j: ar(xb + (qt*4 + j)*4, 4)), j == 0, after_step[j]) for j in range(4)])
        flush()
        a.nop(8)
        if pre_b: pre_b()
        a.e('s_barrier')
        if post_b: post_b()
        exchange('Q', sl(0), sl(1), after_in)
        flush()

    def unit(u, br):
        isA = br == 'A'
        sg = 2 if (u == 2 and isA and not cfg.aa_q2_first) else 0
        sl = lambda n: (n + sg) & 3
        fk, fv = (cfg.flA, cfg.flA) if isA else (cfg.flBK, cfg.flBV)
        if cfg.bb2_def and u == 2 and not isA: fk, fv = '', ''
        a.c(f'================ {br}{br} unit {u}')
        q2f = cfg.aa_q2_first and isA
        if u == 1 and q2f:
            a.e(f's_mov_b32 s{S_STEP}, 0'); a.e(f's_mov_b32 s{S_VSTEP}, 0')
            W2 = SRD[2]['WQ']
            qphase(SRD[1]['WQ'], S_RW, sl,
                   [lambda: dma_wq(W2, 0, sl(2), S_RW, 'z'), lambda: dma_wq(W2, 1, sl(3), S_RW, 'z'), None, None],
                   lambda: (dma_wq(W2, 2, sl(0), S_RW, 'z'), dma_wq(W2, 3, sl(1), S_RW, 'z')))
            qphase2(W2, S_RW, sl,
                    [None, None, lambda: dma_kv(0, u, 'K', sl(2), fk), lambda: dma_kv(0, u, 'V', sl(3), fv)],
                    lambda: dma_kv(1, u, 'K', sl(0), fk), 'z', ASAVE)
        elif u == 2 and q2f:
            pass
        elif not (u == 2 and not isA):
            a.e(f's_mov_b32 s{S_STEP}, 0'); a.e(f's_mov_b32 s{S_VSTEP}, 0')
            j0 = 2 if cfg.kv0_late else 0
            steps = [None]*4
            steps[j0] = lambda: dma_kv(0, u, 'K', sl(2), fk)
            steps[j0+1] = lambda: dma_kv(0, u, 'V', sl(3), fv)
            qphase(SRD[u]['WQ'], S_RW, sl, steps, lambda: dma_kv(1, u, 'K', sl(0), fk), count=('B' if (u == 1 and not isA) else False))
        else:
            wait_vm('QF')
        stamp()
        if cfg.fake_joint and isA and u == 2:
            a.wait_vm_all()
            PREF[0]([(16, 16 - cfg.fake_joint, cfg.fake_joint)], 'b')
            a.wait_vm_all()
            stamp(); stamp()
            dma_wo(u, 0, sl(2)); dma_wo(u, 1, sl(3)); flush()
            a.e('s_barrier')
            exchange('O', sl(0), sl(1), lambda: (dma_wo(u, 2, sl(0)), dma_wo(u, 3, sl(1))))
            stamp()
            oslot = [sl(2), sl(3), sl(0), sl(1)]
            for s_ in range(4):
                wait_vm(f'WO{s_}')
                pvw(oslot[s_], lambda qt, s_=s_: ax(qt, s_), s_ == 0, None)
            a.nop(8)
            stamp()
            for qt in range(3):
                for pi in range(4):
                    d = IN + (qt*4+pi)*4
                    for h2 in range(2):
                        x = Oreg(2*pi+h2, qt)
                        a.e(f'v_cvt_pk_bf16_f32 v{d+2*h2}, v{x}, v{x+1}'); a.e(f'v_cvt_pk_bf16_f32 v{d+2*h2+1}, v{x+2}, v{x+3}')
            stores(u)
            return
        wait_vm('K0'); k_reads(sl(2))
        for i in range(96): a.e(f'v_mov_b32 v{O+i}, 0')
        for qt in range(3):
            a.e(f'v_mov_b32 v{M_(qt)}, 0'); a.e(f'v_mov_b32 v{L_(qt)}, 0')
        a.e(f's_mov_b32 s{S_THR}, 0xff800000'); a.e(f's_mov_b32 s{S_FLOOR}, 0xff800000')
        a.e('s_waitcnt lgkmcnt(0)')
        dma_kv(2, u, 'K', sl(2), fk); dma_kv(1, u, 'V', sl(1), fv)
        for i, m in enumerate(qk_mfmas(0)):
            a.e(m)
            if i % 3 == 2: pump()
        wait_vm('K1'); k_reads(sl(0))
        flush()
        a.nop(4)
        for c, s_ in sm_first(0): a.e(s_)
        sm_check(0)
        assert a.vm[-16:] == ['K0']*8 + ['V1']*8, a.vm
        steady = ['V0']*8 + ['K0']*8 + ['V1']*8
        a.e(f's_mov_b32 s{S_CNT}, {6 - (cfg.mini//2 if (u == 2 and not isA) else 0)}')
        a.vm = list(steady)
        a.label(f'L_loop{br}{u}')
        start = len(a.L)
        for i in (0, 1):
            stage1(i, sl, True, lambda i=i: dma_kv(i+3, u, 'K', kslot(sl, i+3), fk))
            stage2(i, sl, True, lambda i=i: dma_kv(i+2, u, 'V', vslot(sl, i+2), fv), True)
        a.e(f's_sub_u32 s{S_CNT}, s{S_CNT}, 1'); a.e(f's_cmp_lg_u32 s{S_CNT}, 0'); a.e(f's_cbranch_scc1 L_loop{br}{u}')
        assert not pend and a.vm[-24:] == steady, a.vm
        loops.append((start, len(a.L)))
        stamp()
        getq = (u == 1 and not isA)
        def qcnt_load():
            a.e(f's_mov_b32 s36, s{R_DBGK}'); a.e(f's_mov_b32 s37, s{R_DBGK+1}'); a.e('s_mov_b32 s38, 256'); a.e('s_mov_b32 s39, 0x20000')
            a.e('v_mov_b32 v15, 0')
            a.vmop('QC1', 'buffer_load_dword v14, v15, s[36:39], 0 offen sc1')
        def qflag_loads():
            wait_vm('QC1')
            a.e(f's_mov_b32 s{S_T}, 20000')
            a.label('L_cchk')
            a.e(f'v_readfirstlane_b32 s{S_T3}, v14'); a.e('s_nop 3')
            a.e(f's_cmp_eq_u32 s{S_T3}, 256'); a.e('s_cbranch_scc1 L_cok')
            a.e('s_sleep 2')
            a.e('buffer_load_dword v14, v15, s[36:39], 0 offen sc1'); a.e('s_waitcnt vmcnt(0)')
            a.e(f's_sub_u32 s{S_T}, s{S_T}, 1'); a.e(f's_cmp_lg_u32 s{S_T}, 0'); a.e('s_cbranch_scc1 L_cchk')
            a.label('L_cok')
            a.vmop('QC', f'buffer_load_dword v13, v15, s[{R_FLG}:{R_FLG+3}], s{S_QF} offen sc1')
        getm = (u == 2 and not isA and cfg.mini)
        def mflag_load():
            build_mi()
            a.e(f'v_mov_b32 v15, {OFLG}')
            a.vmop('MC', f'buffer_load_dword v13, v15, s[{R_FLG}:{R_FLG+3}], s{S_QF} offen sc1')
        def mdata_loads():
            wait_vm('MC')
            a.e(f's_mov_b32 s{S_T}, 20000')
            a.label('L_mchk')
            a.e(f'v_readfirstlane_b32 s{S_T3}, v13'); a.e('s_nop 3')
            a.e(f's_cmp_eq_u32 s{S_T3}, 1'); a.e('s_cbranch_scc1 L_mok')
            a.e('s_sleep 2')
            a.e(f'buffer_load_dword v13, v15, s[{R_FLG}:{R_FLG+3}], s{S_QF} offen sc1'); a.e('s_waitcnt vmcnt(0)')
            a.e(f's_sub_u32 s{S_T}, s{S_T}, 1'); a.e(f's_cmp_lg_u32 s{S_T}, 0'); a.e('s_cbranch_scc1 L_mchk')
            a.label('L_mok')
            a.e(f's_mul_i32 s{S_T3}, s{S_W}, 6144')
            for i in range(6):
                if i == 4: a.e(f's_add_u32 s{S_T3}, s{S_T3}, 4096')
                a.vmop('MD', f'buffer_load_dwordx4 {vr(OT+4*i, 4)}, v{V_L16}, s[{R_QI}:{R_QI+3}], s{S_T3} offen offset:{(i%4)*1024} sc1')
            a.e(f'v_and_b32 v14, 15, v{V_LANE}'); a.e('v_lshlrev_b32 v14, 3, v14'); a.e(f's_mov_b32 s{S_T3}, 24576')
            for qt in range(3):
                a.vmop('MD', f'buffer_load_dwordx2 {vr(ML2+2*qt, 2)}, v14, s[{R_QI}:{R_QI+3}], s{S_T3} offen offset:{qt*128} sc1')
        stage1(12, sl, True, lambda: ((qcnt_load() if getq else None), dma_kv(15, u, 'K', kslot(sl, 15), fk)))
        stage2(12, sl, True, lambda: dma_kv(14, u, 'V', vslot(sl, 14), fv), True)
        stage1(13, sl, True, lambda: ((mflag_load() if (u == 2 and not isA and cfg.mini) else None), dma_wo(u, 0, sl(2))))
        stage2(13, sl, True, lambda: dma_kv(15, u, 'V', vslot(sl, 15), fv), True)
        stg = getq and cfg.stage_bb
        def s114():
            if getm: mdata_loads()
            if getq: qflag_loads()
            if stg:
                a.e(f's_mov_b32 s{S_STEP}, 0'); dma_kv(0, 2, 'K', None, fk, reg=ASAVE)
        def s115():
            a.e(f's_mov_b32 s{S_VSTEP}, 0'); dma_kv(0, 2, 'V', None, fv, reg=ASAVE+32)
        def s215():
            dma_kv(1, 2, 'K', None, fk, reg=ASAVE+64)
        stage1(14, sl, True, s114 if (getq or stg or getm) else None)
        stage2(14, sl, True, lambda: dma_wo(u, 1, sl(3)), False)
        stage1(15, sl, False, s115 if stg else None)
        stage2(15, sl, False, s215 if stg else None, False)
        stamp()
        if getq:
            wait_vm('QC')
            a.e(f's_mov_b32 s{S_T}, 20000')
            a.label('L_qchk')
            a.e(f'v_readfirstlane_b32 s{S_T3}, v13'); a.e('s_nop 3')
            a.e(f's_cmp_eq_u32 s{S_T3}, 1'); a.e('s_cbranch_scc1 L_qok')
            a.e('s_sleep 2')
            a.e(f'buffer_load_dword v13, v15, s[{R_FLG}:{R_FLG+3}], s{S_QF} offen sc1'); a.e('s_waitcnt vmcnt(0)')
            a.e(f's_sub_u32 s{S_T}, s{S_T}, 1'); a.e(f's_cmp_lg_u32 s{S_T}, 0'); a.e('s_cbranch_scc1 L_qchk')
            a.label('L_qok')
            for s_ in range(4):
                for qt in range(3):
                    idx = s_*3 + qt
                    if idx % 4 == 0: a.e(f's_mov_b32 s{S_T3}, {(idx//4)*4096}')
                    a.vmop('QF', f'buffer_load_dwordx4 {aq(qt, s_)}, v{V_L16}, s[{R_QI}:{R_QI+3}], s{S_T3} offen offset:{(idx%4)*1024} sc1')
            if not cfg.stage_bb: a.e(f's_mov_b32 s{S_STEP}, 0'); a.e(f's_mov_b32 s{S_VSTEP}, 0')
        if u == 1 and q2f:
            for i in range(48): a.e(f'v_accvgpr_mov_b32 a{AQ+i}, a{ASAVE+i}')
            a.e(f's_mov_b32 s{S_STEP}, 0'); a.e(f's_mov_b32 s{S_VSTEP}, 0')
        a.c('--- stats')
        allreduce3([L_(qt) for qt in range(3)], 'v_add_f32')
        t = TMP
        a.e(f'v_and_b32 v{t}, 15, v{V_LANE}'); a.e(f'v_lshlrev_b32 v{t}, 3, v{t}')
        a.e(f's_lshl_b32 s{S_T}, s{S_W}, 13'); a.e(f's_add_u32 s{S_T}, s{S_T}, {AUX+6144}'); a.e(f'v_add_u32 v{t+1}, s{S_T}, v{t}')
        for qt in range(3): a.e(f'ds_write_b64 v{t+1}, {vr(M_(qt), 2)} offset:{qt*128}')
        a.e('s_waitcnt lgkmcnt(0)'); a.e('s_barrier')
        if getm: wait_vm('MD')
        exchange('O', sl(0), sl(1), lambda: (dma_wo(u, 2, sl(0)), dma_wo(u, 3, sl(1))), extra=bool(getm))
        stamp()
        oslot = [sl(2), sl(3), sl(0), sl(1)]
        if u == 2:
            for i in range(96): a.e(f'v_accvgpr_read_b32 v{O+i}, a{ASAVE+i}')
        steps = []
        for s_ in range(4):
            after = None
            if u == 1 and isA and not q2f:
                after = [lambda: dma_x(SRD[1]['X'], 0, oslot[0]), lambda: dma_x(SRD[1]['X'], 1, oslot[1]), lambda: dma_wq(SRD[2]['WQ'], 0, oslot[2]), lambda: dma_wq(SRD[2]['WQ'], 1, oslot[3])][s_]
            if u == 1 and (not isA or q2f):
                after = [lambda: dma_kv(0, 2, 'K', 2, fk), lambda: dma_kv(0, 2, 'V', 3, fv), lambda: dma_kv(1, 2, 'K', 0, fk), None][s_]
            steps.append((f'WO{s_}', oslot[s_], (lambda qt, s_=s_: ax(qt, s_)), s_ == 0 and u == 1, after))
        proj(steps)
        a.nop(8)
        stamp()
        if u == 1:
            for i in range(96):
                a.e(f'v_accvgpr_write_b32 a{ASAVE+i}, v{O+i}')
                if i % 12 == 11: pump()
            if not isA or q2f: flush()
            return
        for qt in range(3):
            for pi in range(4):
                d = IN + (qt*4+pi)*4
                for h2 in range(2):
                    x = Oreg(2*pi+h2, qt)
                    a.e(f'v_cvt_pk_bf16_f32 v{d+2*h2}, v{x}, v{x+1}'); a.e(f'v_cvt_pk_bf16_f32 v{d+2*h2+1}, v{x+2}, v{x+3}')
        stores(u)

    def joint(pre_b=None, post_b=None):
        sl = lambda n: n & 3
        fk = cfg.flA; fv = cfg.flA if cfg.flAV is None else cfg.flAV
        a.c('================ joint A: two heads of one kv head')
        a.e(f's_mov_b32 s{S_STEP}, 0'); a.e(f's_mov_b32 s{S_VSTEP}, 0')
        W2 = SRD[2]['WQ']; XB = AO2
        qphase(SRD[1]['WQ'], S_RW, sl,
               [lambda: dma_wq(W2, 0, sl(2), S_RW, 'z'), lambda: dma_wq(W2, 1, sl(3), S_RW, 'z'), None, None],
               lambda: (dma_wq(W2, 2, sl(0), S_RW, 'z'), dma_wq(W2, 3, sl(1), S_RW, 'z')), xb=XB, pre_b=pre_b, post_b=post_b)
        qphase2(W2, S_RW, sl,
                [None, None, lambda: dma_kv(0, 1, 'K', sl(2), fk), lambda: dma_kv(0, 1, 'V', sl(3), fv)],
                lambda: (dma_kv(1, 1, 'K', sl(0), fk), dma_kv(1, 1, 'V', sl(1), fv)), 'z', AQ2, xb=XB)
        stamp()
        wait_vm('K0'); k_reads(sl(2))
        for i in range(96): a.e(f'v_mov_b32 v{O+i}, 0')
        for i in range(96): a.e(f'v_accvgpr_write_b32 a{AO2+i}, 0')
        for qt in range(3):
            for ml in (ML, ML2):
                a.e(f'v_mov_b32 v{ml+2*qt}, 0'); a.e(f'v_mov_b32 v{ml+2*qt+1}, 0')
        for r in (S_THR, S_FLOOR, S_THR2, S_FLOOR2): a.e(f's_mov_b32 s{r}, 0xff800000')
        a.e('s_waitcnt lgkmcnt(0)')
        dma_kv(2, 1, 'K', sl(2), fk)
        for i, m in enumerate(qk_mfmas(0, AQ)):
            a.e(m)
            if i in (3, 9, 15, 21): pump()
        a.nop(8)
        for c, s_ in sm_first(0, ML): a.e(s_)
        sm_check(0, joint=True)
        steady = ['V0']*8 + ['K1']*8 + ['V1']*8 + ['K0']*4
        assert a.vm[-28:] == steady and [t for t, _ in pend] == ['K0']*4, (a.vm, pend)
        a.e(f's_mov_b32 s{S_CNT}, 6')
        a.vm = list(steady)
        a.label('L_loopJ')
        start = len(a.L)
        if cfg.pf2_n:
            a.e(f's_cmp_eq_u32 s{S_CNT}, {cfg.pf2_cnt}'); a.e('s_cbranch_scc0 L_nopf2')
            a.e(f's_mov_b32 s79, s{S_W8}'); a.e(f's_mov_b32 s80, {cfg.pf2_n}')
            a.label('L_pf2')
            a.e('s_add_u32 s81, s79, 4096')
            for srd in (SRD[2]['K'], SRD[2]['V']):
                for so in (79, 81):
                    for i in range(4):
                        a.e(f'buffer_load_dwordx4 v[4:7], v{V_L16}, s[{srd}:{srd+3}], s{so} offen offset:{i*1024}')
            a.e('s_waitcnt vmcnt(16)')
            a.e('s_add_u32 s79, s79, 32768'); a.e('s_sub_u32 s80, s80, 1'); a.e('s_cmp_lg_u32 s80, 0'); a.e('s_cbranch_scc1 L_pf2')
            a.label('L_nopf2')
        def Kq(j): return lambda: dma_kv(j, 1, 'K', kslot(sl, j), fk)
        def Vq(j): return lambda: dma_kv(j, 1, 'V', vslot(sl, j), fv)
        for n in range(4):
            jstage1(n, sl, True, Kq((n+1)//2 + 2) if n % 2 == 1 else None)
            jstage2(n, sl, True, Vq(n//2 + 2) if n % 2 == 0 else None, True)
        a.e(f's_sub_u32 s{S_CNT}, s{S_CNT}, 1'); a.e(f's_cmp_lg_u32 s{S_CNT}, 0'); a.e('s_cbranch_scc1 L_loopJ')
        assert a.vm[-28:] == steady and [t for t, _ in pend] == ['K0']*4, (a.vm, pend)
        loops.append((start, len(a.L)))
        stamp()
        e1 = {25: Kq(15), 27: lambda: dma_wo(1, 0, sl(2))}
        e2 = {24: Vq(14), 26: Vq(15), 28: lambda: dma_wo(1, 1, sl(3))}
        def cyc():
            if cfg.fine == 'J':
                a.e('s_memtime s[100:101]'); a.e('s_waitcnt lgkmcnt(0)'); a.e(f's_mov_b32 s{STAMP0+nst[0]}, s100'); nst[0] += 1
        for n in range(24, 32):
            if n >= 28: cyc()
            jstage1(n, sl, n < 31, e1.get(n))
            if n >= 28: cyc()
            jstage2(n, sl, n < 31, e2.get(n), n < 30)
        cyc()
        flush()
        stamp()
        a.c('--- stats (both heads)')
        allreduce3([ML+2*qt+1 for qt in range(3)], 'v_add_f32')
        allreduce3([ML2+2*qt+1 for qt in range(3)], 'v_add_f32')
        t = TMP
        a.e(f'v_and_b32 v{t}, 15, v{V_LANE}'); a.e(f'v_lshlrev_b32 v{t}, 3, v{t}')
        a.e(f's_lshl_b32 s{S_T}, s{S_W}, 13'); a.e(f's_add_u32 s{S_T}, s{S_T}, {AUX+6144}'); a.e(f'v_add_u32 v{t+1}, s{S_T}, v{t}')
        for qt in range(3):
            a.e(f'ds_write_b64 v{t+1}, {vr(ML+2*qt, 2)} offset:{qt*128}')
            a.e(f'ds_write_b64 v{t+1}, {vr(ML2+2*qt, 2)} offset:{384+qt*128}')
        a.e('s_waitcnt lgkmcnt(0)'); a.e('s_barrier')
        exchange('O', sl(0), sl(1), lambda: (dma_wo(1, 2, sl(0)), dma_wo(1, 3, sl(1))), odst=AQ)
        stamp()
        oslot = [sl(2), sl(3), sl(0), sl(1)]
        fr = lambda s_: (lambda qt: ar(AQ + (qt*4 + s_)*4, 4))
        hk = [lambda: dma_wo(2, 0, sl(2)), lambda: dma_wo(2, 1, sl(3)), None, None]
        proj([(f'WO{s_}', oslot[s_], fr(s_), s_ == 0, hk[s_]) for s_ in range(4)])
        flush()
        a.e('s_barrier')
        stamp()
        exchange('O', sl(0), sl(1), lambda: (dma_wo(2, 2, sl(0)), dma_wo(2, 3, sl(1))), agpr=True, stoff=6144+384, odst=AQ)
        stamp()
        proj([(f'WO{s_}', oslot[s_], fr(s_), False, None) for s_ in range(4)])
        a.nop(8)
        stamp()
        for qt in range(3):
            for pi in range(4):
                d = IN + (qt*4+pi)*4
                for h2 in range(2):
                    x = Oreg(2*pi+h2, qt)
                    a.e(f'v_cvt_pk_bf16_f32 v{d+2*h2}, v{x}, v{x+1}'); a.e(f'v_cvt_pk_bf16_f32 v{d+2*h2+1}, v{x+2}, v{x+3}')
        stores(2)

    def build_mi():
        a.e(f's_sub_u32 s{S_T}, s{S_QF}, {QFLG}'); a.e(f's_lshr_b32 s{S_T}, s{S_T}, 7'); a.e(f's_mul_i32 s{S_T}, s{S_T}, {25600-12288}')
        a.e(f's_add_u32 s{S_T}, s{S_T}, {MIMG_OFF-QIMG_OFF:#x}')
        a.e(f's_add_u32 s{R_QI}, s{R_QI}, s{S_T}'); a.e(f's_addc_u32 s{R_QI+1}, s{R_QI+1}, 0'); a.e(f's_mov_b32 s{R_QI+2}, 25600'); a.e(f's_mov_b32 s{R_QI+3}, 0x20000')
    def build_u2():
        r = SRD[2]['K']; r1 = SRD[1]['K']
        a.e(f's_add_u32 s{r}, s{r1}, s{S_KD}'); a.e(f's_addc_u32 s{r+1}, s{r1+1}, 0'); a.e(f's_mov_b32 s{r+2}, 0x80000'); a.e(f's_mov_b32 s{r+3}, 0x20000')
        r = SRD[2]['WQ']; r1 = SRD[1]['WQ']
        a.e(f's_add_u32 s{r}, s{r1}, 4096'); a.e(f's_addc_u32 s{r+1}, s{r1+1}, 0'); a.e(f's_sub_u32 s{r+2}, s{r1+2}, 4096'); a.e(f's_mov_b32 s{r+3}, 0x20000')

    if cfg.setup_stamp: stamp()
    n0 = nst[0]
    a.e(f's_cmp_eq_u32 s{S_ISA[1]}, 0'); a.e('s_cbranch_scc1 L_progB')
    a.vm = []
    def prefetch(jobs, pfx):
        a.e('s_load_dwordx4 s[12:15], s[0:1], 48')
        a.e(f's_sub_u32 s16, s{S_QF}, {QFLG}'); a.e('s_lshr_b32 s16, s16, 7'); a.e('s_lshr_b32 s17, s16, 4'); a.e('s_and_b32 s16, s16, 15')
        a.e('s_lshr_b32 s18, s16, 1'); a.e('s_and_b32 s16, s16, 1'); a.e('s_lshl_b32 s17, s17, 1'); a.e('s_add_u32 s16, s16, s17')
        a.e('s_lshl_b32 s18, s18, 5'); a.e('s_add_u32 s16, s16, s18')
        a.e('s_waitcnt lgkmcnt(0)')
        for ji, (dk, blk0, nb) in enumerate(jobs):
            a.e(f's_add_u32 s17, s16, {dk}'); a.e('s_lshl_b32 s18, s17, 19'); a.e('s_lshr_b32 s19, s17, 13')
            for (dst, src) in ((20, 12), (24, 14)):
                a.e(f's_add_u32 s{dst}, s{src}, s18'); a.e(f's_addc_u32 s{dst+1}, s{src+1}, s19'); a.e(f's_mov_b32 s{dst+2}, 0x80000'); a.e(f's_mov_b32 s{dst+3}, 0x20000')
            a.e(f's_add_u32 s17, s{S_W8}, {blk0*32768}'); a.e(f's_mov_b32 s18, {nb}')
            a.label(f'L_pf{pfx}{ji}')
            a.e('s_add_u32 s19, s17, 4096')
            for srd in (20, 24):
                for so in (17, 19):
                    for i in range(4):
                        a.e(f'buffer_load_dwordx4 v[4:7], v{V_L16}, s[{srd}:{srd+3}], s{so} offen offset:{i*1024}{cfg.pf_flags}')
                    if cfg.pf_keep < 16: a.e(f's_waitcnt vmcnt({cfg.pf_keep})')
            a.e(f's_waitcnt vmcnt({min(cfg.pf_keep, 16)})')
            a.e('s_add_u32 s17, s17, 32768'); a.e('s_sub_u32 s18, s18, 1'); a.e('s_cmp_lg_u32 s18, 0'); a.e(f's_cbranch_scc1 L_pf{pfx}{ji}')
    if cfg.early_w:
        dma_x(SRD[2]['K'], 0, 0, 'p'); dma_x(SRD[2]['K'], 1, 1, 'p'); dma_wq(SRD[2]['WQ'], 0, 2, S_RWP, 'p'); dma_wq(SRD[2]['WQ'], 1, 3, S_RWP, 'p'); flush()
    if cfg.pf_blocks or cfg.pf_first:
        jobs = []
        if cfg.pf_first: jobs.append((0, cfg.pf_start, cfg.pf_first))
        if cfg.pf_blocks: jobs.append((16, 16 - cfg.pf_blocks, cfg.pf_blocks))
        prefetch(jobs, 'a')
    PREF[0] = prefetch
    sl0 = lambda n: n & 3
    PX, PWQ = SRD[2]['K'], SRD[2]['WQ']
    if not cfg.early_w:
        dma_x(PX, 0, 0, 'p'); dma_x(PX, 1, 1, 'p'); dma_wq(PWQ, 0, 2, S_RWP, 'p'); dma_wq(PWQ, 1, 3, S_RWP, 'p'); flush()
    fb, fbv = cfg.flBK, cfg.flBV
    if cfg.mini or cfg.pf2_n:
        a.e('s_load_dwordx4 s[12:15], s[0:1], 48')
        a.e(f's_sub_u32 s16, s{S_QF}, {QFLG}'); a.e('s_lshr_b32 s16, s16, 7'); a.e('s_lshr_b32 s17, s16, 4'); a.e('s_and_b32 s16, s16, 15')
        a.e('s_lshr_b32 s18, s16, 1'); a.e('s_and_b32 s16, s16, 1'); a.e('s_lshl_b32 s17, s17, 1'); a.e('s_add_u32 s16, s16, s17')
        a.e('s_lshl_b32 s18, s18, 5'); a.e('s_add_u32 s16, s16, s18'); a.e('s_add_u32 s16, s16, 16')
        a.e('s_lshl_b32 s18, s16, 19'); a.e('s_lshr_b32 s19, s16, 13')
        a.e('s_waitcnt lgkmcnt(0)')
        for (dst, src) in ((SRD[2]['K'], 12), (SRD[2]['V'], 14)):
            a.e(f's_add_u32 s{dst}, s{src}, s18'); a.e(f's_addc_u32 s{dst+1}, s{src+1}, s19'); a.e(f's_mov_b32 s{dst+2}, 0x80000'); a.e(f's_mov_b32 s{dst+3}, 0x20000')
    if cfg.mini:
        a.e(f's_mov_b32 s{S_STEP}, {16-cfg.mini}'); a.e(f's_mov_b32 s{S_VSTEP}, {16-cfg.mini}'); a.e(f's_mov_b32 s{S_ROT}, 0')
        qphase(PWQ, S_RWP, sl0,
               [None, None, lambda: dma_kv(0, 2, 'K', 2, fb), lambda: dma_kv(0, 2, 'V', 3, fbv)],
               lambda: dma_kv(1, 2, 'K', 0, fb), pfx='p', count='A')
    else:
        qphase(PWQ, S_RWP, sl0,
               [lambda: dma_wq(SRD[1]['WQ'], 0, 2), lambda: dma_wq(SRD[1]['WQ'], 1, 3), None, None],
               lambda: (dma_x(SRD[1]['X'], 0, 0), dma_x(SRD[1]['X'], 1, 1)), pfx='p', count='A')
    r = SRD[2]['WQ']; r1 = SRD[1]['WQ']
    a.e(f's_add_u32 s{r}, s{r1}, 256'); a.e(f's_addc_u32 s{r+1}, s{r1+1}, 0'); a.e(f's_sub_u32 s{r+2}, s{r1+2}, 256'); a.e(f's_mov_b32 s{r+3}, 0x20000')
    a.e(f's_cmp_lg_u32 s{S_W}, 0'); a.e('s_cbranch_scc1 L_nopub')
    for s_ in range(4):
        for qt in range(3):
            idx = s_*3 + qt
            if idx % 4 == 0: a.e(f's_mov_b32 s{S_T3}, {(idx//4)*4096}')
            a.e(f'buffer_store_dwordx4 {aq(qt, s_)}, v{V_L16}, s[{R_QI}:{R_QI+3}], s{S_T3} offen offset:{(idx%4)*1024} sc1')
    if not cfg.mini:
        a.e('s_waitcnt vmcnt(0)')
        a.e('s_mov_b64 exec, 1'); a.e('v_mov_b32 v1, 0'); a.e('v_mov_b32 v2, 1')
        a.e(f'buffer_store_dword v2, v1, s[{R_FLG}:{R_FLG+3}], s{S_QF} offen sc1')
        a.e('s_mov_b64 exec, -1')
    a.label('L_nopub')
    stamp()
    pre_b = post_b = None
    if cfg.mini:
        assert cfg.mini == 4
        sl = sl0
        a.c('================ mini unit: last blocks of the partner\'s unit 2')
        build_mi()
        wait_vm('K0'); k_reads(sl(2))
        for i in range(96): a.e(f'v_mov_b32 v{O+i}, 0')
        for qt in range(3):
            a.e(f'v_mov_b32 v{M_(qt)}, 0'); a.e(f'v_mov_b32 v{L_(qt)}, 0')
        a.e(f's_mov_b32 s{S_THR}, 0xff800000'); a.e(f's_mov_b32 s{S_FLOOR}, 0xff800000')
        a.e('s_waitcnt lgkmcnt(0)')
        dma_kv(2, 2, 'K', sl(2), fb); dma_kv(1, 2, 'V', sl(1), fbv)
        for i, m in enumerate(qk_mfmas(0)):
            a.e(m)
            if i % 3 == 2: pump()
        wait_vm('K1'); k_reads(sl(0))
        flush()
        a.nop(4)
        for c, s_ in sm_first(0): a.e(s_)
        sm_check(0)
        assert a.vm[-16:] == ['K0']*8 + ['V1']*8, a.vm
        stage1(12, sl, True, lambda: dma_kv(15, 2, 'K', kslot(sl, 15), fb))
        stage2(12, sl, True, lambda: dma_kv(14, 2, 'V', vslot(sl, 14), fbv), True)
        stage1(13, sl, True, lambda: dma_wq(SRD[1]['WQ'], 0, 2))
        stage2(13, sl, True, lambda: dma_kv(15, 2, 'V', vslot(sl, 15), fbv), True)
        stage1(14, sl, True, None)
        stage2(14, sl, True, lambda: dma_wq(SRD[1]['WQ'], 1, 3), False)
        stage1(15, sl, False, None)
        stage2(15, sl, False, None, False)
        allreduce3([L_(qt) for qt in range(3)], 'v_add_f32')
        t = TMP
        a.e(f'v_and_b32 v{t}, 15, v{V_LANE}'); a.e(f'v_lshlrev_b32 v{t}, 3, v{t}')
        a.e(f's_lshl_b32 s{S_T}, s{S_W}, 13'); a.e(f's_add_u32 s{S_T}, s{S_T}, {AUX+6144}'); a.e(f'v_add_u32 v{t+1}, s{S_T}, v{t}')
        for qt in range(3): a.e(f'ds_write_b64 v{t+1}, {vr(M_(qt), 2)} offset:{qt*128}')
        a.e('s_waitcnt lgkmcnt(0)'); a.e('s_barrier')
        exchange('O', sl(0), sl(1), lambda: (dma_x(SRD[1]['X'], 0, 0), dma_x(SRD[1]['X'], 1, 1)), mini=True)
        a.e(f's_mul_i32 s{S_T3}, s{S_W}, 6144')
        a.nop(1)
        for i in range(6):
            if i == 4: a.e(f's_add_u32 s{S_T3}, s{S_T3}, 4096')
            a.vmop('MP', f'buffer_store_dwordx4 {vr(O+4*i, 4)}, v{V_L16}, s[{R_QI}:{R_QI+3}], s{S_T3} offen offset:{(i%4)*1024} sc1')
        a.e(f'v_and_b32 v{TMP}, 15, v{V_LANE}'); a.e(f'v_lshlrev_b32 v{TMP}, 3, v{TMP}'); a.e(f's_mov_b32 s{S_T3}, 24576')
        a.e(f's_cmp_lg_u32 s{S_W}, 0'); a.e('s_cbranch_scc1 L_nomst')
        for qt in range(3):
            a.e(f'buffer_store_dwordx2 {vr(M_(qt), 2)}, v{TMP}, s[{R_QI}:{R_QI+3}], s{S_T3} offen offset:{qt*128} sc1')
        a.label('L_nomst')
        flush()
        MPW = [len(a.vm)]
        def pre_b():
            a.e('s_waitcnt vmcnt(0)')
            a.vm = []
        def post_b():
            a.e(f's_cmp_lg_u32 s{S_W}, 0'); a.e('s_cbranch_scc1 L_nomf')
            a.e('s_mov_b64 exec, 1'); a.e(f'v_mov_b32 v{TMP}, 0'); a.e(f'v_mov_b32 v{TMP+1}, 1'); a.e(f'v_mov_b32 v{TMP+2}, {OFLG}')
            a.e(f'buffer_store_dword v{TMP+1}, v{TMP}, s[{R_FLG}:{R_FLG+3}], s{S_QF} offen sc1')
            a.e(f'buffer_store_dword v{TMP+1}, v{TMP+2}, s[{R_FLG}:{R_FLG+3}], s{S_QF} offen sc1')
            a.e('s_mov_b64 exec, -1')
            a.label('L_nomf')
            a.nop(2)
    if cfg.rotA: a.e(f's_lshl_b32 s{S_ROT}, s{S_HH}, {cfg.rot_shift}')
    else: a.e(f's_mov_b32 s{S_ROT}, 0')
    joint(pre_b, post_b)
    a.e('s_branch L_final')
    a.label('L_progB')
    nst[0] = n0
    a.vm = []; assert not pend
    build_u2()
    a.e(f's_mov_b32 s{S_ROT}, 0')
    dma_x(SRD[1]['X'], 0, 0); dma_x(SRD[1]['X'], 1, 1); dma_wq(SRD[1]['WQ'], 0, 2); dma_wq(SRD[1]['WQ'], 1, 3); flush()
    stamp()
    unit(1, 'B')
    unit(2, 'B')
    a.label('L_final')
    a.c('================ final reduce')
    a.e('s_load_dwordx4 s[28:31], s[0:1], 80')
    a.e('s_load_dwordx2 s[32:33], s[0:1], 96')
    a.e(f's_lshl_b32 s{S_T}, s{S_W}, 6'); a.e(f'v_add_u32 v1, s{S_T}, v{V_LANE}')
    a.e(f's_bfe_u32 s{S_T+1}, s{S_FG[2]}, 0x50002'); a.e(f's_mul_i32 s{S_T+1}, s{S_T+1}, 192')
    a.e(f'v_add_u32 v3, s{S_T+1}, v1')
    a.e('v_lshlrev_b32 v2, 4, v3')
    a.e('v_lshrrev_b32 v5, 8, v3'); a.e('v_mul_u32_u24 v5, 21846, v5'); a.e('v_lshrrev_b32 v5, 16, v5')
    a.e('v_mul_u32_u24 v6, 768, v5'); a.e('v_sub_u32 v6, v3, v6')
    a.e('v_lshrrev_b32 v7, 6, v6'); a.e('v_and_b32 v8, 63, v6')
    a.e('v_lshrrev_b32 v9, 2, v7'); a.e('v_and_b32 v10, 3, v7')
    a.e('v_add_u32 v11, v5, v10'); a.e('v_lshlrev_b32 v11, 1, v11')
    a.e('v_and_b32 v12, 15, v8'); a.e('v_lshl_add_u32 v12, v9, 4, v12'); a.e('v_lshlrev_b32 v12, 11, v12')
    a.e('v_lshl_add_u32 v12, v5, 8, v12'); a.e('v_lshrrev_b32 v13, 4, v8'); a.e('v_lshl_add_u32 v12, v13, 3, v12')
    a.e('v_and_b32 v13, 7, v11'); a.e('v_lshl_add_u32 v13, v13, 5, v12')
    a.e('v_add_u32 v11, 1, v11'); a.e('v_and_b32 v11, 7, v11'); a.e('v_lshl_add_u32 v14, v11, 5, v12')
    a.e('s_waitcnt lgkmcnt(0)')
    a.e('s_mov_b32 s40, s30'); a.e('s_mov_b32 s41, s31'); a.e('s_mov_b32 s42, 256'); a.e('s_mov_b32 s43, 0x20000')
    a.e('v_mov_b32 v18, 0')
    a.e('buffer_load_dword v21, v18, s[40:43], 0 offen sc1')
    a.wait_vm_all()
    a.e('s_barrier')
    a.e('s_mov_b32 s36, s28'); a.e('s_mov_b32 s37, s29'); a.e('s_mov_b32 s38, 786432'); a.e('s_mov_b32 s39, 0x20000')
    a.e(f's_cmp_lg_u32 s{S_W}, 0'); a.e('s_cbranch_scc1 L_pd')
    a.e('s_mov_b64 exec, 1'); a.e('v_mov_b32 v15, 0'); a.e('v_mov_b32 v16, 1')
    a.e(f'buffer_store_dword v16, v15, s[{R_FLG}:{R_FLG+3}], s{S_FG[2]} offen sc1')
    a.e('s_mov_b64 exec, -1')
    stamp()
    a.e(f's_mov_b32 s{S_T+2}, 8000')
    a.label('L_cpoll')
    a.e(f'v_readfirstlane_b32 s{S_T+1}, v21'); a.e('s_nop 3')
    a.e(f's_cmp_eq_u32 s{S_T+1}, 256'); a.e('s_cbranch_scc1 L_cpok')
    a.e('s_sleep 2')
    a.e('buffer_load_dword v21, v18, s[40:43], 0 offen sc1'); a.e('s_waitcnt vmcnt(0)')
    a.e(f's_sub_u32 s{S_T+2}, s{S_T+2}, 1'); a.e(f's_cmp_lg_u32 s{S_T+2}, 0'); a.e('s_cbranch_scc1 L_cpoll')
    a.label('L_cpok')
    a.e(f'v_and_b32 v17, 15, v{V_LANE}'); a.e('v_lshlrev_b32 v17, 2, v17')
    a.e(f's_and_b32 s{S_T+1}, s{S_FG[2]}, -128'); a.e(f's_mov_b32 s{S_T+2}, 8000')
    a.label('L_poll')
    a.e(f'buffer_load_dword v20, v17, s[{R_FLG}:{R_FLG+3}], s{S_T+1} offen sc1')
    a.e('s_waitcnt vmcnt(0)')
    a.e('v_cmp_eq_u32 vcc, 1, v20')
    a.e('s_nop 1')
    a.e('s_cmp_eq_u64 vcc, -1'); a.e('s_cbranch_scc1 L_pd')
    a.e(f's_sub_u32 s{S_T+2}, s{S_T+2}, 1'); a.e(f's_cmp_lg_u32 s{S_T+2}, 0'); a.e('s_cbranch_scc1 L_poll')
    a.label('L_pd')
    a.e('s_barrier')
    stamp()
    a.e(f's_cmp_eq_u32 s{S_W}, 3'); a.e('s_cbranch_scc1 L_rd')
    a.e(f's_lshr_b32 s{S_T}, s{S_FG[2]}, 7')
    a.e(f's_mul_i32 s{S_T+1}, s{S_T}, 786432')
    a.e(f's_add_u32 s44, s32, s{S_T+1}'); a.e('s_addc_u32 s45, s33, 0'); a.e('s_mov_b32 s46, 786432'); a.e('s_mov_b32 s47, 0x20000')
    for h in range(16):
        a.e(f's_mov_b32 s48, {h*49152}')
        a.e(f'buffer_load_dwordx4 v[{48+4*h}:{51+4*h}], v2, s[44:47], s48 offen sc1')
    a.e(f's_and_b32 s49, s{S_T}, 7'); a.e('s_mul_i32 s49, s49, 98304'); a.e(f's_lshr_b32 s50, s{S_T}, 3'); a.e('s_lshl_b32 s50, s50, 10'); a.e('s_add_u32 s49, s49, s50')
    for i in range(8): a.e(f'v_mov_b32 v{20+i}, 0')
    for h in range(16):
        a.e(f's_waitcnt vmcnt({15-h})')
        for d in range(4):
            r = 48 + 4*h + d
            a.e(f'v_lshlrev_b32 v28, 16, v{r}'); a.e(f'v_and_b32 v29, 0xffff0000, v{r}')
            a.e(f'v_add_f32 v{20+2*d}, v{20+2*d}, v28'); a.e(f'v_add_f32 v{21+2*d}, v{21+2*d}, v29')
    a.e('v_cvt_pk_bf16_f32 v30, v20, v21'); a.e('v_cvt_pk_bf16_f32 v31, v22, v23')
    a.e('v_cvt_pk_bf16_f32 v32, v24, v25'); a.e('v_cvt_pk_bf16_f32 v33, v26, v27')
    a.e(f'buffer_store_dwordx2 v[30:31], v13, s[36:39], s49 offen{cfg.out_flags}')
    a.e(f'buffer_store_dwordx2 v[32:33], v14, s[36:39], s49 offen{cfg.out_flags}')
    a.label('L_rd')
    a.e('s_waitcnt vmcnt(0)')
    if cfg.fine == 'J': nst[0] = 9
    if cfg.stamps:
        stamp()
        a.e('s_memtime s[98:99]'); a.e('s_memrealtime s[100:101]'); a.e('s_waitcnt lgkmcnt(0)')
        a.e('v_readfirstlane_b32 s2, v223')
        a.e('v_mov_b32 v252, s98'); a.e('v_mov_b32 v253, s100')
        a.e('s_add_u32 s32, s32, 0x4000000'); a.e('s_addc_u32 s33, s33, 0'); a.e('s_mov_b32 s34, 0x100000'); a.e('s_mov_b32 s35, 0x20000')
        a.e('s_nop 3')
        a.e(f's_lshl_b32 s94, s2, 2'); a.e(f's_add_u32 s94, s94, s{S_W}'); a.e('s_lshl_b32 s94, s94, 7')
        a.e('v_mov_b32 v1, 0')
        a.e(f'buffer_store_dword v255, v1, s[32:35], s94 offen')
        a.e(f'buffer_store_dwordx4 v[252:255], v1, s[32:35], s94 offen offset:96')
        for i in range(nst[0]):
            a.e(f'v_mov_b32 v2, s{STAMP0+i}')
            a.e(f'buffer_store_dword v2, v1, s[32:35], s94 offen offset:{4*i+4}')
            a.e('s_nop 1')
        a.e('s_waitcnt vmcnt(0)')
    a.label('L_end')
    a.e('s_endpgm')
    for buf in (0, 1):
        a.label(f'L_rescale{buf}')
        t = TMP
        allreduce3([TMP+qt for qt in range(3)], 'v_max_f32')
        for qt in range(3): a.e(f'v_max_f32 v{t+qt}, s{S_FLOOR}, v{t+qt}')
        for qt in range(3):
            a.e(f'v_add_f32 v{M_(qt)}, v{M_(qt)}, v{t+qt}')
            a.e(f'v_max_f32 v{t+4+qt}, 0, v{t+qt}')
            a.e(f'v_sub_f32 v{t+4+qt}, 0, v{t+4+qt}')
        for qt in range(3): a.e(f'v_exp_f32 v{t+4+qt}, v{t+4+qt}')
        for kt in range(2):
            for qt in range(3):
                for r in range(4):
                    x = Sreg(buf, kt, qt) + r
                    a.e(f'v_sub_f32 v{x}, v{x}, v{t+qt}')
        for qt in range(3): a.e(f'v_mul_f32 v{L_(qt)}, v{L_(qt)}, v{t+4+qt}')
        for tau in range(8):
            for qt in range(3):
                for r in range(4):
                    x = Oreg(tau, qt) + r
                    a.e(f'v_mul_f32 v{x}, v{x}, v{t+4+qt}')
        a.e(f's_mov_b32 s{S_THR}, {f32bits(cfg.thr):#x}'); a.e(f's_mov_b32 s{S_FLOOR}, 0')
        a.e(f's_setpc_b64 s[{S_RET}:{S_RET+1}]')

    a.label('L_rescaleJ1')
    t = TMP
    allreduce3([TMP+qt for qt in range(3)], 'v_max_f32')
    for qt in range(3): a.e(f'v_max_f32 v{t+qt}, s{S_FLOOR2}, v{t+qt}')
    for qt in range(3):
        a.e(f'v_add_f32 v{ML2+2*qt}, v{ML2+2*qt}, v{t+qt}')
        a.e(f'v_max_f32 v{t+4+qt}, 0, v{t+qt}')
        a.e(f'v_sub_f32 v{t+4+qt}, 0, v{t+4+qt}')
    for qt in range(3): a.e(f'v_exp_f32 v{t+4+qt}, v{t+4+qt}')
    for kt in range(2):
        for qt in range(3):
            for r in range(4):
                x = Sreg(1, kt, qt) + r
                a.e(f'v_sub_f32 v{x}, v{x}, v{t+qt}')
    for qt in range(3): a.e(f'v_mul_f32 v{ML2+2*qt+1}, v{ML2+2*qt+1}, v{t+4+qt}')
    for g in range(4):
        for i in range(24): a.e(f'v_accvgpr_read_b32 v{OT+i}, a{AO2+24*g+i}')
        for i in range(24): a.e(f'v_mul_f32 v{OT+i}, v{OT+i}, v{t+4+((i//4)%3)}')
        for i in range(24): a.e(f'v_accvgpr_write_b32 a{AO2+24*g+i}, v{OT+i}')
    a.e(f's_mov_b32 s{S_THR2}, {f32bits(cfg.thr):#x}'); a.e(f's_mov_b32 s{S_FLOOR2}, 0')
    a.e(f's_setpc_b64 s[{S_RET}:{S_RET+1}]')

    a.e('.section .rodata,"a"')
    a.e('.p2align 6'); a.e(f'.amdhsa_kernel {KN}')
    a.e('  .amdhsa_next_free_vgpr 512'); a.e('  .amdhsa_next_free_sgpr 102'); a.e('  .amdhsa_accum_offset 256')
    a.e('  .amdhsa_group_segment_fixed_size 0'); a.e('  .amdhsa_kernarg_size 104'); a.e('  .amdhsa_user_sgpr_count 2')
    a.e('  .amdhsa_user_sgpr_kernarg_segment_ptr 1'); a.e('  .amdhsa_system_sgpr_workgroup_id_x 1')
    a.e('  .amdhsa_float_denorm_mode_32 3'); a.e('  .amdhsa_float_denorm_mode_16_64 3')
    a.e('.end_amdhsa_kernel')
    probs = check(a.L)
    for (s0, s1) in loops: probs += check(a.L[s0:s1] + a.L[s0:s1])
    return a.text(), probs, nst[0]

if __name__ == '__main__':
    cfg = Cfg()
    for kv in sys.argv[2:]:
        k, v = kv.split('=', 1); setattr(cfg, k, eval(v))
    txt, probs, n = gen(cfg)
    for p in probs: print('HAZARD', p)
    open(sys.argv[1], 'w').write(txt)
    print('written', sys.argv[1], len(txt), 'stamps', n)
```
